```python
import torch

def _softmax(x, axis=-1):
    return torch.softmax(x, dim=axis)
def _gelu(x):
    return torch.nn.functional.gelu(x, approximate="tanh")
def _silu(x):
    return torch.nn.functional.silu(x)
def _sigmoid(x):
    return torch.sigmoid(x)
def _layernorm(x, axis=-1, eps=1e-5):
    m = x.mean(dim=axis, keepdim=True)
    v = x.var(dim=axis, keepdim=True, unbiased=False)
    return (x - m) / torch.sqrt(v + eps)
def _scatter_add(tgt, idx, src, axis=0):
    return tgt.clone().index_add_(axis, idx, src)
def _segment_sum(src, seg, n):
    out = torch.zeros((n,) + src.shape[1:], dtype=src.dtype)
    return out.index_add_(0, seg, src)
def _pad(x, pw):
    flat = tuple(v for pair in reversed(pw) for v in pair)
    return torch.nn.functional.pad(x, flat)

kernel_name = 'sequential_preLN__mha_block_cached__glu_gated_geglu__decode'

def setup_inputs():

    _w = (lambda a: (lambda t: t.to(torch.bfloat16) if t.is_floating_point() else t)(torch.as_tensor(a)))
    def _A_setup():
        B, Sq, D = 2, 1, 576
        H, Sk, Dh = 32, 8192, 128
        return {
            "x": _w((lambda *s: torch.randn(*s, dtype=torch.bfloat16) * 0.05)(B, Sq, D)),
            "k_cache": _w((lambda *s: torch.randn(*s, dtype=torch.bfloat16) * 1.6)(B, H, Sk, Dh)),
            "v_cache": _w((lambda *s: torch.randn(*s, dtype=torch.bfloat16) * 0.8)(B, H, Sk, Dh)),
            "wq": _w((lambda *s: torch.randn(*s, dtype=torch.bfloat16) * 1.6)(D, H * Dh) * (D ** -0.5)),
            "wo": _w((lambda *s: torch.randn(*s, dtype=torch.bfloat16) * 0.8)(H * Dh, D) * ((H * Dh) ** -0.5)),
        }
    _A_in = _A_setup()

    def _B_setup():
        B, S, Dm, Df = 2, 1, 576, 4608
        return {
            "x": _w((lambda *s: torch.randn(*s, dtype=torch.bfloat16) * 0.05)(B, S, Dm)),
            "w_gate": _w((lambda *s: torch.randn(*s, dtype=torch.bfloat16) * 0.8)(Dm, Df) * (Dm ** -0.5)),
            "w_up": _w((lambda *s: torch.randn(*s, dtype=torch.bfloat16) * 0.8)(Dm, Df) * (Dm ** -0.5)),
            "w_down": _w((lambda *s: torch.randn(*s, dtype=torch.bfloat16) * 0.8)(Df, Dm) * (Df ** -0.5)),
        }
    _B_in = _B_setup()

    return {
        "A_x": _A_in["x"],
        "A_k_cache": _A_in["k_cache"],
        "A_v_cache": _A_in["v_cache"],
        "A_wq": _A_in["wq"],
        "A_wo": _A_in["wo"],
        "B_x": _B_in["x"],
        "B_w_gate": _B_in["w_gate"],
        "B_w_up": _B_in["w_up"],
        "B_w_down": _B_in["w_down"],
    }

def reference(A_x, A_k_cache, A_v_cache, A_wq, A_wo, B_x, B_w_gate, B_w_up, B_w_down):
    def _A_ref(x, k_cache, v_cache, wq, wo):
        B, Sq, D = x.shape
        H, Dh = 32, 128
        q = (lambda x, *d: x.permute(*d))((x @ wq).reshape(B, Sq, H, Dh), 0, 2, 1, 3)
        scores = torch.einsum("bhqd,bhkd->bhqk", q, k_cache) * (Dh ** -0.5)
        p = _softmax(scores, axis=-1)
        o = torch.einsum("bhqk,bhkd->bhqd", p, v_cache)
        return (lambda x, *d: x.permute(*d))(o, 0, 2, 1, 3).reshape(B, Sq, H * Dh) @ wo

    def _B_ref(x, w_gate, w_up, w_down):
        g = torch.einsum("bsd,df->bsf", x, w_gate)
        u = torch.einsum("bsd,df->bsf", x, w_up)
        h = _gelu(g) * u
        return torch.einsum("bsf,fd->bsd", h, w_down)

    x = A_x
    h = x + _A_ref(_layernorm(x, axis=-1), A_k_cache, A_v_cache, A_wq, A_wo)
    h2 = h + _B_ref(_layernorm(h, axis=-1), B_w_gate, B_w_up, B_w_down)
    return h2
```

```python
import re

TRANS = ('v_exp_', 'v_log_', 'v_rcp_', 'v_rsq_', 'v_sqrt_', 'v_sin_', 'v_cos_')


def _regs(tok):
    tok = tok.strip().lstrip('-').strip('|')
    m = re.fullmatch(r'([vs])(\d+)', tok)
    if m:
        return {(m.group(1), int(m.group(2)))}
    m = re.fullmatch(r'([vs])\[(\d+):(\d+)\]', tok)
    if m:
        return {(m.group(1), i) for i in range(int(m.group(2)), int(m.group(3)) + 1)}
    if tok in ('vcc', 'vcc_lo', 'vcc_hi'):
        return {('vcc', 0)}
    if tok in ('exec', 'exec_lo', 'exec_hi'):
        return {('exec', 0)}
    return set()


class Ins:
    def __init__(self, text):
        self.text = text
        t = text.split(';')[0].strip()
        sp = t.split(None, 1)
        self.op = sp[0]
        rest = sp[1] if len(sp) > 1 else ''
        ops = []
        cur = ''
        depth = 0
        for ch in rest:
            if ch == '[':
                depth += 1
            if ch == ']':
                depth -= 1
            if ch == ',' and depth == 0:
                ops.append(cur.strip()); cur = ''
            else:
                cur += ch
        if cur.strip():
            ops.append(cur.strip())
        mods = ''
        if ops:
            last = ops[-1].split(None, 1)
            if len(last) > 1:
                ops[-1] = last[0]; mods = last[1]
        self.ops = ops
        self.mods = mods
        op = self.op
        self.mfma = op.startswith('v_mfma')
        self.valu = op.startswith('v_') and not self.mfma
        self.trans = op.startswith(TRANS)
        self.dot = op.startswith('v_dot')
        self.dpp = ('row_' in mods and 'row_mask' in mods) or 'quad_perm' in mods or op.endswith('_dpp')
        self.perml = op.startswith('v_permlane')
        self.rdl = op.startswith('v_readlane') or op.startswith('v_readfirstlane')
        self.vmem = op.startswith(('buffer_', 'global_'))
        self.ds = op.startswith('ds_')
        self.store = self.vmem and ('store' in op or 'atomic' in op)
        self.wide_store = self.store and ('x3' in op or 'x4' in op)
        self.nop = op == 's_nop'
        self.w = set(); self.r = set()
        self.srcC = set(); self.srcAB = set()
        R = [_regs(o) for o in ops]
        if self.mfma:
            self.w = R[0]; self.srcAB = R[1] | R[2]; self.srcC = R[3]; self.r = self.srcAB | self.srcC
        elif self.perml:
            self.w = R[0] | R[1]; self.r = R[0] | R[1]
        elif self.valu:
            self.w = set(R[0])
            k = 1
            if op.startswith(('v_add_co', 'v_sub_co', 'v_addc_co', 'v_subb_co', 'v_div_scale')):
                self.w |= R[1]; k = 2
            for x in R[k:]:
                self.r |= x
            if op.startswith('v_cndmask') and len(ops) == 3:
                self.r |= {('vcc', 0)}
            if op.startswith(('v_fmac', 'v_dot2c', 'v_mac')) or self.dpp:
                self.r |= R[0]
            if self.dot:
                if op.startswith('v_dot2c'):
                    self.srcC = R[0]; self.srcAB = R[1] | R[2]
                else:
                    self.srcC = R[3]; self.srcAB = R[1] | R[2]
            if self.dpp:
                self.dppsrc = R[1]
        elif self.vmem:
            if self.store:
                for x in R:
                    self.r |= x
                self.data = R[0] if op.startswith('buffer_') else R[1]
            else:
                self.w = R[0]
                for x in R[1:]:
                    self.r |= x
        elif self.ds:
            if 'read' in op or 'bpermute' in op or 'permute' in op:
                self.w = R[0]
                for x in R[1:]:
                    self.r |= x
            else:
                for x in R:
                    self.r |= x
        else:
            if R:
                self.w = R[0]
            for x in R[1:]:
                self.r |= x

    def slots(self):
        if self.nop:
            return int(self.ops[0]) + 1
        return 1


def need(p, c):
    n = 0
    vw = {x for x in p.w if x[0] == 'v'}
    sw = {x for x in p.w if x[0] in ('s', 'vcc')}
    if p.valu:
        if c.dpp and (vw & c.dppsrc): n = max(n, 2)
        if c.rdl and (vw & c.r): n = max(n, 1)
        if c.perml and (vw & c.r): n = max(n, 2)
        if c.mfma and (vw & c.r): n = max(n, 2)
        if p.trans and c.valu and not c.trans and (vw & c.r): n = max(n, 1)
        if p.trans and c.mfma and (vw & c.r): n = max(n, 2)
        if p.dot:
            if (c.valu or c.mfma or c.vmem or c.ds):
                if c.op == p.op:
                    if vw & c.srcAB: n = max(n, 3)
                elif vw & (c.r | c.w):
                    n = max(n, 3)
        if sw:
            if c.valu and (sw & c.r): n = max(n, 4 if c.rdl else 2)
            if c.vmem and (sw & c.r): n = max(n, 5)
    if p.mfma:
        if c.mfma:
            if vw & c.srcAB: n = max(n, 8)
            if vw & c.srcC and c.srcC != vw: n = max(n, 6)
            if vw & c.w and c.w != vw: n = max(n, 6)
        elif (c.valu or c.vmem or c.ds) and (vw & (c.r | c.w)):
            n = max(n, 8)
        if c.valu and (p.srcC & c.w): n = max(n, 3)
    if p.wide_store:
        cw = {x for x in c.w if x[0] == 'v'}
        if p.data & cw: n = max(n, 2)
    return n


def maxneed(p):
    if p.mfma: return 8
    if p.valu:
        if any(x[0] in ('s', 'vcc') for x in p.w): return 5
        if p.dot: return 3
        return 2
    if p.wide_store: return 2
    return 0


class Gen:
    def __init__(self):
        self.out = []
        self.hist = []
        self.vm_issued = 0
        self.vm_done = 0
        self.nins = 0

    def raw(self, s):
        self.out.append(s)

    def _pad(self, k):
        while k > 0:
            n = min(k, 16)
            i = Ins(f"s_nop {n-1}")
            self.out.append("  " + i.text); self.hist.append(i); self.nins += 1
            k -= n

    def __call__(self, text):
        for line in text.strip().split('\n'):
            line = line.strip()
            if not line or line.startswith(';'):
                continue
            self.emit(line)

    def emit(self, text):
        c = Ins(text)
        if c.op.startswith(('s_cbranch', 's_branch', 's_endpgm')):
            self.flush(1)
        else:
            d = 0; k = 0
            for p in reversed(self.hist[-12:]):
                k = max(k, need(p, c) - d)
                d += p.slots()
            self._pad(k)
        self.out.append("  " + text); self.hist.append(c); self.nins += 1
        if c.vmem:
            self.vm_issued += 1
            return self.vm_issued - 1
        return None

    def flush(self, extra=0):
        d = extra; k = 0
        for p in reversed(self.hist[-12:]):
            k = max(k, maxneed(p) - d)
            d += p.slots()
        self._pad(k)

    def label(self, name):
        self.out.append(name + ":")

    def vm(self, text):
        t = self.emit(text)
        assert t is not None, text
        return t

    def outstanding(self):
        return self.vm_issued - self.vm_done

    def wait(self, tok):
        if tok < self.vm_done:
            return
        n = self.vm_issued - 1 - tok
        assert n <= 63, n
        self.emit(f"s_waitcnt vmcnt({n})")
        self.vm_done = tok + 1

    def waitall(self):
        self.emit("s_waitcnt vmcnt(0)")
        self.vm_done = self.vm_issued

    def lgk(self, n=0):
        self.emit(f"s_waitcnt lgkmcnt({n})")

    def text(self):
        return "\n".join(self.out) + "\n"
```

```python
import sys, os
sys.path.insert(0, os.path.dirname(os.path.abspath(__file__)))
from asmlib import Gen

KN = "sequential_preLN__mha_block_cached__glu_gated_geglu__decode_kernel"

ML = 0
HB = 16384
HBS = 4096
YB = 131072
DB = 1 << 20
WSN = 2 << 20
OOR = 0x80000000
QP = 0
QS = 4096
OB = 4608
N9 = 7168
GUL = 9216
STB = 13312
ACT = 15360
LDS_BYTES = 16384

DEF = dict(rot=5, L1=10, L1b=24, D=16, XB=52, nA1=8, R=8, NP=4, G=1, psleep=4, stamps=0,
           polw="", polf="", pold="", wo_start=28, wo_every=8, warm=1, cnt_at=40, LIMIT=20000)


def q4(b): return f"v[{b}:{b+3}]"
def q2(b): return f"v[{b}:{b+1}]"


def gen(**kw):
    P = dict(DEF); P.update(kw)
    g = Gen()
    R_ = P['R']
    hdr = []
    hdr.append(f"; @launch grid=(256,1,1) block=(512,1,1) lds={LDS_BYTES}")
    hdr.append('.amdgcn_target "amdgcn-amd-amdhsa--gfx950"')
    hdr += [".text", f".globl {KN}", ".p2align 8", f".type {KN},@function", f"{KN}:"]

    vT, vL, vG, vJ = 0, 1, 2, 3
    vK, vWQ, vM, vWO, vWO9 = 4, 5, 6, 10, 11
    vQ, vS, vACC, vA0, vA1 = 12, 16, 20, 24, 28
    T = list(range(32, 48))
    vMW, vFAC, vST, vZ, vCNT, vGU, vML = 48, 49, 50, 51, 52, 53, 54
    vGU4 = 5
    pool = list(range(56, 256, 4))
    KS, VS, WQ, WO, GU, WD, WS, XS, OUT = [f"s[{a}:{a+3}]" for a in range(28, 64, 4)]
    sW, sC, sB, sH, sI, sX = 64, 65, 66, 67, 68, 69
    sKo, sVo, sQo, sTo, sF, sRr = 70, 71, 72, 73, 74, 75
    sPL, sPH = 78, 79
    sMK = {1: "s[80:81]", 2: "s[82:83]", 3: "s[84:85]"}
    sONE, sCNT, sYB, sDBo = 86, 87, 88, 89
    sGo = 90

    nst = [0]
    def stamp(k):
        if not P['stamps']:
            return
        g.lgk(0)
        if nst[0] is not None and nst[0] != 0:
            g(f"v_writelane_b32 v{vST}, s92, {nst[0]-1}")
        g("s_memrealtime s[92:93]")
        nst[0] = k + 1
    def stamp_end(k):
        if not P['stamps']:
            return
        stamp(k)
        g.lgk(0)
        g(f"v_writelane_b32 v{vST}, s92, {k}")
        g(f"s_add_u32 s94, s26, {260<<20}"); g("s_addc_u32 s95, s27, 0")
        g(f"s_lshl_b32 s96, s2, 3"); g(f"s_add_u32 s96, s96, s{sW}"); g("s_lshl_b32 s96, s96, 7")
        g(f"v_lshlrev_b32 v{T[0]}, 2, v{vL}"); g(f"v_add_u32 v{T[0]}, s96, v{T[0]}")
        g("s_mov_b32 exec_hi, 0")
        g(f"global_store_dword v{T[0]}, v{vST}, s[94:95]")
        g("s_mov_b64 exec, -1")

    def bf16r(d, s):
        g(f"v_cvt_pk_bf16_f32 v{d}, v{s}, v{s}")
        g(f"v_and_b32 v{d}, 0xffff0000, v{d}")

    def allred(op, regs, tmps, rows=4):
        for sh in (8, 4, 2, 1):
            for r in regs:
                g(f"{op}_dpp v{r}, v{r}, v{r} row_ror:{sh} row_mask:0xf bank_mask:0xf")
        for sw in (("16", "32") if rows == 4 else ("16",)):
            for r, t in zip(regs, tmps):
                g(f"v_mov_b32 v{t}, v{r}")
            for r, t in zip(regs, tmps):
                g(f"v_permlane{sw}_swap_b32 v{r}, v{t}")
            for r, t in zip(regs, tmps):
                g(f"{op} v{r}, v{r}, v{t}")

    g("s_cmp_ge_u32 s2, 256"); g("s_cbranch_scc1 L_end")
    g("s_load_dwordx16 s[4:19], s[0:1], 0")
    g("s_load_dwordx8 s[20:27], s[0:1], 64")
    if P['stamps']:
        g("s_memrealtime s[92:93]"); nst[0] = 1
        g(f"v_mov_b32 v{vST}, 0")
    g(f"""
    v_lshrrev_b32 v{T[0]}, 6, v0
    v_and_b32 v{vL}, 63, v0
    v_readfirstlane_b32 s{sW}, v{T[0]}
    s_and_b32 s{sX}, s2, 7
    s_lshr_b32 s{sI}, s2, 3
    s_lshr_b32 s{sB}, s{sI}, 4
    s_and_b32 s76, s{sI}, 15
    s_lshl_b32 s77, s{sX}, 4
    s_add_u32 s76, s76, s77
    s_lshr_b32 s{sH}, s76, 2
    s_lshl_b32 s{sC}, s{sB}, 7
    s_add_u32 s{sC}, s{sC}, s76
    v_lshrrev_b32 v{vG}, 4, v{vL}
    v_and_b32 v{vJ}, 15, v{vL}
    v_lshlrev_b32 v{T[1]}, 4, v{vL}
    s_lshl_b32 s76, s{sW}, 12
    v_add_u32 v{vK}, s76, v{T[1]}
    s_mul_i32 s{sKo}, s{sC}, {P['rot']}
    s_and_b32 s{sKo}, s{sKo}, 15
    s_lshl_b32 s{sKo}, s{sKo}, 15
    s_mov_b32 s{sVo}, s{sKo}
    s_lshl_b32 s76, s{sC}, 19
    s_mul_i32 s77, s{sB}, 1152
    v_lshlrev_b32 v{T[2]}, 2, v{vL}
    v_lshlrev_b32 v{T[3]}, 3, v{vJ}
    v_lshl_add_u32 v{T[4]}, v{vG}, 1, v{T[3]}
    s_mul_i32 s{sTo}, s{sW}, 144
    v_lshlrev_b32 v{vWQ}, 13, v{vG}
    v_lshl_add_u32 v{vWQ}, v{vJ}, 4, v{vWQ}
    s_mul_i32 s{sQo}, s{sW}, {72*8192}
    s_mov_b32 s30, 0x80000
    s_mov_b32 s31, 0x20000
    s_mov_b32 s58, 1152
    s_mov_b32 s59, 0x20000
    s_mov_b32 s39, 0x20000
    s_lshl_b32 s91, s{sH}, 8
    s_sub_u32 s38, {576*8192}, s91
    s_waitcnt lgkmcnt(0)
    s_add_u32 s56, s4, s77
    s_addc_u32 s57, s5, 0
    s_add_u32 s28, s6, s76
    s_addc_u32 s29, s7, 0
    """)
    X4 = pool.pop(0)
    XE = pool.pop(0)
    g.vm(f"buffer_load_dwordx4 {q4(X4)}, v{T[1]}, {XS}, 0 offen")
    g.vm(f"buffer_load_dword v{XE}, v{T[2]}, {XS}, 0 offen offset:1024")
    g.vm(f"buffer_load_ushort v{XE+1}, v{T[4]}, {XS}, s{sTo} offen")
    tx = g.vm(f"buffer_load_ushort v{XE+2}, v{T[4]}, {XS}, s{sTo} offen offset:128")
    g(f"s_add_u32 s36, s10, s91"); g("s_addc_u32 s37, s11, 0")

    queue = []
    items = {}
    aux = []

    def kv_item(kind, n):
        def issue():
            r = pool.pop(0)
            srd, so = (KS, sKo) if kind == 'K' else (VS, sVo)
            tok = g.vm(f"buffer_load_dwordx4 {q4(r)}, v{vK}, {srd}, s{so} offen offset:{(n&3)*1024} nt")
            if n & 3 == 3 and n != 63:
                g(f"s_add_u32 s{so}, s{so}, 0x8000"); g(f"s_and_b32 s{so}, s{so}, 0x7ffff")
            items[(kind, n)] = (tok, r)
        return (1, 1, issue)

    def wq_item(m):
        def issue():
            r = pool.pop(0)
            tok = g.vm(f"buffer_load_dwordx4 {q4(r)}, v{vWQ}, {WQ}, s{sQo} offen {P['polw']}")
            if m != 17:
                g(f"s_add_u32 s{sQo}, s{sQo}, 0x8000")
            items[('Q', m)] = (tok, r)
        return (1, 1, issue)

    WOP = {}
    def dense2_item(key, store, vaddr, srd, base, pol, lazy=False):
        def issue():
            rs = [pool.pop(0) for _ in range(4)]
            outs = [] if lazy else [pool.pop(0) for _ in range(4)]
            raw = []
            for e in range(8):
                if e % 4 == 0:
                    g(f"s_mov_b32 s{sTo}, {base + (e//4)*4608}")
                r = rs[e // 2] + 2 * (e & 1)
                raw.append(r)
                tok = g.vm(f"buffer_load_dwordx2 {q2(r)}, v{vaddr}, {srd}, s{sTo} offen offset:{(e%4)*1152} {pol}")
            def fin():
                if lazy:
                    outs.extend(pool.pop(0) for _ in range(4))
                for k in range(4):
                    for d in range(2):
                        g(f"v_perm_b32 v{outs[2*d]+k}, v{raw[2*k+1]+d}, v{raw[2*k]+d}, s{sPL}")
                        g(f"v_perm_b32 v{outs[2*d+1]+k}, v{raw[2*k+1]+d}, v{raw[2*k]+d}, s{sPH}")
                pool.extend(rs)
                store[key] = outs
            aux.append((tok, fin))
        return (8, 8, issue)

    GUP = {}
    def gu_item(s):
        def issue():
            rs = [pool.pop(0) for _ in range(2)]
            outs = [pool.pop(0) for _ in range(2)]
            raw = [rs[e // 4] + (e & 3) for e in range(8)]
            for e in range(8):
                g(f"s_add_u32 s{sTo}, s{sGo}, {(32*s+e)*9216}")
                tok = g.vm(f"buffer_load_dword v{raw[e]}, v{vGU4 if s == 4 else vGU}, {GU}, s{sTo} offen {P['polf']}")
            def fin():
                for k in range(4):
                    g(f"v_perm_b32 v{outs[0]+k}, v{raw[2*k+1]}, v{raw[2*k]}, s{sPL}")
                    g(f"v_perm_b32 v{outs[1]+k}, v{raw[2*k+1]}, v{raw[2*k]}, s{sPH}")
                pool.extend(rs)
                GUP[s] = outs
            aux.append((tok, fin))
        return (4, 8, issue)

    def fn_item(fn, nv=1):
        return (0, nv, fn)

    def pump(limit):
        while queue:
            nq, nv, issue = queue[0]
            if len(pool) < nq or g.outstanding() >= limit or g.outstanding() + nv > 60:
                break
            queue.pop(0)
            issue()

    def run_aux(force=False):
        while aux and (force or aux[0][0] < g.vm_done):
            tok, fn = aux.pop(0)
            g.wait(tok)
            fn()

    def setup2():
        g(f"""
        s_add_u32 s32, s8, s76
        s_addc_u32 s33, s9, 0
        s_mov_b32 s34, 0x80000
        s_mov_b32 s35, 0x20000
        s_mov_b32 s52, s26
        s_mov_b32 s53, s27
        s_mov_b32 s54, {WSN}
        s_mov_b32 s55, 0x20000
        s_mul_i32 s77, s{sH}, {128*1152}
        s_add_u32 s40, s12, s77
        s_addc_u32 s41, s13, 0
        s_mov_b32 s42, {128*1152}
        s_mov_b32 s43, 0x20000
        s_mul_i32 s{sF}, s{sX}, 18
        s_add_u32 s{sF}, s{sF}, s{sI}
        s_mul_i32 s{sRr}, s{sX}, 9
        s_add_u32 s{sRr}, s{sRr}, s{sI}
        s_sub_u32 s{sRr}, s{sRr}, 18
        s_mul_i32 s{sYB}, s{sC}, 2304
        s_add_u32 s{sYB}, s{sYB}, {YB}
        s_mul_i32 s{sDBo}, s{sF}, 4608
        s_add_u32 s{sDBo}, s{sDBo}, {DB}
        s_sub_u32 s76, s{sDBo}, {144*16}
        s_cmp_lt_u32 s{sI}, 18
        s_cselect_b32 s76, s76, {OOR}
        s_lshl_b32 s77, s{sC}, 6
        s_add_u32 s77, s77, {ML}
        s_sub_u32 s77, s77, {432*16}
        v_lshlrev_b32 v{T[5]}, 4, v0
        v_add_u32 v{T[6]}, s{sYB}, v{T[5]}
        v_add_u32 v{T[7]}, s76, v{T[5]}
        v_cmp_le_u32 vcc, 144, v0
        v_cndmask_b32 v{T[6]}, v{T[6]}, v{T[7]}, vcc
        v_add_u32 v{T[7]}, s77, v{T[5]}
        v_cmp_le_u32 vcc, 432, v0
        v_cndmask_b32 v{T[6]}, v{T[6]}, v{T[7]}, vcc
        v_bfrev_b32 v{T[7]}, 1
        v_cmp_le_u32 vcc, 436, v0
        v_cndmask_b32 v{T[6]}, v{T[6]}, v{T[7]}, vcc
        s_lshl_b32 s76, s{sRr}, 5
        s_add_u32 s76, s76, {HB}
        s_sub_u32 s77, s{sI}, 18
        s_cmp_lt_u32 s77, 9
        s_cselect_b32 s76, s76, {OOR}
        v_lshrrev_b32 v{T[7]}, 1, v{vL}
        v_lshlrev_b32 v{T[7]}, 12, v{T[7]}
        v_and_b32 v{T[8]}, 1, v{vL}
        v_lshl_add_u32 v{T[7]}, v{T[8]}, 4, v{T[7]}
        v_add_u32 v{T[7]}, s76, v{T[7]}
        v_subrev_u32 v{T[8]}, 448, v0
        v_cmp_gt_u32 vcc, {2*R_}, v{T[8]}
        v_cndmask_b32 v{T[6]}, v{T[6]}, v{T[7]}, vcc
        v_mov_b32 v{T[8]}, -1
        v_mov_b32 v{T[9]}, -1
        v_mov_b32 v{T[10]}, -1
        v_mov_b32 v{T[11]}, -1
        """)
        g.vm(f"buffer_store_dwordx4 {q4(T[8])}, v{T[6]}, {WS}, 0 offen sc1")
        g(f"""
        v_and_b32 v{T[5]}, 1, v{vL}
        v_lshlrev_b32 v{T[5]}, 4, v{T[5]}
        v_mov_b32 v{T[7]}, 0xffff
        v_lshlrev_b32 v{T[5]}, v{T[5]}, v{T[7]}
        v_bfe_u32 v{T[7]}, v{vL}, 1, 2
        """)
        for r in range(4):
            g(f"v_cmp_eq_u32 vcc, {r}, v{T[7]}")
            g(f"v_cndmask_b32 v{vM+r}, 0, v{T[5]}, vcc")
        g(f"""
        s_mov_b32 s{sONE}, 0x3f803f80
        s_mov_b32 s{sPL}, 0x05040100
        s_mov_b32 s{sPH}, 0x07060302
        s_mov_b32 s80, 0x22222222
        s_mov_b32 s81, 0x22222222
        s_mov_b32 s82, 0x44444444
        s_mov_b32 s83, 0x44444444
        s_mov_b32 s84, 0x88888888
        s_mov_b32 s85, 0x88888888
        v_mov_b32 v{vZ}, 0
        v_mul_u32_u24 v{vWO}, 9216, v{vG}
        v_lshl_add_u32 v{vWO}, v{vJ}, 3, v{vWO}
        s_mul_i32 s76, s{sW}, 36864
        s_add_u32 s76, s76, 1024
        v_add_u32 v{vWO9}, s76, v{vWO}
        s_lshl_b32 s76, s{sW}, 7
        v_add_u32 v{vWO}, s76, v{vWO}
        """)

    def warm():
        r = pool.pop(0)
        g("s_getpc_b64 s[76:77]")
        g(f"v_lshlrev_b32 v{r}, 6, v0")
        g(f"v_min_u32 v{r}, L_end-L_warm-64, v{r}")
        g.label("L_warm")
        tok = g.vm(f"global_load_dword v{r+1}, v{r}, s[76:77]")
        aux.append((tok, lambda: pool.append(r)))

    qi = 0
    for n in range(64):
        if n == P['cnt_at']:
            queue.append(fn_item(lambda: items.__setitem__('cnt', g.vm(f"global_load_dword v{vCNT}, v{vZ}, s[24:25] sc1"))))
        queue.append(kv_item('K', n))
        if n & 3 == 3 and qi < 18:
            for _ in range(4):
                if qi < 18:
                    queue.append(wq_item(qi)); qi += 1
            if n == 3:
                queue.append(fn_item(setup2))
                if P['warm']:
                    queue.append((1, 1, warm))
    published = [False]
    def barrier_x():
        assert published[0]
        stamp(4)
        g.wait(items['cnt'])
        g(f"v_readfirstlane_b32 s76, v{vCNT}")
        g("s_cmp_eq_u32 s76, 256"); g("s_cbranch_scc1 L_cnt_ok")
        g(f"s_mov_b32 s{sCNT}, 0")
        g.label("L_cnt_spin")
        g("s_sleep 8")
        g.emit(f"global_load_dword v{vCNT}, v{vZ}, s[24:25] sc1"); g.vm_issued -= 1
        g("s_waitcnt vmcnt(0)")
        g(f"v_readfirstlane_b32 s76, v{vCNT}")
        g(f"s_add_u32 s{sCNT}, s{sCNT}, 1")
        g(f"s_cmp_ge_u32 s{sCNT}, {P['LIMIT']}"); g("s_cbranch_scc1 L_cnt_ok")
        g("s_cmp_eq_u32 s76, 256"); g("s_cbranch_scc0 L_cnt_spin")
        g.label("L_cnt_ok")
        g("s_barrier")
        g(f"s_lshr_b32 s76, s{sC}, 2"); g("s_lshl_b32 s76, s76, 8")
        g(f"v_and_b32 v{vCNT}, 31, v{vL}"); g(f"v_lshlrev_b32 v{vCNT}, 3, v{vCNT}")
        g(f"v_add_u32 v{vCNT}, s76, v{vCNT}")
        tok = g.vm(f"buffer_load_dwordx2 {q2(vML)}, v{vCNT}, {WS}, 0 offen offset:{ML} sc1")
        def fin():
            g(f"s_mov_b32 s{sCNT}, 0")
            g.label("L_ml_chk")
            g(f"v_max_u32 v{T[0]}, v{vML}, v{vML+1}")
            g(f"v_cmp_eq_u32 vcc, -1, v{T[0]}")
            g("s_cbranch_vccz L_ml_ok")
            g("s_sleep 8")
            g.emit(f"buffer_load_dwordx2 {q2(vML)}, v{vCNT}, {WS}, 0 offen offset:{ML} sc1"); g.vm_issued -= 1
            g("s_waitcnt vmcnt(0)")
            g(f"s_add_u32 s{sCNT}, s{sCNT}, 1")
            g(f"s_cmp_lt_u32 s{sCNT}, {P['LIMIT']}"); g("s_cbranch_scc1 L_ml_chk")
            g.label("L_ml_ok")
            g(f"v_mov_b32 v{T[0]}, v{vML}")
            allred("v_max_f32", [T[0]], [T[1]], rows=2)
            g(f"v_sub_f32 v{T[2]}, v{vML}, v{T[0]}")
            g(f"v_exp_f32 v{T[2]}, v{T[2]}")
            g(f"v_sub_f32 v{T[3]}, v{vMW}, v{T[0]}")
            g(f"v_mul_f32 v{T[2]}, v{T[2]}, v{vML+1}")
            g(f"v_exp_f32 v{T[3]}, v{T[3]}")
            allred("v_add_f32", [T[2]], [T[1]], rows=2)
            g(f"v_rcp_f32 v{T[2]}, v{T[2]}")
            g(f"v_mul_f32 v{vFAC}, v{T[2]}, v{T[3]}")
        aux.append((tok, fin))

    def setup_ffn():
        g(f"""
        s_cmp_lt_u32 s{sW}, 4
        s_cselect_b32 s44, s16, s18
        s_cselect_b32 s45, s17, s19
        s_cmp_lt_u32 s{sI}, 18
        s_cselect_b32 s76, s{sF}, 0
        s_lshl_b32 s77, s76, 6
        s_add_u32 s44, s44, s77
        s_addc_u32 s45, s45, 0
        s_sub_u32 s46, {576*9216}, s77
        s_mul_i32 s77, s76, {32*1152}
        s_add_u32 s48, s20, s77
        s_addc_u32 s49, s21, 0
        s_cmp_lt_u32 s{sI}, 18
        s_cselect_b32 s46, s46, 0
        s_cselect_b32 s50, {32*1152}, 0
        s_mov_b32 s47, 0x20000
        s_mov_b32 s51, 0x20000
        s_and_b32 s{sGo}, s{sW}, 3
        s_mul_i32 s{sGo}, s{sGo}, {144*9216}
        v_mul_u32_u24 v{vGU}, {8*9216}, v{vG}
        v_lshl_add_u32 v{vGU}, v{vJ}, 2, v{vGU}
        v_bfrev_b32 v{vGU4}, 1
        v_cmp_gt_u32 vcc, 32, v{vL}
        v_cndmask_b32 v{vGU4}, v{vGU4}, v{vGU}, vcc
        """)

    wo_list = [dense2_item(s, WOP, vWO, WO, s * 36864, P['polw']) for s in range(4)] + [dense2_item(9, WOP, vWO9, WO, 0, P['polw'])]
    for n in range(64):
        if n == P['XB']:
            queue.append(fn_item(barrier_x))
        queue.append(kv_item('V', n))
    def insert_after_main(idx, item):
        cnt = -1
        for pos, it in enumerate(queue):
            if it[2].__qualname__.endswith('kv_item.<locals>.issue'):
                cnt += 1
                if cnt == idx:
                    queue.insert(pos + 1, item)
                    return
        raise Exception
    for k, it in enumerate(wo_list):
        insert_after_main(P['wo_start'] + k * P['wo_every'] - 1, it)
    queue.append(fn_item(setup_ffn, 0))
    gu_steps = list(range(5))
    for _ in range(P['nA1'] // 8):
        queue.append(gu_item(gu_steps.pop(0)))

    pump(4 + P['L1'])
    g.wait(tx)
    a, b_, t1, t2 = T[12], T[13], T[14], T[15]
    xs = [X4, X4 + 1, X4 + 2, X4 + 3, XE]
    for k, r in enumerate(xs):
        g(f"v_dot2_f32_bf16 v{a}, v{r}, s{sONE}, {'0' if k == 0 else 'v%d' % a}")
        g(f"v_dot2_f32_bf16 v{b_}, v{r}, v{r}, {'0' if k == 0 else 'v%d' % b_}")
    allred("v_add_f32", [a, b_], [t1, t2])
    def ln_scalars(sm, sq, t):
        g(f"v_mul_f32 v{sm}, {1.0/576!r}, v{sm}")
        g(f"v_mul_f32 v{t}, v{sm}, v{sm}")
        g(f"v_fma_f32 v{sq}, v{sq}, s91, -v{t}")
        g(f"v_max_f32 v{sq}, 0, v{sq}")
        bf16r(sq, sq)
        bf16r(sm, sm)
        g(f"v_add_f32 v{sq}, 0x3727c5ac, v{sq}")
        bf16r(sq, sq)
        g(f"v_sqrt_f32 v{sq}, v{sq}")
        bf16r(sq, sq)
        g(f"v_rcp_f32 v{sq}, v{sq}")
    import struct
    inv576 = struct.unpack('<I', struct.pack('<f', 1.0 / 576))[0]
    g(f"s_mov_b32 s91, {inv576:#x}")
    ln_scalars(a, b_, t1)
    for k in (1, 2):
        g(f"v_lshlrev_b32 v{XE+k}, 16, v{XE+k}")
        g(f"v_sub_f32 v{XE+k}, v{XE+k}, v{a}")
        bf16r(XE + k, XE + k)
        g(f"v_mul_f32 v{XE+k}, v{XE+k}, v{b_}")
        g(f"v_cvt_pk_bf16_f32 v{XE+k}, v{XE+k}, v{XE+k}")
    pool.append(X4)
    stamp(1)
    for m in range(18):
        pump(P['L1'])
        A = vA0 if m & 1 == 0 else vA1
        for r in range(4):
            g(f"v_and_b32_dpp v{A+r}, v{XE+1+(m>>4)}, v{vM+r} row_newbcast:{m&15} row_mask:0xf bank_mask:0xf")
        tok, r = items[('Q', m)]
        g.wait(tok)
        g(f"v_mfma_f32_16x16x32_bf16 {q4(vACC)}, {q4(A)}, {q4(r)}, {'0' if m == 0 else q4(vACC)}")
        pool.append(r)
        run_aux()
    pool.append(XE)
    pump(P['L1b'])
    g(f"""
    v_lshlrev_b32 v{T[0]}, 5, v{vJ}
    v_lshl_add_u32 v{T[0]}, v{vG}, 4, v{T[0]}
    s_lshl_b32 s76, s{sW}, 9
    v_add_u32 v{T[0]}, s76, v{T[0]}
    s_mov_b32 exec_hi, 0
    ds_write_b128 v{T[0]}, {q4(vACC)} offset:{QP}
    s_mov_b32 exec_hi, -1
    v_lshlrev_b32 v{T[1]}, 3, v{vL}
    v_lshlrev_b32 v{T[2]}, 2, v{vL}
    v_lshlrev_b32 v{T[3]}, 4, v{vJ}
    s_waitcnt lgkmcnt(0)
    s_barrier
    """)
    tq = [vA0, vA1, vACC, vS]
    for k in range(4):
        g(f"ds_read2st64_b64 {q4(tq[k])}, v{T[1]} offset0:{2*k} offset1:{2*k+1}")
    g(f"s_cmp_eq_u32 s{sW}, 0"); g("s_cbranch_scc0 L_noadd")
    g(f"v_mov_b32 v{T[4]}, 1"); g("s_mov_b64 exec, 1")
    g.emit(f"global_atomic_add v{vZ}, v{T[4]}, s[24:25] sc1"); g.vm_issued -= 1
    g("s_mov_b64 exec, -1")
    g.label("L_noadd")
    g.lgk(0)
    for k in range(4):
        g(f"v_pk_add_f32 {q2(tq[k])}, {q2(tq[k])}, {q2(tq[k]+2)}")
    g(f"v_pk_add_f32 {q2(tq[0])}, {q2(tq[0])}, {q2(tq[1])}")
    g(f"v_pk_add_f32 {q2(tq[2])}, {q2(tq[2])}, {q2(tq[3])}")
    g(f"v_pk_add_f32 {q2(tq[0])}, {q2(tq[0])}, {q2(tq[2])}")
    g(f"v_cvt_pk_bf16_f32 v{tq[0]}, v{tq[0]}, v{tq[0]+1}")
    g(f"ds_write_b32 v{T[2]}, v{tq[0]} offset:{QS}")
    g.lgk(0)
    g(f"ds_read_b128 {q4(vQ)}, v{T[3]} offset:{QS}")
    g.lgk(0)
    stamp(2)

    for gk in range(16):
        pump(P['D'])
        rs = [items[('K', 4 * gk + u)] for u in range(4)]
        g.wait(rs[3][0])
        t = T[0:4]
        for k in range(4):
            for u in range(4):
                g(f"v_dot2_f32_bf16 v{t[u]}, v{rs[u][1]+k}, v{vQ+k}, {'0' if k == 0 else 'v%d' % t[u]}")
        for u in range(4):
            pool.append(rs[u][1])
        pump(P['D'])
        a, b2, c = T[4], T[5], T[6]
        g(f"v_add_f32_dpp v{a}, v{t[0]}, v{t[0]} row_ror:8 row_mask:0xf bank_mask:0x3")
        g(f"v_add_f32_dpp v{b2}, v{t[2]}, v{t[2]} row_ror:8 row_mask:0xf bank_mask:0x3")
        g(f"v_add_f32_dpp v{a}, v{t[1]}, v{t[1]} row_ror:8 row_mask:0xf bank_mask:0xc")
        g(f"v_add_f32_dpp v{b2}, v{t[3]}, v{t[3]} row_ror:8 row_mask:0xf bank_mask:0xc")
        g(f"v_add_f32_dpp v{c}, v{a}, v{a} row_half_mirror row_mask:0xf bank_mask:0x5")
        g(f"v_add_f32_dpp v{c}, v{b2}, v{b2} row_half_mirror row_mask:0xf bank_mask:0xa")
        g(f"v_add_f32_dpp v{c}, v{c}, v{c} quad_perm:[1,0,3,2] row_mask:0xf bank_mask:0xf")
        lam = gk & 3
        S = vS + (gk >> 2)
        if lam == 0:
            g(f"v_add_f32_dpp v{S}, v{c}, v{c} quad_perm:[2,3,0,1] row_mask:0xf bank_mask:0xf")
        else:
            g(f"v_add_f32_dpp v{c}, v{c}, v{c} quad_perm:[2,3,0,1] row_mask:0xf bank_mask:0xf")
            g(f"v_cndmask_b32 v{S}, v{S}, v{c}, {sMK[lam]}")
        run_aux()
    stamp(3)
    for r in range(4): g(f"v_cvt_pk_bf16_f32 v{vS+r}, v{vS+r}, v{vS+r}")
    for r in range(4): g(f"v_and_b32 v{vS+r}, 0xffff0000, v{vS+r}")
    for r in range(4): g(f"v_mul_f32 v{vS+r}, 0x3db504f3, v{vS+r}")
    for r in range(4): g(f"v_cvt_pk_bf16_f32 v{vS+r}, v{vS+r}, v{vS+r}")
    for r in range(4): g(f"v_and_b32 v{vS+r}, 0xffff0000, v{vS+r}")
    g(f"v_max3_f32 v{vMW}, v{vS}, v{vS+1}, v{vS+2}")
    g(f"v_max_f32 v{vMW}, v{vMW}, v{vS+3}")
    allred("v_max_f32", [vMW], [T[0]])
    for r in range(4): g(f"v_sub_f32 v{vS+r}, v{vS+r}, v{vMW}")
    for r in range(4): g(f"v_mul_f32 v{vS+r}, 0x3fb8aa3b, v{vS+r}")
    for r in range(4): g(f"v_exp_f32 v{vS+r}, v{vS+r}")
    g(f"v_mul_f32 v{vMW}, 0x3fb8aa3b, v{vMW}")
    g(f"v_add_f32 v{vMW+1}, v{vS}, v{vS+1}")
    g(f"v_add_f32 v{T[1]}, v{vS+2}, v{vS+3}")
    g(f"v_add_f32 v{vMW+1}, v{vMW+1}, v{T[1]}")
    for r in range(4): g(f"v_cvt_pk_bf16_f32 v{vS+r}, v{vS+r}, v{vS+r}")
    allred("v_add_f32", [vMW + 1], [T[0]])
    g(f"s_lshl_b32 s76, s{sC}, 3"); g(f"s_add_u32 s76, s76, s{sW}"); g("s_lshl_b32 s76, s76, 3")
    g("s_mov_b64 exec, 1")
    g.vm(f"buffer_store_dwordx2 {q2(vMW)}, v{vZ}, {WS}, s76 offen offset:{ML} sc1")
    g("s_mov_b64 exec, -1")
    published[0] = True

    beta = {0: 0, 1: 2, 2: 1, 3: 3}
    for n in range(64):
        pump(P['D'])
        A = vA0 if n & 1 == 0 else vA1
        j = 4 * beta[n & 3] + ((n >> 2) & 3)
        for r in range(4):
            g(f"v_and_b32_dpp v{A+r}, v{vS+(n>>4)}, v{vM+r} row_newbcast:{j} row_mask:0xf bank_mask:0xf")
        if n == 62:
            g(f"""
            v_and_b32 v{T[8]}, 1, v{vG}
            v_lshlrev_b32 v{T[8]}, 3, v{T[8]}
            v_lshl_add_u32 v{T[8]}, v{vJ}, 4, v{T[8]}
            s_mul_i32 s76, s{sW}, 320
            v_add_u32 v{T[8]}, s76, v{T[8]}
            v_and_b32 v{T[9]}, 7, v{vL}
            v_mul_u32_u24 v{T[9]}, 320, v{T[9]}
            v_lshl_add_u32 v{T[9]}, v{vG}, 4, v{T[9]}
            s_lshl_b32 s76, s{sW}, 6
            v_add_u32 v{T[10]}, s76, v{T[9]}
            v_lshlrev_b32 v{T[11]}, 4, v{vJ}
            s_lshl_b32 s76, s{sW}, 8
            v_add_u32 v{T[12]}, s76, v{T[11]}
            v_lshlrev_b32 v{T[13]}, 4, v{vL}
            s_lshl_b32 s76, s{sW}, 9
            v_add_u32 v{T[13]}, s76, v{T[13]}
            """)
        tok, r = items[('V', n)]
        g.wait(tok)
        g(f"v_mfma_f32_16x16x32_bf16 {q4(vACC)}, {q4(A)}, {q4(r)}, {'0' if n == 0 else q4(vACC)}")
        pool.append(r)
        if n < 63:
            run_aux()
    assert not queue
    assert len(WOP) == 5
    stamp(5)
    for r in range(4): g(f"v_mul_f32 v{vACC+r}, v{vACC+r}, v{vFAC}")
    g(f"v_cvt_pk_bf16_f32 v{vACC}, v{vACC}, v{vACC+1}")
    g(f"v_cvt_pk_bf16_f32 v{vACC+1}, v{vACC+2}, v{vACC+3}")
    g("s_mov_b32 exec_hi, 0")
    g(f"ds_write_b64 v{T[8]}, {q2(vACC)} offset:{OB}")
    g("s_mov_b32 exec_hi, -1")
    g.lgk(0)
    g("s_barrier")
    AO = [pool.pop(0) for _ in range(5)]
    DD = [pool.pop(0) for _ in range(4)]
    NN = [pool.pop(0) for _ in range(4)]
    Yq = pool.pop(0); Zq = pool.pop(0)
    NR = [pool.pop(0) for _ in range(4)] + [vA0, vA1, vQ, vS]
    def main_mfma(lo, hi):
        for k in range(lo, hi):
            s, c = k // 4, k % 4
            g(f"v_mfma_f32_16x16x32_bf16 {q4(DD[c])}, {q4(AO[s])}, {q4(WOP[s][c])}, {'0' if s == 0 else q4(DD[c])}")
    def post_main():
        for c in range(4): g(f"v_pk_add_f32 {q2(DD[c])}, {q2(DD[c])}, {q2(DD[c]+2)}")
        for c in range(4): g(f"v_add_f32 v{Yq+c}, v{DD[c]}, v{DD[c]+1}")
        g(f"v_permlane16_swap_b32 v{Yq}, v{Yq+1}")
        g(f"v_permlane16_swap_b32 v{Yq+2}, v{Yq+3}")
        g(f"v_add_f32 v{Zq}, v{Yq}, v{Yq+1}"); g(f"v_add_f32 v{Zq+1}, v{Yq}, v{Yq+1}")
        g(f"v_add_f32 v{Zq+2}, v{Yq+2}, v{Yq+3}"); g(f"v_add_f32 v{Zq+3}, v{Yq+2}, v{Yq+3}")
        g(f"v_permlane16_swap_b32 v{Zq}, v{Zq+1}")
        g(f"v_permlane16_swap_b32 v{Zq+2}, v{Zq+3}")
        g("s_mov_b64 exec, 0xffff")
        g.emit(f"buffer_store_dwordx4 {q4(Zq)}, v{T[12]}, {WS}, s{sYB} offen sc1"); g.vm_issued -= 1
        g("s_mov_b64 exec, -1")
    g(f"s_cmp_ge_u32 s{sW}, 4"); g("s_cbranch_scc1 L_wo_hi")
    g(f"ds_read_b128 {q4(AO[4])}, v{T[10]} offset:{OB}")
    for s in range(4):
        g(f"ds_read_b128 {q4(AO[s])}, v{T[9]} offset:{OB+64*s}")
    g.lgk(4)
    for c in range(4):
        g(f"v_mfma_f32_16x16x32_bf16 {q4(NN[c])}, {q4(AO[4])}, {q4(WOP[9][c])}, 0")
    g.lgk(0)
    main_mfma(0, 6)
    for c in range(4): g(f"v_pk_add_f32 {q2(NN[c])}, {q2(NN[c])}, {q2(NN[c]+2)}")
    main_mfma(6, 7)
    for c in range(4): g(f"v_add_f32 v{Yq+c}, v{NN[c]}, v{NN[c]+1}")
    g("s_mov_b32 exec_hi, 0")
    g(f"ds_write_b128 v{T[13]}, {q4(Yq)} offset:{N9}")
    g("s_mov_b32 exec_hi, -1")
    main_mfma(7, 10)
    g.lgk(0)
    g("s_barrier")
    for p in range(8):
        g(f"ds_read_b128 {q4(NR[p])}, v{T[11]} offset:{N9+256*p}")
    main_mfma(10, 16)
    post_main()
    g(f"s_cmp_eq_u32 s{sW}, 3"); g("s_cbranch_scc0 L_wo_done")
    g.lgk(0)
    st = 1
    while st < 8:
        for p in range(0, 8, 2 * st):
            g(f"v_pk_add_f32 {q2(NR[p])}, {q2(NR[p])}, {q2(NR[p+st])}")
            g(f"v_pk_add_f32 {q2(NR[p]+2)}, {q2(NR[p]+2)}, {q2(NR[p+st]+2)}")
        st *= 2
    g("s_mov_b64 exec, 0xffff")
    g.emit(f"buffer_store_dwordx4 {q4(NR[0])}, v{T[11]}, {WS}, s{sYB} offen offset:2048 sc1"); g.vm_issued -= 1
    g("s_mov_b64 exec, -1")
    g("s_branch L_wo_done")
    g.label("L_wo_hi")
    for s in range(4):
        g(f"ds_read_b128 {q4(AO[s])}, v{T[9]} offset:{OB+64*s}")
    g("s_barrier")
    g.lgk(0)
    main_mfma(0, 16)
    post_main()
    g.flush()
    g.label("L_wo_done")
    g.lgk(0)
    stamp(6)
    for k in WOP: pool.extend(WOP[k])
    pool.extend(AO + DD + NN + NR[1:4])
    g(f"s_cmp_lt_u32 s{sI}, 18"); g("s_cbranch_scc1 L_ffn")
    g(f"s_cmp_lt_u32 s{sI}, 27"); g("s_cbranch_scc0 L_fin")
    save_pool = list(pool); save_vm = (g.vm_issued, g.vm_done); save_nst = nst[0]

    g(f"s_cmp_ge_u32 s{sW}, {P['NP']}"); g("s_cbranch_scc1 L_fin")
    g(f"""
    s_cmp_ge_u32 s{sRr}, 36
    s_cselect_b32 s76, 1, 0
    s_mul_i32 s77, s76, 36
    s_sub_u32 s77, s{sRr}, s77
    s_mov_b32 s56, s4
    s_mov_b32 s57, s5
    s_mov_b32 s58, 2304
    s_mov_b32 s59, 0x20000
    s_mov_b32 s60, s22
    s_mov_b32 s61, s23
    s_mov_b32 s62, 2304
    s_mov_b32 s63, 0x20000
    v_and_b32 v{T[0]}, 3, v{vL}
    v_lshrrev_b32 v{T[1]}, 2, v{vL}
    v_lshlrev_b32 v{T[2]}, 3, v{T[0]}
    v_lshl_add_u32 v{T[3]}, v{vG}, 1, v{T[2]}
    s_lshl_b32 s{sTo}, s{sRr}, 5
    s_lshl_b32 s77, s77, 6
    s_mul_i32 s70, s76, {128*2304}
    s_add_u32 s70, s70, s77
    s_add_u32 s70, s70, {YB}
    s_mul_i32 s71, s76, 2304
    s_add_u32 s71, s71, s77
    s_add_u32 s71, s71, {DB}
    v_lshlrev_b32 v{T[4]}, 4, v{T[0]}
    v_mad_u32_u24 v{T[5]}, v{T[1]}, s58, v{T[4]}
    v_lshl_add_u32 v{T[6]}, v{T[5]}, 1, 0
    v_sub_u32 v{T[6]}, v{T[6]}, v{T[4]}
    v_lshl_add_u32 v{T[7]}, v{T[1]}, 12, v{T[2]}
    v_bfrev_b32 v{T[8]}, 1
    v_cmp_gt_u32 vcc, {R_}, v{T[1]}
    v_cndmask_b32 v{T[7]}, v{T[8]}, v{T[7]}, vcc
    s_add_u32 s72, s{sTo}, {HB}
    """)
    g(f"buffer_load_ushort v{T[9]}, v{T[3]}, {XS}, s{sTo} offen")
    YR = [pool.pop(0) for _ in range(9)]
    def reduce_poll(name, nl, vaddr, sbase, stride, res):
        g(f"s_mov_b32 s{sCNT}, 0")
        g.label(name)
        g(f"s_mov_b32 s76, s{sbase}")
        for n in range(nl):
            g(f"buffer_load_dwordx4 {q4(YR[n])}, v{vaddr}, {WS}, s76 offen sc1")
            if n < nl - 1:
                g(f"s_add_u32 s76, s76, {stride}")
        for n in range(1, nl):
            g(f"s_waitcnt vmcnt({nl-1-n})")
            d = YR[0] if n % 2 == 0 or n == 1 else YR[1]
            if n == 1:
                continue
            g(f"v_pk_add_f32 {q2(d)}, {q2(d)}, {q2(YR[n])}")
            g(f"v_pk_add_f32 {q2(d+2)}, {q2(d+2)}, {q2(YR[n]+2)}")
        g(f"v_pk_add_f32 {q2(YR[0])}, {q2(YR[0])}, {q2(YR[1])}")
        g(f"v_pk_add_f32 {q2(YR[0]+2)}, {q2(YR[0]+2)}, {q2(YR[1]+2)}")
        y = YR[0]
        g(f"v_permlane16_swap_b32 v{y}, v{y+1}")
        g(f"v_permlane16_swap_b32 v{y+2}, v{y+3}")
        g(f"v_add_f32 v{y}, v{y}, v{y+1}")
        g(f"v_add_f32 v{y+2}, v{y+2}, v{y+3}")
        g(f"v_permlane32_swap_b32 v{y}, v{y+2}")
        g(f"v_add_f32 v{y}, v{y}, v{y+2}")
        g(f"v_add_f32_dpp v{y}, v{y}, v{y} row_ror:4 row_mask:0xf bank_mask:0xf")
        g(f"v_add_f32_dpp v{res}, v{y}, v{y} row_ror:8 row_mask:0xf bank_mask:0xf")
        g(f"s_add_u32 s{sCNT}, s{sCNT}, 1")
        g(f"v_cmp_u_f32 vcc, v{res}, v{res}")
        g(f"s_cbranch_vccz {name}_ok")
        g(f"s_cmp_lt_u32 s{sCNT}, {P['LIMIT']}"); g(f"s_cbranch_scc1 {name}")
        g.label(name + "_ok")
    reduce_poll("L_r1", 8, T[5], 70, 16 * 2304, T[10])
    stamp(7)
    bf16r(T[10], T[10])
    g(f"v_lshlrev_b32 v{T[9]}, 16, v{T[9]}")
    g(f"v_add_f32 v{T[10]}, v{T[10]}, v{T[9]}")
    g(f"v_cvt_pk_bf16_f32 v{T[12]}, v{T[10]}, v{T[10]}")
    g(f"v_cvt_pk_bf16_f32 v{T[13]}, v{T[10]}, v{T[10]}")
    g(f"v_and_b32 v{T[10]}, 0xffff0000, v{T[12]}")
    g(f"v_permlane16_swap_b32 v{T[12]}, v{T[13]}")
    g(f"v_perm_b32 v{T[14]}, v{T[13]}, v{T[12]}, s{sPL}")
    g(f"v_perm_b32 v{T[15]}, v{T[13]}, v{T[12]}, s{sPL}")
    g(f"v_permlane32_swap_b32 v{T[14]}, v{T[15]}")
    g(f"buffer_store_dwordx2 {q2(T[14])}, v{T[7]}, {WS}, s72 offen sc1")
    stamp(8)
    reduce_poll("L_r2", 9, T[6], 71, 16 * 4608, T[11])
    stamp(9)
    bf16r(T[11], T[11])
    g(f"v_add_f32 v{T[11]}, v{T[11]}, v{T[10]}")
    g(f"v_cvt_pk_bf16_f32 v{T[11]}, v{T[11]}, v{T[11]}")
    g("s_mov_b32 exec_lo, 0x000f000f"); g("s_mov_b32 exec_hi, 0x000f000f")
    g(f"buffer_store_short v{T[11]}, v{T[3]}, {OUT}, s{sTo} offen")
    g("s_mov_b64 exec, -1")
    if P['stamps']:
        g("s_waitcnt vmcnt(0)")
        stamp_end(10)
    g("s_endpgm")

    g.label("L_ffn")
    pool[:] = save_pool; g.vm_issued, g.vm_done = save_vm; nst[0] = save_nst
    DNP = {}
    for s in gu_steps:
        gu_item(s)[2]()
    vD1 = T[0]
    g(f"v_add_u32 v{vD1}, 512, v{vWO}")
    g(f"s_cmp_lt_u32 s{sW}, 4"); g("s_cselect_b32 s50, s50, 0")
    dense2_item(0, DNP, vWO, WD, 0, P['pold'], True)[2]()
    dense2_item(1, DNP, vD1, WD, 0, P['pold'], True)[2]()
    vH, vE, vSTa, vRd, vRs, vAW = T[1], T[2], T[3], T[4], T[5], T[6]
    vAC = [T[7], T[8], T[9], T[10]]
    vDS = T[11]
    g(f"""
    v_and_b32 v{T[12]}, 1, v{vJ}
    v_mul_u32_u24 v{vH}, 1152, v{T[12]}
    v_lshrrev_b32 v{T[13]}, 1, v{vJ}
    v_lshl_add_u32 v{vH}, v{T[13]}, 6, v{vH}
    v_lshl_add_u32 v{vH}, v{vG}, 4, v{vH}
    v_lshl_add_u32 v{T[13]}, v{T[13]}, 2, v{vG}
    v_bfrev_b32 v{T[14]}, 1
    v_cmp_gt_u32 vcc, 18, v{T[13]}
    v_cndmask_b32 v{vH}, v{T[14]}, v{vH}, vcc
    s_and_b32 s76, s{sW}, 3
    s_mul_i32 s70, s76, 288
    s_and_b32 s77, s{sX}, {R_-1}
    s_lshl_b32 s77, s77, 12
    s_add_u32 s70, s70, s77
    s_add_u32 s70, s70, {HB}
    s_lshr_b32 s77, s{sW}, 2
    s_lshl_b32 s77, s77, 11
    s_lshl_b32 s76, s76, 2
    s_add_u32 s77, s77, s76
    v_lshlrev_b32 v{vE}, 10, v{vG}
    v_lshl_add_u32 v{vE}, v{vJ}, 5, v{vE}
    v_add_u32 v{vE}, s77, v{vE}
    v_add_u32 v{vE}, {GUL}, v{vE}
    v_lshlrev_b32 v{vSTa}, 4, v{vL}
    v_add_u32 v{vSTa}, s76, v{vSTa}
    v_add_u32 v{vSTa}, {STB}, v{vSTa}
    v_lshlrev_b32 v{vRd}, 4, v{vL}
    v_and_b32 v{vAW}, 31, v{vL}
    v_lshlrev_b32 v{vAW}, 4, v{vAW}
    v_lshrrev_b32 v{T[12]}, 5, v{vL}
    v_lshlrev_b32 v{vRs}, 4, v{T[12]}
    v_mul_u32_u24 v{T[15]}, 528, v{T[12]}
    v_lshrrev_b32 v{T[12]}, 2, v{vJ}
    v_lshlrev_b32 v{T[12]}, 6, v{T[12]}
    v_lshl_add_u32 v{T[12]}, v{vG}, 4, v{T[12]}
    v_mov_b32 v{T[13]}, 128
    v_mul_u32_u24 v{vDS}, 2304, v{vG}
    v_lshl_add_u32 v{vDS}, v{vJ}, 4, v{vDS}
    s_lshl_b32 s76, s{sW}, 8
    s_add_u32 s71, s{sDBo}, s76
    v_mov_b32 v{vA0}, 0
    v_mov_b32 v{vA0+1}, 0
    v_mov_b32 v{vA0+2}, 0
    v_mov_b32 v{vA0+3}, 0
    v_lshlrev_b32 v{vK}, 1, v{vL}
    """)
    g(f"ds_write_b128 v{vZ}, {q4(vA0)} offset:{ACT+128}")
    for c in range(4):
        g(f"v_and_b32 v{T[14]}, 11, v{vJ}")
        g(f"v_cmp_eq_u32 vcc, {c}, v{T[14]}")
        g(f"v_cndmask_b32 v{vAC[c]}, v{T[13]}, v{T[12]}, vcc")
    vSQ = T[15]
    dense2_item(2, DNP, vWO9, WD, 0, P['pold'], True)[2]()
    AS = [pool.pop(0) for _ in range(5)]
    for s in range(5):
        for r in range(4):
            g(f"v_mov_b32 v{AS[s]+r}, s{sONE}")
    G = P['G']
    HR = [pool.pop(0) for _ in range(G)]
    ht = [g.vm(f"buffer_load_dwordx4 {q4(HR[k])}, v{vH}, {WS}, s70 offen sc1") for k in range(G)]
    run_aux(True)
    stamp(7)
    g(f"s_mov_b32 s{sCNT}, 0")
    g.label("L_hp")
    for k in range(G):
        g(f"s_waitcnt vmcnt({G-1})")
        g(f"v_max3_u32 v{T[12]}, v{HR[k]}, v{HR[k]+1}, v{HR[k]+2}")
        g(f"v_max_u32 v{T[12]}, v{T[12]}, v{HR[k]+3}")
        g(f"v_cmp_eq_u32 vcc, -1, v{T[12]}")
        g(f"s_cbranch_vccz L_hp_ok{k}")
        g(f"buffer_load_dwordx4 {q4(HR[k])}, v{vH}, {WS}, s70 offen sc1")
        if P['psleep'] and G > 1:
            g(f"s_sleep {P['psleep']}")
    g(f"s_add_u32 s{sCNT}, s{sCNT}, 1")
    g(f"s_cmp_lt_u32 s{sCNT}, {P['LIMIT']}"); g("s_cbranch_scc1 L_hp")
    g("s_waitcnt vmcnt(0)")
    H = vA1
    for k in range(G):
        g.label(f"L_hp_ok{k}")
        for r in range(4):
            g(f"v_mov_b32 v{H+r}, v{HR[k]+r}")
        if k < G - 1:
            g("s_branch L_hp_go")
    g.flush()
    g.label("L_hp_go")
    stamp(8)
    E0, E1, STq = pool.pop(0), pool.pop(0), pool.pop(0)
    def amov(s):
        for r in range(4):
            ctl = "quad_perm:[0,1,2,3]" if s == 0 else f"row_shl:{2*s}"
            g(f"v_mov_b32_dpp v{AS[s]+r}, v{H+r} {ctl} row_mask:0xf bank_mask:0x1")
    def gu_mfma(stats):
        amov(0)
        amov(1)
        for s in range(5):
            g(f"v_mfma_f32_16x16x32_bf16 {q4(E0)}, {q4(AS[s])}, {q4(GUP[s][0])}, {'0' if s == 0 else q4(E0)}")
            if s + 2 < 5: amov(s + 2)
            g(f"v_mfma_f32_16x16x32_bf16 {q4(E1)}, {q4(AS[s])}, {q4(GUP[s][1])}, {'0' if s == 0 else q4(E1)}")
            if stats:
                g(f"v_mfma_f32_16x16x32_bf16 {q4(STq)}, {q4(AS[s])}, {q4(AS[s])}, {'0' if s == 0 else q4(STq)}")
        g("s_mov_b32 exec_hi, 0")
        g(f"ds_write2_b32 v{vE}, v{E0}, v{E0+1} offset0:0 offset1:128")
        g(f"ds_write2_b32 v{vE}, v{E1}, v{E1+1} offset0:4 offset1:132")
        if stats:
            g(f"ds_write2_b32 v{vSTa}, v{STq}, v{STq+1} offset0:0 offset1:128")
        g("s_mov_b32 exec_hi, -1")
        g.lgk(0)
        g("s_barrier")
    g(f"s_cmp_lt_u32 s{sW}, 4"); g("s_cbranch_scc1 L_gate")
    gu_mfma(False)
    g("s_branch L_fin")
    g.label("L_gate")
    gu_mfma(True)
    stamp(9)
    G4, U4, CG, CU, SQ, SM = [pool.pop(0) for _ in range(6)]
    g(f"ds_read_b128 {q4(SQ)}, v{vSQ} offset:{STB}")
    g(f"ds_read_b128 {q4(SM)}, v{vRs} offset:{STB+256}")
    g(f"ds_read_b128 {q4(G4)}, v{vRd} offset:{GUL}")
    g(f"ds_read_b128 {q4(CG)}, v{vAW} offset:{GUL+1024}")
    g(f"ds_read_b128 {q4(U4)}, v{vRd} offset:{GUL+2048}")
    g(f"ds_read_b128 {q4(CU)}, v{vAW} offset:{GUL+3072}")
    def sum4(r):
        g(f"v_pk_add_f32 {q2(r)}, {q2(r)}, {q2(r+2)}")
        g(f"v_add_f32 v{r}, v{r}, v{r+1}")
    g.lgk(4)
    sum4(SQ); sum4(SM)
    ln_scalars(SM, SQ, SQ + 1)
    g.lgk(0)
    sum4(G4); sum4(CG); sum4(U4); sum4(CU)
    g(f"v_fma_f32 v{G4}, -v{SM}, v{CG}, v{G4}")
    g(f"v_fma_f32 v{U4}, -v{SM}, v{CU}, v{U4}")
    g(f"v_mul_f32 v{G4}, v{G4}, v{SQ}")
    g(f"v_mul_f32 v{U4}, v{U4}, v{SQ}")
    bf16r(G4, G4); bf16r(U4, U4)
    import math
    k1 = -2 * math.sqrt(2 / math.pi) * math.log2(math.e)
    k3 = k1 * 0.044715
    f2h = lambda f: "0x%08x" % struct.unpack('<I', struct.pack('<f', f))[0]
    g(f"v_mul_f32 v{CG}, v{G4}, v{G4}")
    g(f"v_mov_b32 v{CG+1}, {f2h(k1)}")
    g(f"v_fmac_f32 v{CG+1}, {f2h(k3)}, v{CG}")
    g(f"v_mul_f32 v{CG}, v{CG+1}, v{G4}")
    g(f"v_exp_f32 v{CG}, v{CG}")
    g(f"v_add_f32 v{CG}, 1.0, v{CG}")
    g(f"v_rcp_f32 v{CG}, v{CG}")
    g(f"v_mul_f32 v{CG}, v{CG}, v{G4}")
    bf16r(CG, CG)
    g(f"v_mul_f32 v{CG}, v{CG}, v{U4}")
    g(f"v_cvt_pk_bf16_f32 v{CG}, v{CG}, v{CG}")
    g(f"ds_write_b16 v{vK}, v{CG} offset:{ACT}")
    g.lgk(0)
    AD = AS[0:4]
    for c in range(4):
        g(f"ds_read_b128 {q4(AD[c])}, v{vAC[c]} offset:{ACT}")
    F = [E0, E1, STq]
    for c in range(4):
        g.lgk(3 - c)
        for u in range(2):
            g(f"v_mfma_f32_16x16x32_bf16 {q4(F[u])}, {q4(AD[c])}, {q4(DNP[u][c])}, {'0' if c == 0 else q4(F[u])}")
    g(f"s_cmp_eq_u32 s{sW}, 0"); g("s_cbranch_scc0 L_dn2")
    for c in range(4):
        g(f"v_mfma_f32_16x16x32_bf16 {q4(F[2])}, {q4(AD[c])}, {q4(DNP[2][c])}, {'0' if c == 0 else q4(F[2])}")
    g("s_mov_b32 exec_hi, 0")
    g(f"buffer_store_dwordx4 {q4(F[0])}, v{vDS}, {WS}, s71 offen sc1")
    g(f"buffer_store_dwordx4 {q4(F[1])}, v{vDS}, {WS}, s71 offen offset:1024 sc1")
    g(f"buffer_store_dwordx4 {q4(F[2])}, v{vDS}, {WS}, s71 offen offset:2048 sc1")
    g("s_mov_b32 exec_hi, -1")
    g("s_branch L_fin")
    g.label("L_dn2")
    g("s_mov_b32 exec_hi, 0")
    g(f"buffer_store_dwordx4 {q4(F[0])}, v{vDS}, {WS}, s71 offen sc1")
    g(f"buffer_store_dwordx4 {q4(F[1])}, v{vDS}, {WS}, s71 offen offset:1024 sc1")
    g("s_mov_b32 exec_hi, -1")
    g.label("L_fin")
    if P['stamps']:
        nst[0] = 15
        stamp_end(15)
    g.label("L_end")
    g("s_endpgm")

    tail = ['.section .rodata,"a"', ".p2align 6", f".amdhsa_kernel {KN}",
            "  .amdhsa_next_free_vgpr 256", "  .amdhsa_next_free_sgpr 102", "  .amdhsa_accum_offset 256",
            "  .amdhsa_group_segment_fixed_size 0", "  .amdhsa_kernarg_size 96", "  .amdhsa_user_sgpr_count 2",
            "  .amdhsa_user_sgpr_kernarg_segment_ptr 1", "  .amdhsa_system_sgpr_workgroup_id_x 1", ".end_amdhsa_kernel"]
    return "\n".join(hdr) + "\n" + g.text() + "\n".join(tail) + "\n"


if __name__ == "__main__":
    out = sys.argv[1]
    kw = {}
    for a in sys.argv[2:]:
        k, v = a.split('=')
        try:
            v = int(v)
        except ValueError:
            pass
        kw[k] = v
    open(out, 'w').write(gen(**kw))
```

```python
import sys, os
sys.path.insert(0, os.path.dirname(os.path.abspath(__file__)))
from asmlib import Gen

KN = "sequential_preLN__mha_block_cached__glu_gated_geglu__decode_kernel"

ML = 0
HB = 0x1C0000
HBSH = 14
YB = 131072
DB = 1 << 20
WSN = 2 << 20
OOR = 0x80000000
QP = 0
QS = 4096
OB = 4608
N9 = 7168
GUL = 9216
STB = 13312
ACT = 15360
LDS_BYTES = 16384

DEF = dict(rot=5, L1=10, L1b=24, D=16, XB=52, guA='52', wsmall=0.5, R=8, NP=1, G=1, psleep=4, stamps=0,
           polw="nt", polf="nt", pold="nt", wo_start=28, wo_every=8, warm=1, cnt_at=20, LIMIT=20000, pf=0, polp='', psh=7, rsleep=0, hsleep=0, skipq=0, skipo=0, Dk=40)


def q4(b): return f"v[{b}:{b+3}]"
def q2(b): return f"v[{b}:{b+1}]"


def gen(**kw):
    P = dict(DEF); P.update(kw)
    g = Gen()
    R_ = P['R']
    hdr = []
    hdr.append(f"; @launch grid=(256,1,1) block=(512,1,1) lds={LDS_BYTES}")
    hdr.append('.amdgcn_target "amdgcn-amd-amdhsa--gfx950"')
    hdr += [".text", f".globl {KN}", ".p2align 8", f".type {KN},@function", f"{KN}:"]

    vT, vL, vG, vJ = 0, 1, 2, 3
    vK, vWQ, vM, vWO, vWO9 = 4, 5, 6, 10, 11
    vQ, vS, vACC, vA0, vA1 = 12, 16, 20, 24, 28
    T = list(range(32, 48))
    vMW, vFAC, vST, vZ, vCNT, vGU, vML = 48, 49, 50, 51, 52, 53, 54
    vGU4 = 5
    pool = list(range(56, 256, 4))
    KS, VS, WQ, WO, GU, WD, WS, XS, OUT = [f"s[{a}:{a+3}]" for a in range(28, 64, 4)]
    sW, sC, sB, sH, sI, sX = 64, 65, 66, 67, 68, 69
    sKo, sVo, sQo, sTo, sF, sRr = 70, 71, 72, 73, 74, 75
    sPL, sPH = 78, 79
    sMK = {1: "s[80:81]", 2: "s[82:83]", 3: "s[84:85]"}
    sONE, sCNT, sYB, sDBo = 86, 87, 88, 89
    sGo = 90

    nst = [0]
    def stamp(k):
        if not P['stamps']:
            return
        g.lgk(0)
        if nst[0] is not None and nst[0] != 0:
            g(f"v_writelane_b32 v{vST}, s92, {nst[0]-1}")
        g("s_memrealtime s[92:93]")
        nst[0] = k + 1
    def stamp_end(k):
        if not P['stamps']:
            return
        stamp(k)
        g.lgk(0)
        g(f"v_writelane_b32 v{vST}, s92, {k}")
        g(f"s_add_u32 s94, s26, {260<<20}"); g("s_addc_u32 s95, s27, 0")
        g(f"s_lshl_b32 s96, s2, 3"); g(f"s_add_u32 s96, s96, s{sW}"); g("s_lshl_b32 s96, s96, 7")
        g(f"v_lshlrev_b32 v{T[0]}, 2, v{vL}"); g(f"v_add_u32 v{T[0]}, s96, v{T[0]}")
        g("s_mov_b32 exec_hi, 0")
        g(f"global_store_dword v{T[0]}, v{vST}, s[94:95]")
        g("s_mov_b64 exec, -1")

    def bf16r(d, s):
        g(f"v_cvt_pk_bf16_f32 v{d}, v{s}, v{s}")
        g(f"v_and_b32 v{d}, 0xffff0000, v{d}")

    def allred(op, regs, tmps, rows=4):
        for sh in (8, 4, 2, 1):
            for r in regs:
                g(f"{op}_dpp v{r}, v{r}, v{r} row_ror:{sh} row_mask:0xf bank_mask:0xf")
        for sw in (("16", "32") if rows == 4 else ("16",)):
            for r, t in zip(regs, tmps):
                g(f"v_mov_b32 v{t}, v{r}")
            for r, t in zip(regs, tmps):
                g(f"v_permlane{sw}_swap_b32 v{r}, v{t}")
            for r, t in zip(regs, tmps):
                g(f"{op} v{r}, v{r}, v{t}")

    g("s_cmp_ge_u32 s2, 256"); g("s_cbranch_scc1 L_end")
    g("s_load_dwordx16 s[4:19], s[0:1], 0")
    g("s_load_dwordx8 s[20:27], s[0:1], 64")
    if P['stamps']:
        g("s_memrealtime s[92:93]"); nst[0] = 1
        g(f"v_mov_b32 v{vST}, 0")
    g(f"""
    v_lshrrev_b32 v{T[0]}, 6, v0
    v_and_b32 v{vL}, 63, v0
    v_readfirstlane_b32 s{sW}, v{T[0]}
    s_and_b32 s{sX}, s2, 7
    s_lshr_b32 s{sI}, s2, 3
    s_lshr_b32 s{sB}, s{sI}, 4
    s_and_b32 s76, s{sI}, 15
    s_lshl_b32 s77, s{sX}, 4
    s_add_u32 s76, s76, s77
    s_lshr_b32 s{sH}, s76, 2
    s_lshl_b32 s{sC}, s{sB}, 7
    s_add_u32 s{sC}, s{sC}, s76
    v_lshrrev_b32 v{vG}, 4, v{vL}
    v_and_b32 v{vJ}, 15, v{vL}
    v_lshlrev_b32 v{T[1]}, 4, v{vL}
    s_lshl_b32 s76, s{sW}, 12
    v_add_u32 v{vK}, s76, v{T[1]}
    s_mul_i32 s{sKo}, s{sC}, {P['rot']}
    s_and_b32 s{sKo}, s{sKo}, 15
    s_lshl_b32 s{sKo}, s{sKo}, 15
    s_mov_b32 s{sVo}, s{sKo}
    s_lshl_b32 s76, s{sC}, 19
    s_mul_i32 s77, s{sB}, 1152
    v_lshlrev_b32 v{T[2]}, 2, v{vL}
    v_lshlrev_b32 v{T[3]}, 3, v{vJ}
    v_lshl_add_u32 v{T[4]}, v{vG}, 1, v{T[3]}
    s_mul_i32 s{sTo}, s{sW}, 144
    v_lshlrev_b32 v{vWQ}, 13, v{vG}
    v_lshl_add_u32 v{vWQ}, v{vJ}, 4, v{vWQ}
    s_mul_i32 s{sQo}, s{sW}, {72*8192}
    s_mov_b32 s30, 0x80000
    s_mov_b32 s31, 0x20000
    s_mov_b32 s58, 1152
    s_mov_b32 s59, 0x20000
    s_mov_b32 s39, 0x20000
    s_lshl_b32 s91, s{sH}, 8
    s_sub_u32 s38, {576*8192}, s91
    s_waitcnt lgkmcnt(0)
    s_add_u32 s56, s4, s77
    s_addc_u32 s57, s5, 0
    s_add_u32 s28, s6, s76
    s_addc_u32 s29, s7, 0
    """)
    if P['skipq']: g("s_mov_b32 s38, 0")
    X4 = pool.pop(0)
    XE = pool.pop(0)
    g.vm(f"buffer_load_dwordx4 {q4(X4)}, v{T[1]}, {XS}, 0 offen")
    g.vm(f"buffer_load_dword v{XE}, v{T[2]}, {XS}, 0 offen offset:1024")
    g.vm(f"buffer_load_ushort v{XE+1}, v{T[4]}, {XS}, s{sTo} offen")
    tx = g.vm(f"buffer_load_ushort v{XE+2}, v{T[4]}, {XS}, s{sTo} offen offset:128")
    g(f"s_add_u32 s36, s10, s91"); g("s_addc_u32 s37, s11, 0")

    queue = []
    items = {}
    aux = []

    def kv_item(kind, n):
        def issue():
            r = pool.pop(0)
            srd, so = (KS, sKo) if kind == 'K' else (VS, sVo)
            tok = g.vm(f"buffer_load_dwordx4 {q4(r)}, v{vK}, {srd}, s{so} offen offset:{(n&3)*1024} nt")
            if n & 3 == 3 and n != 63:
                g(f"s_add_u32 s{so}, s{so}, 0x8000"); g(f"s_and_b32 s{so}, s{so}, 0x7ffff")
            items[(kind, n)] = (tok, r)
        return (1, 1, issue)

    def wq_item(m):
        def issue():
            r = pool.pop(0)
            tok = g.vm(f"buffer_load_dwordx4 {q4(r)}, v{vWQ}, {WQ}, s{sQo} offen {P['polw']}")
            if m != 17:
                g(f"s_add_u32 s{sQo}, s{sQo}, 0x8000")
            items[('Q', m)] = (tok, r)
        return (1, 1, issue)

    WOP = {}
    def dense2_item(key, store, vaddr, srd, base, pol, lazy=False):
        def issue():
            rs = [pool.pop(0) for _ in range(4)]
            outs = [] if lazy else [pool.pop(0) for _ in range(4)]
            raw = []
            for e in range(8):
                if e % 4 == 0:
                    g(f"s_mov_b32 s{sTo}, {base + (e//4)*4608}")
                r = rs[e // 2] + 2 * (e & 1)
                raw.append(r)
                tok = g.vm(f"buffer_load_dwordx2 {q2(r)}, v{vaddr}, {srd}, s{sTo} offen offset:{(e%4)*1152} {pol}")
            def fin():
                if lazy:
                    outs.extend(pool.pop(0) for _ in range(4))
                for k in range(4):
                    for d in range(2):
                        g(f"v_perm_b32 v{outs[2*d]+k}, v{raw[2*k+1]+d}, v{raw[2*k]+d}, s{sPL}")
                        g(f"v_perm_b32 v{outs[2*d+1]+k}, v{raw[2*k+1]+d}, v{raw[2*k]+d}, s{sPH}")
                pool.extend(rs)
                store[key] = outs
            aux.append((tok, fin))
        return (8, 8, issue)

    GUP = {}
    def gu_item(s):
        def issue():
            rs = [pool.pop(0) for _ in range(2)]
            raw = [rs[e // 4] + (e & 3) for e in range(8)]
            for e in range(8):
                g(f"s_add_u32 s{sTo}, s{sGo}, {(32*s+e)*9216}")
                tok = g.vm(f"buffer_load_dword v{raw[e]}, v{vGU4 if s == 4 else vGU}, {GU}, s{sTo} offen {P['polf']}")
            def fin():
                outs = [pool.pop(0) for _ in range(2)]
                for k in range(4):
                    g(f"v_perm_b32 v{outs[0]+k}, v{raw[2*k+1]}, v{raw[2*k]}, s{sPL}")
                    g(f"v_perm_b32 v{outs[1]+k}, v{raw[2*k+1]}, v{raw[2*k]}, s{sPH}")
                pool.extend(rs)
                GUP[s] = outs
            aux.append((tok, fin))
        return (4, 8, issue)

    def fn_item(fn, nv=1):
        return (0, nv, fn)

    wts = {}
    def wout():
        return sum(wts.get(t, 0) for t in range(g.vm_done, g.vm_issued))
    def pump(limit):
        while queue:
            nq, nv, issue = queue[0]
            if len(pool) < nq or wout() >= limit or g.outstanding() + nv > 60:
                break
            queue.pop(0)
            t0 = g.vm_issued
            issue()
            for t in range(t0, g.vm_issued):
                wts[t] = 1.0 if nv == 1 else P['wsmall']

    def run_aux(force=False):
        while aux and (force or aux[0][0] < g.vm_done):
            tok, fn = aux.pop(0)
            g.wait(tok)
            fn()

    def setup2():
        g(f"""
        s_add_u32 s32, s8, s76
        s_addc_u32 s33, s9, 0
        s_mov_b32 s34, 0x80000
        s_mov_b32 s35, 0x20000
        s_mov_b32 s52, s26
        s_mov_b32 s53, s27
        s_mov_b32 s54, {WSN}
        s_mov_b32 s55, 0x20000
        s_mul_i32 s77, s{sH}, {128*1152}
        s_add_u32 s40, s12, s77
        s_addc_u32 s41, s13, 0
        s_mov_b32 s42, {0 if P['skipo'] else 128*1152}
        s_mov_b32 s43, 0x20000
        s_mul_i32 s{sF}, s{sX}, 18
        s_add_u32 s{sF}, s{sF}, s{sI}
        s_mul_i32 s{sRr}, s{sX}, 9
        s_add_u32 s{sRr}, s{sRr}, s{sI}
        s_sub_u32 s{sRr}, s{sRr}, 18
        s_mul_i32 s{sYB}, s{sC}, 2304
        s_add_u32 s{sYB}, s{sYB}, {YB}
        s_mul_i32 s{sDBo}, s{sF}, 4608
        s_add_u32 s{sDBo}, s{sDBo}, {DB}
        s_sub_u32 s76, s{sDBo}, {144*16}
        s_cmp_lt_u32 s{sI}, 18
        s_cselect_b32 s76, s76, {OOR}
        s_lshl_b32 s77, s{sC}, 6
        s_add_u32 s77, s77, {ML}
        s_sub_u32 s77, s77, {432*16}
        v_lshlrev_b32 v{T[5]}, 4, v0
        v_add_u32 v{T[6]}, s{sYB}, v{T[5]}
        v_add_u32 v{T[7]}, s76, v{T[5]}
        v_cmp_le_u32 vcc, 144, v0
        v_cndmask_b32 v{T[6]}, v{T[6]}, v{T[7]}, vcc
        v_add_u32 v{T[7]}, s77, v{T[5]}
        v_cmp_le_u32 vcc, 432, v0
        v_cndmask_b32 v{T[6]}, v{T[6]}, v{T[7]}, vcc
        v_bfrev_b32 v{T[7]}, 1
        v_cmp_le_u32 vcc, 436, v0
        v_cndmask_b32 v{T[6]}, v{T[6]}, v{T[7]}, vcc
        s_lshl_b32 s76, s{sRr}, {P['psh']}
        s_add_u32 s76, s76, {HB}
        s_sub_u32 s77, s{sI}, 18
        s_cmp_lt_u32 s77, 9
        s_cselect_b32 s76, s76, {OOR}
        v_lshrrev_b32 v{T[7]}, 1, v{vL}
        v_lshlrev_b32 v{T[7]}, {HBSH}, v{T[7]}
        v_and_b32 v{T[8]}, 1, v{vL}
        v_lshl_add_u32 v{T[7]}, v{T[8]}, 4, v{T[7]}
        v_add_u32 v{T[7]}, s76, v{T[7]}
        v_subrev_u32 v{T[8]}, 448, v0
        v_cmp_gt_u32 vcc, {2*R_}, v{T[8]}
        v_cndmask_b32 v{T[6]}, v{T[6]}, v{T[7]}, vcc
        v_mov_b32 v{T[8]}, -1
        v_mov_b32 v{T[9]}, -1
        v_mov_b32 v{T[10]}, -1
        v_mov_b32 v{T[11]}, -1
        """)
        g.vm(f"buffer_store_dwordx4 {q4(T[8])}, v{T[6]}, {WS}, 0 offen sc1")
        g(f"""
        v_and_b32 v{T[5]}, 1, v{vL}
        v_lshlrev_b32 v{T[5]}, 4, v{T[5]}
        v_mov_b32 v{T[7]}, 0xffff
        v_lshlrev_b32 v{T[5]}, v{T[5]}, v{T[7]}
        v_bfe_u32 v{T[7]}, v{vL}, 1, 2
        """)
        for r in range(4):
            g(f"v_cmp_eq_u32 vcc, {r}, v{T[7]}")
            g(f"v_cndmask_b32 v{vM+r}, 0, v{T[5]}, vcc")
        g(f"""
        s_mov_b32 s{sONE}, 0x3f803f80
        s_mov_b32 s{sPL}, 0x05040100
        s_mov_b32 s{sPH}, 0x07060302
        s_mov_b32 s80, 0x22222222
        s_mov_b32 s81, 0x22222222
        s_mov_b32 s82, 0x44444444
        s_mov_b32 s83, 0x44444444
        s_mov_b32 s84, 0x88888888
        s_mov_b32 s85, 0x88888888
        v_mov_b32 v{vZ}, 0
        v_mul_u32_u24 v{vWO}, 9216, v{vG}
        v_lshl_add_u32 v{vWO}, v{vJ}, 3, v{vWO}
        s_mul_i32 s76, s{sW}, 36864
        s_add_u32 s76, s76, 1024
        v_add_u32 v{vWO9}, s76, v{vWO}
        s_lshl_b32 s76, s{sW}, 7
        v_add_u32 v{vWO}, s76, v{vWO}
        """)

    def warm():
        r = pool.pop(0)
        g("s_getpc_b64 s[76:77]")
        g(f"v_lshlrev_b32 v{r}, 6, v0")
        g(f"v_min_u32 v{r}, L_end-L_warm-64, v{r}")
        g.label("L_warm")
        tok = g.vm(f"global_load_dword v{r+1}, v{r}, s[76:77]")
        aux.append((tok, lambda: pool.append(r)))

    qi = 0
    for n in range(64):
        queue.append(kv_item('K', n))
        if n & 3 == 3 and qi < 18:
            for _ in range(4):
                if qi < 18:
                    queue.append(wq_item(qi)); qi += 1
            if n == 3:
                queue.append(fn_item(setup2))
                if P['warm']:
                    queue.append((1, 1, warm))
    published = [False]
    def cnt_load():
        g(f"s_cmp_lg_u32 s{sW}, 0"); g("s_cbranch_scc1 L_nocnt")
        g("s_mov_b64 exec, 1")
        g.emit(f"global_load_dword v{vCNT}, v{vZ}, s[24:25] sc1"); g.vm_issued -= 1
        g("s_mov_b64 exec, -1")
        g.label("L_nocnt")
        items['cnt'] = g.vm_issued
    def barrier_x():
        assert published[0]
        stamp(4)
        g.wait(items['cnt'])
        g(f"s_cmp_lg_u32 s{sW}, 0"); g("s_cbranch_scc1 L_cnt_ok")
        g(f"v_readfirstlane_b32 s77, v{vML}")
        g(f"v_readfirstlane_b32 s76, v{vCNT}")
        g("s_or_b32 s77, s77, 255"); g("s_add_u32 s77, s77, 1")
        g("s_cmp_eq_u32 s76, s77"); g("s_cbranch_scc1 L_cnt_ok")
        g(f"s_mov_b32 s{sCNT}, 0")
        g.label("L_cnt_spin")
        g("s_sleep 8")
        g.emit(f"global_load_dword v{vCNT}, v{vZ}, s[24:25] sc1"); g.vm_issued -= 1
        g("s_waitcnt vmcnt(0)")
        g(f"v_readfirstlane_b32 s76, v{vCNT}")
        g(f"s_add_u32 s{sCNT}, s{sCNT}, 1")
        g(f"s_cmp_ge_u32 s{sCNT}, {P['LIMIT']}"); g("s_cbranch_scc1 L_cnt_ok")
        g("s_cmp_eq_u32 s76, s77"); g("s_cbranch_scc0 L_cnt_spin")
        g.label("L_cnt_ok")
        g("s_barrier")
        g(f"s_lshr_b32 s76, s{sC}, 2"); g("s_lshl_b32 s76, s76, 8")
        g(f"v_and_b32 v{vCNT}, 31, v{vL}"); g(f"v_lshlrev_b32 v{vCNT}, 3, v{vCNT}")
        g(f"v_add_u32 v{vCNT}, s76, v{vCNT}")
        tok = g.vm(f"buffer_load_dwordx2 {q2(vML)}, v{vCNT}, {WS}, 0 offen offset:{ML} sc1")
        def fin():
            g(f"s_mov_b32 s{sCNT}, 0")
            g.label("L_ml_chk")
            g(f"v_max_u32 v{T[0]}, v{vML}, v{vML+1}")
            g(f"v_cmp_eq_u32 vcc, -1, v{T[0]}")
            g("s_cbranch_vccz L_ml_ok")
            g("s_sleep 8")
            g.emit(f"buffer_load_dwordx2 {q2(vML)}, v{vCNT}, {WS}, 0 offen offset:{ML} sc1"); g.vm_issued -= 1
            g("s_waitcnt vmcnt(0)")
            g(f"s_add_u32 s{sCNT}, s{sCNT}, 1")
            g(f"s_cmp_lt_u32 s{sCNT}, {P['LIMIT']}"); g("s_cbranch_scc1 L_ml_chk")
            g.label("L_ml_ok")
            g(f"v_mov_b32 v{T[0]}, v{vML}")
            allred("v_max_f32", [T[0]], [T[1]], rows=2)
            g(f"v_sub_f32 v{T[2]}, v{vML}, v{T[0]}")
            g(f"v_exp_f32 v{T[2]}, v{T[2]}")
            g(f"v_sub_f32 v{T[3]}, v{vMW}, v{T[0]}")
            g(f"v_mul_f32 v{T[2]}, v{T[2]}, v{vML+1}")
            g(f"v_exp_f32 v{T[3]}, v{T[3]}")
            allred("v_add_f32", [T[2]], [T[1]], rows=2)
            g(f"v_rcp_f32 v{T[2]}, v{T[2]}")
            g(f"v_mul_f32 v{vFAC}, v{T[2]}, v{T[3]}")
        aux.append((tok, fin))

    def setup_ffn():
        g(f"""
        s_cmp_lt_u32 s{sW}, 4
        s_cselect_b32 s44, s16, s18
        s_cselect_b32 s45, s17, s19
        s_cmp_lt_u32 s{sI}, 18
        s_cselect_b32 s76, s{sF}, 0
        s_lshl_b32 s77, s76, 6
        s_add_u32 s44, s44, s77
        s_addc_u32 s45, s45, 0
        s_sub_u32 s46, {576*9216}, s77
        s_mul_i32 s77, s76, {32*1152}
        s_add_u32 s48, s20, s77
        s_addc_u32 s49, s21, 0
        s_cmp_lt_u32 s{sI}, 18
        s_cselect_b32 s46, s46, 0
        s_cselect_b32 s50, {32*1152}, 0
        s_mov_b32 s47, 0x20000
        s_mov_b32 s51, 0x20000
        s_and_b32 s{sGo}, s{sW}, 3
        s_mul_i32 s{sGo}, s{sGo}, {144*9216}
        v_mul_u32_u24 v{vGU}, {8*9216}, v{vG}
        v_lshl_add_u32 v{vGU}, v{vJ}, 2, v{vGU}
        v_bfrev_b32 v{vGU4}, 1
        v_cmp_gt_u32 vcc, 32, v{vL}
        v_cndmask_b32 v{vGU4}, v{vGU4}, v{vGU}, vcc
        """)

    wo_list = [dense2_item(s, WOP, vWO, WO, s * 36864, P['polw']) for s in range(4)] + [dense2_item(9, WOP, vWO9, WO, 0, P['polw'])]
    for n in range(64):
        if n == P['cnt_at']:
            queue.append(fn_item(cnt_load, 0))
        if n == P['XB']:
            queue.append(fn_item(barrier_x))
        queue.append(kv_item('V', n))
    def insert_after_main(idx, item):
        cnt = -1
        for pos, it in enumerate(queue):
            if it[2].__qualname__.endswith('kv_item.<locals>.issue'):
                cnt += 1
                if cnt == idx:
                    queue.insert(pos + 1, item)
                    return
        raise Exception
    for k, it in enumerate(wo_list):
        insert_after_main(P['wo_start'] + k * P['wo_every'] - 1, it)
    def prefetch():
        g(f"""
        s_lshl_b32 s76, s{sI}, 3
        s_add_u32 s76, s76, s{sW}
        s_mov_b32 s60, s16
        s_mov_b32 s61, s17
        s_cmp_ge_u32 s76, 81
        s_cselect_b32 s60, s18, s60
        s_cselect_b32 s61, s19, s61
        s_cselect_b32 s77, 81, 0
        s_mul_i32 s{sTo}, s{sX}, 1152
        s_mul_i32 s62, s{sX}, {576*1152}
        s_cmp_ge_u32 s76, 162
        s_cselect_b32 s60, s20, s60
        s_cselect_b32 s61, s21, s61
        s_cselect_b32 s77, 162, s77
        s_cselect_b32 s{sTo}, s62, s{sTo}
        s_cselect_b32 s63, 0, {9216-1152}
        s_sub_u32 s77, s76, s77
        s_lshl_b32 s77, s77, 6
        v_add_u32 v{T[14]}, s77, v{vL}
        v_mul_u32_u24 v{T[15]}, 7282, v{T[14]}
        v_lshrrev_b32 v{T[15]}, 16, v{T[15]}
        v_mul_u32_u24 v{T[15]}, s63, v{T[15]}
        v_lshl_add_u32 v{T[14]}, v{T[14]}, 7, v{T[15]}
        s_cmp_ge_u32 s76, 243
        s_cselect_b32 s62, 0, {576*9216}
        s_mov_b32 s63, 0x20000
        """)
        dummy = pool.pop(0)
        g.vm(f"buffer_load_dword v{dummy}, v{T[14]}, {OUT}, s{sTo} offen {P['polp']}")
    if P['pf']:
        queue.append((1, 1, prefetch))
    gu_steps = list(range(5))
    guA = [int(t) for t in str(P['guA']).split(',') if t != '']

    pump(P['L1'])
    g.wait(tx)
    a, b_, t1, t2 = T[12], T[13], T[14], T[15]
    xs = [X4, X4 + 1, X4 + 2, X4 + 3, XE]
    for k, r in enumerate(xs):
        g(f"v_dot2_f32_bf16 v{a}, v{r}, s{sONE}, {'0' if k == 0 else 'v%d' % a}")
        g(f"v_dot2_f32_bf16 v{b_}, v{r}, v{r}, {'0' if k == 0 else 'v%d' % b_}")
    allred("v_add_f32", [a, b_], [t1, t2])
    def ln_scalars(sm, sq, t):
        g(f"v_mul_f32 v{sm}, {1.0/576!r}, v{sm}")
        g(f"v_mul_f32 v{t}, v{sm}, v{sm}")
        g(f"v_fma_f32 v{sq}, v{sq}, s91, -v{t}")
        g(f"v_max_f32 v{sq}, 0, v{sq}")
        bf16r(sq, sq)
        bf16r(sm, sm)
        g(f"v_add_f32 v{sq}, 0x3727c5ac, v{sq}")
        bf16r(sq, sq)
        g(f"v_sqrt_f32 v{sq}, v{sq}")
        bf16r(sq, sq)
        g(f"v_rcp_f32 v{sq}, v{sq}")
    import struct
    inv576 = struct.unpack('<I', struct.pack('<f', 1.0 / 576))[0]
    g(f"s_mov_b32 s91, {inv576:#x}")
    ln_scalars(a, b_, t1)
    for k in (1, 2):
        g(f"v_lshlrev_b32 v{XE+k}, 16, v{XE+k}")
        g(f"v_sub_f32 v{XE+k}, v{XE+k}, v{a}")
        bf16r(XE + k, XE + k)
        g(f"v_mul_f32 v{XE+k}, v{XE+k}, v{b_}")
        g(f"v_cvt_pk_bf16_f32 v{XE+k}, v{XE+k}, v{XE+k}")
    pool.append(X4)
    stamp(1)
    for m in range(18):
        pump(P['L1'])
        A = vA0 if m & 1 == 0 else vA1
        for r in range(4):
            g(f"v_and_b32_dpp v{A+r}, v{XE+1+(m>>4)}, v{vM+r} row_newbcast:{m&15} row_mask:0xf bank_mask:0xf")
        tok, r = items[('Q', m)]
        g.wait(tok)
        g(f"v_mfma_f32_16x16x32_bf16 {q4(vACC)}, {q4(A)}, {q4(r)}, {'0' if m == 0 else q4(vACC)}")
        pool.append(r)
        run_aux()
    pool.append(XE)
    pump(P['L1b'])
    g(f"""
    v_lshlrev_b32 v{T[0]}, 5, v{vJ}
    v_lshl_add_u32 v{T[0]}, v{vG}, 4, v{T[0]}
    s_lshl_b32 s76, s{sW}, 9
    v_add_u32 v{T[0]}, s76, v{T[0]}
    s_mov_b32 exec_hi, 0
    ds_write_b128 v{T[0]}, {q4(vACC)} offset:{QP}
    s_mov_b32 exec_hi, -1
    v_lshlrev_b32 v{T[1]}, 3, v{vL}
    v_lshlrev_b32 v{T[2]}, 2, v{vL}
    v_lshlrev_b32 v{T[3]}, 4, v{vJ}
    s_waitcnt lgkmcnt(0)
    s_barrier
    """)
    tq = [vA0, vA1, vACC, vS]
    for k in range(4):
        g(f"ds_read2st64_b64 {q4(tq[k])}, v{T[1]} offset0:{2*k} offset1:{2*k+1}")
    g(f"s_cmp_eq_u32 s{sW}, 0"); g("s_cbranch_scc0 L_noadd")
    g(f"v_mov_b32 v{T[4]}, 1"); g("s_mov_b64 exec, 1")
    g.emit(f"global_atomic_add v{vML}, v{vZ}, v{T[4]}, s[24:25] sc0 sc1"); g.vm_issued -= 1
    g("s_mov_b64 exec, -1")
    g.label("L_noadd")
    g.lgk(0)
    for k in range(4):
        g(f"v_pk_add_f32 {q2(tq[k])}, {q2(tq[k])}, {q2(tq[k]+2)}")
    g(f"v_pk_add_f32 {q2(tq[0])}, {q2(tq[0])}, {q2(tq[1])}")
    g(f"v_pk_add_f32 {q2(tq[2])}, {q2(tq[2])}, {q2(tq[3])}")
    g(f"v_pk_add_f32 {q2(tq[0])}, {q2(tq[0])}, {q2(tq[2])}")
    g(f"v_cvt_pk_bf16_f32 v{tq[0]}, v{tq[0]}, v{tq[0]+1}")
    g(f"ds_write_b32 v{T[2]}, v{tq[0]} offset:{QS}")
    g.lgk(0)
    g(f"ds_read_b128 {q4(vQ)}, v{T[3]} offset:{QS}")
    g.lgk(0)
    stamp(2)

    for gk in range(16):
        pump(P['D'])
        rs = [items[('K', 4 * gk + u)] for u in range(4)]
        g.wait(rs[3][0])
        t = T[0:4]
        for k in range(4):
            for u in range(4):
                g(f"v_dot2_f32_bf16 v{t[u]}, v{rs[u][1]+k}, v{vQ+k}, {'0' if k == 0 else 'v%d' % t[u]}")
        for u in range(4):
            pool.append(rs[u][1])
        backlog = gk < 15 and ('K', 4 * gk + 7) in items and items[('K', 4 * gk + 7)][0] < g.vm_done
        pump(P['Dk'] if backlog else P['D'])
        a, b2, c = T[4], T[5], T[6]
        g(f"v_add_f32_dpp v{a}, v{t[0]}, v{t[0]} row_ror:8 row_mask:0xf bank_mask:0x3")
        g(f"v_add_f32_dpp v{b2}, v{t[2]}, v{t[2]} row_ror:8 row_mask:0xf bank_mask:0x3")
        g(f"v_add_f32_dpp v{a}, v{t[1]}, v{t[1]} row_ror:8 row_mask:0xf bank_mask:0xc")
        g(f"v_add_f32_dpp v{b2}, v{t[3]}, v{t[3]} row_ror:8 row_mask:0xf bank_mask:0xc")
        g(f"v_add_f32_dpp v{c}, v{a}, v{a} row_half_mirror row_mask:0xf bank_mask:0x5")
        g(f"v_add_f32_dpp v{c}, v{b2}, v{b2} row_half_mirror row_mask:0xf bank_mask:0xa")
        g(f"v_add_f32_dpp v{c}, v{c}, v{c} quad_perm:[1,0,3,2] row_mask:0xf bank_mask:0xf")
        lam = gk & 3
        S = vS + (gk >> 2)
        if lam == 0:
            g(f"v_add_f32_dpp v{S}, v{c}, v{c} quad_perm:[2,3,0,1] row_mask:0xf bank_mask:0xf")
        else:
            g(f"v_add_f32_dpp v{c}, v{c}, v{c} quad_perm:[2,3,0,1] row_mask:0xf bank_mask:0xf")
            g(f"v_cndmask_b32 v{S}, v{S}, v{c}, {sMK[lam]}")
        run_aux()
    stamp(3)
    for r in range(4): g(f"v_cvt_pk_bf16_f32 v{vS+r}, v{vS+r}, v{vS+r}")
    for r in range(4): g(f"v_and_b32 v{vS+r}, 0xffff0000, v{vS+r}")
    for r in range(4): g(f"v_mul_f32 v{vS+r}, 0x3db504f3, v{vS+r}")
    for r in range(4): g(f"v_cvt_pk_bf16_f32 v{vS+r}, v{vS+r}, v{vS+r}")
    for r in range(4): g(f"v_and_b32 v{vS+r}, 0xffff0000, v{vS+r}")
    g(f"v_max3_f32 v{vMW}, v{vS}, v{vS+1}, v{vS+2}")
    g(f"v_max_f32 v{vMW}, v{vMW}, v{vS+3}")
    allred("v_max_f32", [vMW], [T[0]])
    for r in range(4): g(f"v_sub_f32 v{vS+r}, v{vS+r}, v{vMW}")
    for r in range(4): g(f"v_mul_f32 v{vS+r}, 0x3fb8aa3b, v{vS+r}")
    for r in range(4): g(f"v_exp_f32 v{vS+r}, v{vS+r}")
    g(f"v_mul_f32 v{vMW}, 0x3fb8aa3b, v{vMW}")
    g(f"v_add_f32 v{vMW+1}, v{vS}, v{vS+1}")
    g(f"v_add_f32 v{T[1]}, v{vS+2}, v{vS+3}")
    g(f"v_add_f32 v{vMW+1}, v{vMW+1}, v{T[1]}")
    for r in range(4): g(f"v_cvt_pk_bf16_f32 v{vS+r}, v{vS+r}, v{vS+r}")
    allred("v_add_f32", [vMW + 1], [T[0]])
    g(f"s_lshl_b32 s76, s{sC}, 3"); g(f"s_add_u32 s76, s76, s{sW}"); g("s_lshl_b32 s76, s76, 3")
    g("s_mov_b64 exec, 1")
    g.vm(f"buffer_store_dwordx2 {q2(vMW)}, v{vZ}, {WS}, s76 offen offset:{ML} sc1")
    g("s_mov_b64 exec, -1")
    published[0] = True

    beta = {0: 0, 1: 2, 2: 1, 3: 3}
    for n in range(64):
        pump(P['D'])
        A = vA0 if n & 1 == 0 else vA1
        j = 4 * beta[n & 3] + ((n >> 2) & 3)
        for r in range(4):
            g(f"v_and_b32_dpp v{A+r}, v{vS+(n>>4)}, v{vM+r} row_newbcast:{j} row_mask:0xf bank_mask:0xf")
        if n == 62:
            g(f"""
            v_and_b32 v{T[8]}, 1, v{vG}
            v_lshlrev_b32 v{T[8]}, 3, v{T[8]}
            v_lshl_add_u32 v{T[8]}, v{vJ}, 4, v{T[8]}
            s_mul_i32 s76, s{sW}, 320
            v_add_u32 v{T[8]}, s76, v{T[8]}
            v_and_b32 v{T[9]}, 7, v{vL}
            v_mul_u32_u24 v{T[9]}, 320, v{T[9]}
            v_lshl_add_u32 v{T[9]}, v{vG}, 4, v{T[9]}
            s_lshl_b32 s76, s{sW}, 6
            v_add_u32 v{T[10]}, s76, v{T[9]}
            v_lshlrev_b32 v{T[11]}, 4, v{vJ}
            s_lshl_b32 s76, s{sW}, 8
            v_add_u32 v{T[12]}, s76, v{T[11]}
            v_lshlrev_b32 v{T[13]}, 4, v{vL}
            s_lshl_b32 s76, s{sW}, 9
            v_add_u32 v{T[13]}, s76, v{T[13]}
            """)
        tok, r = items[('V', n)]
        g.wait(tok)
        g(f"v_mfma_f32_16x16x32_bf16 {q4(vACC)}, {q4(A)}, {q4(r)}, {'0' if n == 0 else q4(vACC)}")
        pool.append(r)
        if n == 0:
            setup_ffn()
        while n in guA:
            guA.remove(n)
            gu_item(gu_steps.pop(0))[2]()
        if n < 63:
            run_aux()
    assert not queue
    assert len(WOP) == 5
    stamp(5)
    for r in range(4): g(f"v_mul_f32 v{vACC+r}, v{vACC+r}, v{vFAC}")
    g(f"v_cvt_pk_bf16_f32 v{vACC}, v{vACC}, v{vACC+1}")
    g(f"v_cvt_pk_bf16_f32 v{vACC+1}, v{vACC+2}, v{vACC+3}")
    g("s_mov_b32 exec_hi, 0")
    g(f"ds_write_b64 v{T[8]}, {q2(vACC)} offset:{OB}")
    g("s_mov_b32 exec_hi, -1")
    g.lgk(0)
    g("s_barrier")
    AO = [pool.pop(0) for _ in range(5)]
    DD = [pool.pop(0) for _ in range(4)]
    NN = [pool.pop(0) for _ in range(4)]
    Yq = pool.pop(0); Zq = pool.pop(0)
    NR = NN + [vA0, vA1, vQ, vS]
    def main_mfma(lo, hi):
        for k in range(lo, hi):
            s, c = k // 4, k % 4
            g(f"v_mfma_f32_16x16x32_bf16 {q4(DD[c])}, {q4(AO[s])}, {q4(WOP[s][c])}, {'0' if s == 0 else q4(DD[c])}")
    def post_main():
        for c in range(4): g(f"v_pk_add_f32 {q2(DD[c])}, {q2(DD[c])}, {q2(DD[c]+2)}")
        for c in range(4): g(f"v_add_f32 v{Yq+c}, v{DD[c]}, v{DD[c]+1}")
        g(f"v_permlane16_swap_b32 v{Yq}, v{Yq+1}")
        g(f"v_permlane16_swap_b32 v{Yq+2}, v{Yq+3}")
        g(f"v_add_f32 v{Zq}, v{Yq}, v{Yq+1}"); g(f"v_add_f32 v{Zq+1}, v{Yq}, v{Yq+1}")
        g(f"v_add_f32 v{Zq+2}, v{Yq+2}, v{Yq+3}"); g(f"v_add_f32 v{Zq+3}, v{Yq+2}, v{Yq+3}")
        g(f"v_permlane16_swap_b32 v{Zq}, v{Zq+1}")
        g(f"v_permlane16_swap_b32 v{Zq+2}, v{Zq+3}")
        g("s_mov_b64 exec, 0xffff")
        g.emit(f"buffer_store_dwordx4 {q4(Zq)}, v{T[12]}, {WS}, s{sYB} offen sc1"); g.vm_issued -= 1
        g("s_mov_b64 exec, -1")
    g(f"s_cmp_ge_u32 s{sW}, 4"); g("s_cbranch_scc1 L_wo_hi")
    g(f"ds_read_b128 {q4(AO[4])}, v{T[10]} offset:{OB}")
    for s in range(4):
        g(f"ds_read_b128 {q4(AO[s])}, v{T[9]} offset:{OB+64*s}")
    g.lgk(4)
    for c in range(4):
        g(f"v_mfma_f32_16x16x32_bf16 {q4(NN[c])}, {q4(AO[4])}, {q4(WOP[9][c])}, 0")
    g.lgk(0)
    main_mfma(0, 6)
    for c in range(4): g(f"v_pk_add_f32 {q2(NN[c])}, {q2(NN[c])}, {q2(NN[c]+2)}")
    main_mfma(6, 7)
    for c in range(4): g(f"v_add_f32 v{Yq+c}, v{NN[c]}, v{NN[c]+1}")
    g("s_mov_b32 exec_hi, 0")
    g(f"ds_write_b128 v{T[13]}, {q4(Yq)} offset:{N9}")
    g("s_mov_b32 exec_hi, -1")
    main_mfma(7, 10)
    g.lgk(0)
    g("s_barrier")
    for p in range(8):
        g(f"ds_read_b128 {q4(NR[p])}, v{T[11]} offset:{N9+256*p}")
    main_mfma(10, 16)
    post_main()
    g(f"s_cmp_eq_u32 s{sW}, 3"); g("s_cbranch_scc0 L_wo_done")
    g.lgk(0)
    st = 1
    while st < 8:
        for p in range(0, 8, 2 * st):
            g(f"v_pk_add_f32 {q2(NR[p])}, {q2(NR[p])}, {q2(NR[p+st])}")
            g(f"v_pk_add_f32 {q2(NR[p]+2)}, {q2(NR[p]+2)}, {q2(NR[p+st]+2)}")
        st *= 2
    g("s_mov_b64 exec, 0xffff")
    g.emit(f"buffer_store_dwordx4 {q4(NR[0])}, v{T[11]}, {WS}, s{sYB} offen offset:2048 sc1"); g.vm_issued -= 1
    g("s_mov_b64 exec, -1")
    g("s_branch L_wo_done")
    g.label("L_wo_hi")
    for s in range(4):
        g(f"ds_read_b128 {q4(AO[s])}, v{T[9]} offset:{OB+64*s}")
    g("s_barrier")
    g.lgk(0)
    main_mfma(0, 16)
    post_main()
    g.flush()
    g.label("L_wo_done")
    g.lgk(0)
    stamp(6)
    for k in WOP: pool.extend(WOP[k])
    pool.extend(AO + DD + NN[1:4])
    g(f"s_cmp_lt_u32 s{sI}, 18"); g("s_cbranch_scc1 L_ffn")
    g(f"s_cmp_lt_u32 s{sI}, 27"); g("s_cbranch_scc0 L_fin")
    save_pool = list(pool); save_vm = (g.vm_issued, g.vm_done); save_nst = nst[0]

    g(f"s_cmp_ge_u32 s{sW}, {P['NP']}"); g("s_cbranch_scc1 L_fin")
    g(f"""
    s_cmp_ge_u32 s{sRr}, 36
    s_cselect_b32 s76, 1, 0
    s_mul_i32 s77, s76, 36
    s_sub_u32 s77, s{sRr}, s77
    s_mov_b32 s56, s4
    s_mov_b32 s57, s5
    s_mov_b32 s58, 2304
    s_mov_b32 s59, 0x20000
    s_mov_b32 s60, s22
    s_mov_b32 s61, s23
    s_mov_b32 s62, 2304
    s_mov_b32 s63, 0x20000
    v_and_b32 v{T[0]}, 3, v{vL}
    v_lshrrev_b32 v{T[1]}, 2, v{vL}
    v_lshlrev_b32 v{T[2]}, 3, v{T[0]}
    v_lshl_add_u32 v{T[3]}, v{vG}, 1, v{T[2]}
    s_lshl_b32 s{sTo}, s{sRr}, 5
    s_lshl_b32 s77, s77, 6
    s_mul_i32 s70, s76, {128*2304}
    s_add_u32 s70, s70, s77
    s_add_u32 s70, s70, {YB}
    s_mul_i32 s71, s76, 2304
    s_add_u32 s71, s71, s77
    s_add_u32 s71, s71, {DB}
    v_lshlrev_b32 v{T[4]}, 4, v{T[0]}
    v_mad_u32_u24 v{T[5]}, v{T[1]}, s58, v{T[4]}
    v_lshl_add_u32 v{T[6]}, v{T[5]}, 1, 0
    v_sub_u32 v{T[6]}, v{T[6]}, v{T[4]}
    v_lshl_add_u32 v{T[7]}, v{T[1]}, {HBSH}, v{T[2]}
    v_bfrev_b32 v{T[8]}, 1
    v_cmp_gt_u32 vcc, {R_}, v{T[1]}
    v_cndmask_b32 v{T[7]}, v{T[8]}, v{T[7]}, vcc
    s_lshl_b32 s72, s{sRr}, {P['psh']}
    s_add_u32 s72, s72, {HB}
    """)
    g(f"buffer_load_ushort v{T[9]}, v{T[3]}, {XS}, s{sTo} offen")
    YR = [pool.pop(0) for _ in range(9)]
    def reduce_poll(name, nl, vaddr, sbase, stride, res):
        g(f"s_mov_b32 s{sCNT}, 0")
        g.label(name)
        g(f"s_mov_b32 s76, s{sbase}")
        for n in range(nl):
            g(f"buffer_load_dwordx4 {q4(YR[n])}, v{vaddr}, {WS}, s76 offen sc1")
            if n < nl - 1:
                g(f"s_add_u32 s76, s76, {stride}")
        for n in range(1, nl):
            g(f"s_waitcnt vmcnt({nl-1-n})")
            d = YR[0] if n % 2 == 0 or n == 1 else YR[1]
            if n == 1:
                continue
            g(f"v_pk_add_f32 {q2(d)}, {q2(d)}, {q2(YR[n])}")
            g(f"v_pk_add_f32 {q2(d+2)}, {q2(d+2)}, {q2(YR[n]+2)}")
        g(f"v_pk_add_f32 {q2(YR[0])}, {q2(YR[0])}, {q2(YR[1])}")
        g(f"v_pk_add_f32 {q2(YR[0]+2)}, {q2(YR[0]+2)}, {q2(YR[1]+2)}")
        y = YR[0]
        g(f"v_permlane16_swap_b32 v{y}, v{y+1}")
        g(f"v_permlane16_swap_b32 v{y+2}, v{y+3}")
        g(f"v_add_f32 v{y}, v{y}, v{y+1}")
        g(f"v_add_f32 v{y+2}, v{y+2}, v{y+3}")
        g(f"v_permlane32_swap_b32 v{y}, v{y+2}")
        g(f"v_add_f32 v{y}, v{y}, v{y+2}")
        g(f"v_add_f32_dpp v{y}, v{y}, v{y} row_ror:4 row_mask:0xf bank_mask:0xf")
        g(f"v_add_f32_dpp v{res}, v{y}, v{y} row_ror:8 row_mask:0xf bank_mask:0xf")
        g(f"s_add_u32 s{sCNT}, s{sCNT}, 1")
        g(f"v_cmp_u_f32 vcc, v{res}, v{res}")
        g(f"s_cbranch_vccz {name}_ok")
        if P['rsleep']: g(f"s_sleep {P['rsleep']}")
        g(f"s_cmp_lt_u32 s{sCNT}, {P['LIMIT']}"); g(f"s_cbranch_scc1 {name}")
        g.label(name + "_ok")
    reduce_poll("L_r1", 8, T[5], 70, 16 * 2304, T[10])
    stamp(7)
    bf16r(T[10], T[10])
    g(f"v_lshlrev_b32 v{T[9]}, 16, v{T[9]}")
    g(f"v_add_f32 v{T[10]}, v{T[10]}, v{T[9]}")
    g(f"v_cvt_pk_bf16_f32 v{T[12]}, v{T[10]}, v{T[10]}")
    g(f"v_cvt_pk_bf16_f32 v{T[13]}, v{T[10]}, v{T[10]}")
    g(f"v_and_b32 v{T[10]}, 0xffff0000, v{T[12]}")
    g(f"v_permlane16_swap_b32 v{T[12]}, v{T[13]}")
    g(f"v_perm_b32 v{T[14]}, v{T[13]}, v{T[12]}, s{sPL}")
    g(f"v_perm_b32 v{T[15]}, v{T[13]}, v{T[12]}, s{sPL}")
    g(f"v_permlane32_swap_b32 v{T[14]}, v{T[15]}")
    g(f"buffer_store_dwordx2 {q2(T[14])}, v{T[7]}, {WS}, s72 offen sc1")
    stamp(8)
    reduce_poll("L_r2", 9, T[6], 71, 16 * 4608, T[11])
    stamp(9)
    bf16r(T[11], T[11])
    g(f"v_add_f32 v{T[11]}, v{T[11]}, v{T[10]}")
    g(f"v_cvt_pk_bf16_f32 v{T[11]}, v{T[11]}, v{T[11]}")
    g("s_mov_b32 exec_lo, 0x000f000f"); g("s_mov_b32 exec_hi, 0x000f000f")
    g(f"buffer_store_short v{T[11]}, v{T[3]}, {OUT}, s{sTo} offen")
    g("s_mov_b64 exec, -1")
    if P['stamps']:
        g("s_waitcnt vmcnt(0)")
        stamp_end(10)
    g("s_endpgm")

    g.label("L_ffn")
    pool[:] = save_pool; g.vm_issued, g.vm_done = save_vm; nst[0] = save_nst
    DNP = {}
    for s in gu_steps:
        gu_item(s)[2]()
    vD1 = T[0]
    g(f"v_add_u32 v{vD1}, 512, v{vWO}")
    g(f"s_cmp_lt_u32 s{sW}, 4"); g("s_cselect_b32 s50, s50, 0")
    dense2_item(0, DNP, vWO, WD, 0, P['pold'], True)[2]()
    dense2_item(1, DNP, vD1, WD, 0, P['pold'], True)[2]()
    vH, vE, vSTa, vRd, vRs, vAW = T[1], T[2], T[3], T[4], T[5], T[6]
    vAC = [T[7], T[8], T[9], T[10]]
    vDS = T[11]
    g(f"""
    v_and_b32 v{T[12]}, 1, v{vJ}
    v_mul_u32_u24 v{vH}, 36, v{T[12]}
    v_lshrrev_b32 v{T[13]}, 1, v{vJ}
    v_lshl_add_u32 v{T[13]}, v{T[13]}, 2, v{vG}
    v_lshrrev_b32 v{T[14]}, 1, v{T[13]}
    v_add_u32 v{vH}, v{vH}, v{T[14]}
    v_lshlrev_b32 v{vH}, {P['psh']}, v{vH}
    v_and_b32 v{T[14]}, 1, v{vG}
    v_lshl_add_u32 v{vH}, v{T[14]}, 4, v{vH}
    v_bfrev_b32 v{T[14]}, 1
    v_cmp_gt_u32 vcc, 18, v{T[13]}
    v_cndmask_b32 v{vH}, v{T[14]}, v{vH}, vcc
    s_and_b32 s76, s{sW}, 3
    s_mul_i32 s70, s76, {9 << P['psh']}
    s_and_b32 s77, s2, {R_-1}
    s_lshl_b32 s77, s77, {HBSH}
    s_add_u32 s70, s70, s77
    s_add_u32 s70, s70, {HB}
    s_lshr_b32 s77, s{sW}, 2
    s_lshl_b32 s77, s77, 11
    s_lshl_b32 s76, s76, 2
    s_add_u32 s77, s77, s76
    v_lshlrev_b32 v{vE}, 10, v{vG}
    v_lshl_add_u32 v{vE}, v{vJ}, 5, v{vE}
    v_add_u32 v{vE}, s77, v{vE}
    v_add_u32 v{vE}, {GUL}, v{vE}
    v_lshlrev_b32 v{vSTa}, 4, v{vL}
    v_add_u32 v{vSTa}, s76, v{vSTa}
    v_add_u32 v{vSTa}, {STB}, v{vSTa}
    v_lshlrev_b32 v{vRd}, 4, v{vL}
    v_and_b32 v{vAW}, 31, v{vL}
    v_lshlrev_b32 v{vAW}, 4, v{vAW}
    v_lshrrev_b32 v{T[12]}, 5, v{vL}
    v_lshlrev_b32 v{vRs}, 4, v{T[12]}
    v_mul_u32_u24 v{T[15]}, 528, v{T[12]}
    v_lshrrev_b32 v{T[12]}, 2, v{vJ}
    v_lshlrev_b32 v{T[12]}, 6, v{T[12]}
    v_lshl_add_u32 v{T[12]}, v{vG}, 4, v{T[12]}
    v_mov_b32 v{T[13]}, 128
    v_mul_u32_u24 v{vDS}, 2304, v{vG}
    v_lshl_add_u32 v{vDS}, v{vJ}, 4, v{vDS}
    s_lshl_b32 s76, s{sW}, 8
    s_add_u32 s71, s{sDBo}, s76
    v_mov_b32 v{vA0}, 0
    v_mov_b32 v{vA0+1}, 0
    v_mov_b32 v{vA0+2}, 0
    v_mov_b32 v{vA0+3}, 0
    v_lshlrev_b32 v{vK}, 1, v{vL}
    """)
    g(f"ds_write_b128 v{vZ}, {q4(vA0)} offset:{ACT+128}")
    for c in range(4):
        g(f"v_and_b32 v{T[14]}, 11, v{vJ}")
        g(f"v_cmp_eq_u32 vcc, {c}, v{T[14]}")
        g(f"v_cndmask_b32 v{vAC[c]}, v{T[13]}, v{T[12]}, vcc")
    vSQ = T[15]
    dense2_item(2, DNP, vWO9, WD, 0, P['pold'], True)[2]()
    AS = [pool.pop(0) for _ in range(5)]
    for s in range(5):
        for r in range(4):
            g(f"v_mov_b32 v{AS[s]+r}, s{sONE}")
    G = P['G']
    HR = [pool.pop(0) for _ in range(G)]
    ht = [g.vm(f"buffer_load_dwordx4 {q4(HR[k])}, v{vH}, {WS}, s70 offen sc1") for k in range(G)]
    run_aux(True)
    stamp(7)
    g(f"s_mov_b32 s{sCNT}, 0")
    g.label("L_hp")
    for k in range(G):
        g(f"s_waitcnt vmcnt({G-1})")
        g(f"v_max3_u32 v{T[12]}, v{HR[k]}, v{HR[k]+1}, v{HR[k]+2}")
        g(f"v_max_u32 v{T[12]}, v{T[12]}, v{HR[k]+3}")
        g(f"v_cmp_eq_u32 vcc, -1, v{T[12]}")
        g(f"s_cbranch_vccz L_hp_ok{k}")
        if P['hsleep']: g(f"s_sleep {P['hsleep']}")
        g(f"buffer_load_dwordx4 {q4(HR[k])}, v{vH}, {WS}, s70 offen sc1")
        if P['psleep'] and G > 1:
            g(f"s_sleep {P['psleep']}")
    g(f"s_add_u32 s{sCNT}, s{sCNT}, 1")
    g(f"s_cmp_lt_u32 s{sCNT}, {P['LIMIT']}"); g("s_cbranch_scc1 L_hp")
    g("s_waitcnt vmcnt(0)")
    H = vA1
    for k in range(G):
        g.label(f"L_hp_ok{k}")
        for r in range(4):
            g(f"v_mov_b32 v{H+r}, v{HR[k]+r}")
        if k < G - 1:
            g("s_branch L_hp_go")
    g.flush()
    g.label("L_hp_go")
    stamp(8)
    E0, E1, STq = pool.pop(0), pool.pop(0), pool.pop(0)
    def amov(s):
        for r in range(4):
            ctl = "quad_perm:[0,1,2,3]" if s == 0 else f"row_shl:{2*s}"
            g(f"v_mov_b32_dpp v{AS[s]+r}, v{H+r} {ctl} row_mask:0xf bank_mask:0x1")
    def gu_mfma(stats):
        amov(0)
        amov(1)
        for s in range(5):
            g(f"v_mfma_f32_16x16x32_bf16 {q4(E0)}, {q4(AS[s])}, {q4(GUP[s][0])}, {'0' if s == 0 else q4(E0)}")
            if s + 2 < 5: amov(s + 2)
            g(f"v_mfma_f32_16x16x32_bf16 {q4(E1)}, {q4(AS[s])}, {q4(GUP[s][1])}, {'0' if s == 0 else q4(E1)}")
            if stats:
                g(f"v_mfma_f32_16x16x32_bf16 {q4(STq)}, {q4(AS[s])}, {q4(AS[s])}, {'0' if s == 0 else q4(STq)}")
        g("s_mov_b32 exec_hi, 0")
        g(f"ds_write2_b32 v{vE}, v{E0}, v{E0+1} offset0:0 offset1:128")
        g(f"ds_write2_b32 v{vE}, v{E1}, v{E1+1} offset0:4 offset1:132")
        if stats:
            g(f"ds_write2_b32 v{vSTa}, v{STq}, v{STq+1} offset0:0 offset1:128")
        g("s_mov_b32 exec_hi, -1")
        g.lgk(0)
        g("s_barrier")
    g(f"s_cmp_lt_u32 s{sW}, 4"); g("s_cbranch_scc1 L_gate")
    gu_mfma(False)
    g("s_branch L_fin")
    g.label("L_gate")
    gu_mfma(True)
    stamp(9)
    G4, U4, CG, CU, SQ, SM = [pool.pop(0) for _ in range(6)]
    g(f"ds_read_b128 {q4(SQ)}, v{vSQ} offset:{STB}")
    g(f"ds_read_b128 {q4(SM)}, v{vRs} offset:{STB+256}")
    g(f"ds_read_b128 {q4(G4)}, v{vRd} offset:{GUL}")
    g(f"ds_read_b128 {q4(CG)}, v{vAW} offset:{GUL+1024}")
    g(f"ds_read_b128 {q4(U4)}, v{vRd} offset:{GUL+2048}")
    g(f"ds_read_b128 {q4(CU)}, v{vAW} offset:{GUL+3072}")
    def sum4(r):
        g(f"v_pk_add_f32 {q2(r)}, {q2(r)}, {q2(r+2)}")
        g(f"v_add_f32 v{r}, v{r}, v{r+1}")
    g.lgk(4)
    sum4(SQ); sum4(SM)
    ln_scalars(SM, SQ, SQ + 1)
    g.lgk(0)
    sum4(G4); sum4(CG); sum4(U4); sum4(CU)
    g(f"v_fma_f32 v{G4}, -v{SM}, v{CG}, v{G4}")
    g(f"v_fma_f32 v{U4}, -v{SM}, v{CU}, v{U4}")
    g(f"v_mul_f32 v{G4}, v{G4}, v{SQ}")
    g(f"v_mul_f32 v{U4}, v{U4}, v{SQ}")
    bf16r(G4, G4); bf16r(U4, U4)
    import math
    k1 = -2 * math.sqrt(2 / math.pi) * math.log2(math.e)
    k3 = k1 * 0.044715
    f2h = lambda f: "0x%08x" % struct.unpack('<I', struct.pack('<f', f))[0]
    g(f"v_mul_f32 v{CG}, v{G4}, v{G4}")
    g(f"v_mov_b32 v{CG+1}, {f2h(k1)}")
    g(f"v_fmac_f32 v{CG+1}, {f2h(k3)}, v{CG}")
    g(f"v_mul_f32 v{CG}, v{CG+1}, v{G4}")
    g(f"v_exp_f32 v{CG}, v{CG}")
    g(f"v_add_f32 v{CG}, 1.0, v{CG}")
    g(f"v_rcp_f32 v{CG}, v{CG}")
    g(f"v_mul_f32 v{CG}, v{CG}, v{G4}")
    bf16r(CG, CG)
    g(f"v_mul_f32 v{CG}, v{CG}, v{U4}")
    g(f"v_cvt_pk_bf16_f32 v{CG}, v{CG}, v{CG}")
    g(f"ds_write_b16 v{vK}, v{CG} offset:{ACT}")
    g.lgk(0)
    AD = AS[0:4]
    for c in range(4):
        g(f"ds_read_b128 {q4(AD[c])}, v{vAC[c]} offset:{ACT}")
    F = [E0, E1, STq]
    for c in range(4):
        g.lgk(3 - c)
        for u in range(2):
            g(f"v_mfma_f32_16x16x32_bf16 {q4(F[u])}, {q4(AD[c])}, {q4(DNP[u][c])}, {'0' if c == 0 else q4(F[u])}")
    g(f"s_cmp_eq_u32 s{sW}, 0"); g("s_cbranch_scc0 L_dn2")
    for c in range(4):
        g(f"v_mfma_f32_16x16x32_bf16 {q4(F[2])}, {q4(AD[c])}, {q4(DNP[2][c])}, {'0' if c == 0 else q4(F[2])}")
    g("s_mov_b32 exec_hi, 0")
    g(f"buffer_store_dwordx4 {q4(F[0])}, v{vDS}, {WS}, s71 offen sc1")
    g(f"buffer_store_dwordx4 {q4(F[1])}, v{vDS}, {WS}, s71 offen offset:1024 sc1")
    g(f"buffer_store_dwordx4 {q4(F[2])}, v{vDS}, {WS}, s71 offen offset:2048 sc1")
    g("s_mov_b32 exec_hi, -1")
    g("s_branch L_fin")
    g.label("L_dn2")
    g("s_mov_b32 exec_hi, 0")
    g(f"buffer_store_dwordx4 {q4(F[0])}, v{vDS}, {WS}, s71 offen sc1")
    g(f"buffer_store_dwordx4 {q4(F[1])}, v{vDS}, {WS}, s71 offen offset:1024 sc1")
    g("s_mov_b32 exec_hi, -1")
    g.label("L_fin")
    if P['stamps']:
        nst[0] = 15
        stamp_end(15)
    g.label("L_end")
    g("s_endpgm")

    tail = ['.section .rodata,"a"', ".p2align 6", f".amdhsa_kernel {KN}",
            "  .amdhsa_next_free_vgpr 256", "  .amdhsa_next_free_sgpr 102", "  .amdhsa_accum_offset 256",
            "  .amdhsa_group_segment_fixed_size 0", "  .amdhsa_kernarg_size 96", "  .amdhsa_user_sgpr_count 2",
            "  .amdhsa_user_sgpr_kernarg_segment_ptr 1", "  .amdhsa_system_sgpr_workgroup_id_x 1", ".end_amdhsa_kernel"]
    return "\n".join(hdr) + "\n" + g.text() + "\n".join(tail) + "\n"


if __name__ == "__main__":
    out = sys.argv[1]
    kw = {}
    for a in sys.argv[2:]:
        k, v = a.split('=')
        try:
            v = int(v)
        except ValueError:
            try:
                v = float(v)
            except ValueError:
                pass
        kw[k] = v
    open(out, 'w').write(gen(**kw))
```

```python
import sys, os
sys.path.insert(0, os.path.dirname(os.path.abspath(__file__)))
from asmlib import Gen

KN = "sequential_preLN__mha_block_cached__glu_gated_geglu__decode_kernel"

ML = 0
HB = 0x1C0000
HBSH = 14
YB = 131072
DB = 1 << 20
WSN = 2 << 20
OOR = 0x80000000
QP = 0
QS = 4096
OB = 4608
N9 = 7168
GUL = 9216
STB = 13312
ACT = 15360
LDS_BYTES = 16384

DEF = dict(rot=5, L1=10, L1b=24, D=16, XB=52, guA='52', wsmall=0.5, R=8, NP=1, G=1, psleep=4, stamps=0,
           polw="nt", polf="nt", pold="nt", wo_start=28, wo_every=8, warm=1, cnt_at=20, LIMIT=20000, pf=0, polp='', psh=7, rsleep=0, hsleep=0, skipq=0, skipo=0, Dk=40, padto=0, dbgst=0)


def q4(b): return f"v[{b}:{b+3}]"
def q2(b): return f"v[{b}:{b+1}]"


def gen(**kw):
    P = dict(DEF); P.update(kw)
    g = Gen()
    R_ = P['R']
    hdr = []
    hdr.append(f"; @launch grid=(256,1,1) block=(512,1,1) lds={LDS_BYTES}")
    hdr.append('.amdgcn_target "amdgcn-amd-amdhsa--gfx950"')
    hdr += [".text", f".globl {KN}", ".p2align 8", f".type {KN},@function", f"{KN}:"]

    vT, vL, vG, vJ = 0, 1, 2, 3
    vK, vWQ, vM, vWO, vWO9 = 4, 5, 6, 10, 11
    vQ, vS, vACC, vA0, vA1 = 12, 16, 20, 24, 28
    T = list(range(32, 48))
    vMW, vFAC, vST, vZ, vCNT, vGU, vML = 48, 49, 50, 51, 52, 53, 54
    vGU4 = 5
    pool = list(range(56, 256, 4))
    KS, VS, WQ, WO, GU, WD, WS, XS, OUT = [f"s[{a}:{a+3}]" for a in range(28, 64, 4)]
    sW, sC, sB, sH, sI, sX = 64, 65, 66, 67, 68, 69
    sKo, sVo, sQo, sTo, sF, sRr = 70, 71, 72, 73, 74, 75
    sPL, sPH = 78, 79
    sMK = {1: "s[80:81]", 2: "s[82:83]", 3: "s[84:85]"}
    sONE, sCNT, sYB, sDBo = 86, 87, 88, 89
    sGo = 90

    nst = [0]
    def stamp(k):
        if not P['stamps']:
            return
        g.lgk(0)
        if nst[0] is not None and nst[0] != 0:
            g(f"v_writelane_b32 v{vST}, s92, {nst[0]-1}")
        g("s_memrealtime s[92:93]")
        nst[0] = k + 1
    def stamp_end(k):
        if not P['stamps']:
            return
        stamp(k)
        g.lgk(0)
        g(f"v_writelane_b32 v{vST}, s92, {k}")
        g(f"s_add_u32 s94, s26, {260<<20}"); g("s_addc_u32 s95, s27, 0")
        g(f"s_lshl_b32 s96, s2, 3"); g(f"s_add_u32 s96, s96, s{sW}"); g("s_lshl_b32 s96, s96, 7")
        g(f"v_lshlrev_b32 v{T[0]}, 2, v{vL}"); g(f"v_add_u32 v{T[0]}, s96, v{T[0]}")
        g("s_mov_b32 exec_hi, 0")
        g(f"global_store_dword v{T[0]}, v{vST}, s[94:95]")
        g("s_mov_b64 exec, -1")
        if P['dbgst']:
            lab = f"L_dbg{k}"
            g(f"s_and_b32 s96, s{sW}, 3"); g("s_cmp_lg_u32 s96, 0"); g(f"s_cbranch_scc1 {lab}")
            g(f"v_readlane_b32 s96, v{vST}, 0")
            g("s_not_b32 s96, s96")
            g(f"v_writelane_b32 v{vST}, s96, 11")
            g(f"v_lshlrev_b32 v{T[0]}, 2, v{vL}")
            g("s_mov_b64 exec, 0xfffe")
            g(f"global_atomic_umax v{T[0]}, v{vST}, s[24:25] sc1")
            g("s_mov_b64 exec, -1")
            g.label(lab)

    def bf16r(d, s):
        g(f"v_cvt_pk_bf16_f32 v{d}, v{s}, v{s}")
        g(f"v_and_b32 v{d}, 0xffff0000, v{d}")

    def allred(op, regs, tmps, rows=4):
        for sh in (8, 4, 2, 1):
            for r in regs:
                g(f"{op}_dpp v{r}, v{r}, v{r} row_ror:{sh} row_mask:0xf bank_mask:0xf")
        for sw in (("16", "32") if rows == 4 else ("16",)):
            for r, t in zip(regs, tmps):
                g(f"v_mov_b32 v{t}, v{r}")
            for r, t in zip(regs, tmps):
                g(f"v_permlane{sw}_swap_b32 v{r}, v{t}")
            for r, t in zip(regs, tmps):
                g(f"{op} v{r}, v{r}, v{t}")

    g("s_cmp_ge_u32 s2, 256"); g("s_cbranch_scc1 L_end")
    g("s_load_dwordx16 s[4:19], s[0:1], 0")
    g("s_load_dwordx8 s[20:27], s[0:1], 64")
    if P['padto']:
        g("s_memrealtime s[98:99]")
    if P['stamps']:
        g("s_memrealtime s[92:93]"); nst[0] = 1
        g(f"v_mov_b32 v{vST}, 0")
    g(f"""
    v_lshrrev_b32 v{T[0]}, 6, v0
    v_and_b32 v{vL}, 63, v0
    v_readfirstlane_b32 s{sW}, v{T[0]}
    s_and_b32 s{sX}, s2, 7
    s_lshr_b32 s{sI}, s2, 3
    s_lshr_b32 s{sB}, s{sI}, 4
    s_and_b32 s76, s{sI}, 15
    s_lshl_b32 s77, s{sX}, 4
    s_add_u32 s76, s76, s77
    s_lshr_b32 s{sH}, s76, 2
    s_lshl_b32 s{sC}, s{sB}, 7
    s_add_u32 s{sC}, s{sC}, s76
    v_lshrrev_b32 v{vG}, 4, v{vL}
    v_and_b32 v{vJ}, 15, v{vL}
    v_lshlrev_b32 v{T[1]}, 4, v{vL}
    s_lshl_b32 s76, s{sW}, 12
    v_add_u32 v{vK}, s76, v{T[1]}
    s_mul_i32 s{sKo}, s{sC}, {P['rot']}
    s_and_b32 s{sKo}, s{sKo}, 15
    s_lshl_b32 s{sKo}, s{sKo}, 15
    s_mov_b32 s{sVo}, s{sKo}
    s_lshl_b32 s76, s{sC}, 19
    s_mul_i32 s77, s{sB}, 1152
    v_lshlrev_b32 v{T[2]}, 2, v{vL}
    v_lshlrev_b32 v{T[3]}, 3, v{vJ}
    v_lshl_add_u32 v{T[4]}, v{vG}, 1, v{T[3]}
    s_mul_i32 s{sTo}, s{sW}, 144
    v_lshlrev_b32 v{vWQ}, 13, v{vG}
    v_lshl_add_u32 v{vWQ}, v{vJ}, 4, v{vWQ}
    s_mul_i32 s{sQo}, s{sW}, {72*8192}
    s_mov_b32 s30, 0x80000
    s_mov_b32 s31, 0x20000
    s_mov_b32 s58, 1152
    s_mov_b32 s59, 0x20000
    s_mov_b32 s39, 0x20000
    s_lshl_b32 s91, s{sH}, 8
    s_sub_u32 s38, {576*8192}, s91
    s_waitcnt lgkmcnt(0)
    s_add_u32 s56, s4, s77
    s_addc_u32 s57, s5, 0
    s_add_u32 s28, s6, s76
    s_addc_u32 s29, s7, 0
    """)
    if P['skipq']: g("s_mov_b32 s38, 0")
    X4 = pool.pop(0)
    XE = pool.pop(0)
    g.vm(f"buffer_load_dwordx4 {q4(X4)}, v{T[1]}, {XS}, 0 offen")
    g.vm(f"buffer_load_dword v{XE}, v{T[2]}, {XS}, 0 offen offset:1024")
    g.vm(f"buffer_load_ushort v{XE+1}, v{T[4]}, {XS}, s{sTo} offen")
    tx = g.vm(f"buffer_load_ushort v{XE+2}, v{T[4]}, {XS}, s{sTo} offen offset:128")
    g(f"s_add_u32 s36, s10, s91"); g("s_addc_u32 s37, s11, 0")

    queue = []
    items = {}
    aux = []

    def kv_item(kind, n):
        def issue():
            r = pool.pop(0)
            srd, so = (KS, sKo) if kind == 'K' else (VS, sVo)
            tok = g.vm(f"buffer_load_dwordx4 {q4(r)}, v{vK}, {srd}, s{so} offen offset:{(n&3)*1024} nt")
            if n & 3 == 3 and n != 63:
                g(f"s_add_u32 s{so}, s{so}, 0x8000"); g(f"s_and_b32 s{so}, s{so}, 0x7ffff")
            items[(kind, n)] = (tok, r)
        return (1, 1, issue)

    def wq_item(m):
        def issue():
            r = pool.pop(0)
            tok = g.vm(f"buffer_load_dwordx4 {q4(r)}, v{vWQ}, {WQ}, s{sQo} offen {P['polw']}")
            if m != 17:
                g(f"s_add_u32 s{sQo}, s{sQo}, 0x8000")
            items[('Q', m)] = (tok, r)
        return (1, 1, issue)

    WOP = {}
    def dense2_item(key, store, vaddr, srd, base, pol, lazy=False):
        def issue():
            rs = [pool.pop(0) for _ in range(4)]
            outs = [] if lazy else [pool.pop(0) for _ in range(4)]
            raw = []
            for e in range(8):
                if e % 4 == 0:
                    g(f"s_mov_b32 s{sTo}, {base + (e//4)*4608}")
                r = rs[e // 2] + 2 * (e & 1)
                raw.append(r)
                tok = g.vm(f"buffer_load_dwordx2 {q2(r)}, v{vaddr}, {srd}, s{sTo} offen offset:{(e%4)*1152} {pol}")
            def fin():
                if lazy:
                    outs.extend(pool.pop(0) for _ in range(4))
                for k in range(4):
                    for d in range(2):
                        g(f"v_perm_b32 v{outs[2*d]+k}, v{raw[2*k+1]+d}, v{raw[2*k]+d}, s{sPL}")
                        g(f"v_perm_b32 v{outs[2*d+1]+k}, v{raw[2*k+1]+d}, v{raw[2*k]+d}, s{sPH}")
                pool.extend(rs)
                store[key] = outs
            aux.append((tok, fin))
        return (8, 8, issue)

    GUP = {}
    def gu_item(s):
        def issue():
            rs = [pool.pop(0) for _ in range(2)]
            raw = [rs[e // 4] + (e & 3) for e in range(8)]
            for e in range(8):
                g(f"s_add_u32 s{sTo}, s{sGo}, {(32*s+e)*9216}")
                tok = g.vm(f"buffer_load_dword v{raw[e]}, v{vGU4 if s == 4 else vGU}, {GU}, s{sTo} offen {P['polf']}")
            def fin():
                outs = [pool.pop(0) for _ in range(2)]
                for k in range(4):
                    g(f"v_perm_b32 v{outs[0]+k}, v{raw[2*k+1]}, v{raw[2*k]}, s{sPL}")
                    g(f"v_perm_b32 v{outs[1]+k}, v{raw[2*k+1]}, v{raw[2*k]}, s{sPH}")
                pool.extend(rs)
                GUP[s] = outs
            aux.append((tok, fin))
        return (4, 8, issue)

    def fn_item(fn, nv=1):
        return (0, nv, fn)

    wts = {}
    def wout():
        return sum(wts.get(t, 0) for t in range(g.vm_done, g.vm_issued))
    def pump(limit):
        while queue:
            nq, nv, issue = queue[0]
            if len(pool) < nq or wout() >= limit or g.outstanding() + nv > 60:
                break
            queue.pop(0)
            t0 = g.vm_issued
            issue()
            for t in range(t0, g.vm_issued):
                wts[t] = 1.0 if nv == 1 else P['wsmall']

    def run_aux(force=False):
        while aux and (force or aux[0][0] < g.vm_done):
            tok, fn = aux.pop(0)
            g.wait(tok)
            fn()

    def setup2():
        g(f"""
        s_add_u32 s32, s8, s76
        s_addc_u32 s33, s9, 0
        s_mov_b32 s34, 0x80000
        s_mov_b32 s35, 0x20000
        s_mov_b32 s52, s26
        s_mov_b32 s53, s27
        s_mov_b32 s54, {WSN}
        s_mov_b32 s55, 0x20000
        s_mul_i32 s77, s{sH}, {128*1152}
        s_add_u32 s40, s12, s77
        s_addc_u32 s41, s13, 0
        s_mov_b32 s42, {0 if P['skipo'] else 128*1152}
        s_mov_b32 s43, 0x20000
        s_mul_i32 s{sF}, s{sX}, 18
        s_add_u32 s{sF}, s{sF}, s{sI}
        s_mul_i32 s{sRr}, s{sX}, 9
        s_add_u32 s{sRr}, s{sRr}, s{sI}
        s_sub_u32 s{sRr}, s{sRr}, 18
        s_mul_i32 s{sYB}, s{sC}, 2304
        s_add_u32 s{sYB}, s{sYB}, {YB}
        s_mul_i32 s{sDBo}, s{sF}, 4608
        s_add_u32 s{sDBo}, s{sDBo}, {DB}
        s_sub_u32 s76, s{sDBo}, {144*16}
        s_cmp_lt_u32 s{sI}, 18
        s_cselect_b32 s76, s76, {OOR}
        s_lshl_b32 s77, s{sC}, 6
        s_add_u32 s77, s77, {ML}
        s_sub_u32 s77, s77, {432*16}
        v_lshlrev_b32 v{T[5]}, 4, v0
        v_add_u32 v{T[6]}, s{sYB}, v{T[5]}
        v_add_u32 v{T[7]}, s76, v{T[5]}
        v_cmp_le_u32 vcc, 144, v0
        v_cndmask_b32 v{T[6]}, v{T[6]}, v{T[7]}, vcc
        v_add_u32 v{T[7]}, s77, v{T[5]}
        v_cmp_le_u32 vcc, 432, v0
        v_cndmask_b32 v{T[6]}, v{T[6]}, v{T[7]}, vcc
        v_bfrev_b32 v{T[7]}, 1
        v_cmp_le_u32 vcc, 436, v0
        v_cndmask_b32 v{T[6]}, v{T[6]}, v{T[7]}, vcc
        s_lshl_b32 s76, s{sRr}, {P['psh']}
        s_add_u32 s76, s76, {HB}
        s_sub_u32 s77, s{sI}, 18
        s_cmp_lt_u32 s77, 9
        s_cselect_b32 s76, s76, {OOR}
        v_lshrrev_b32 v{T[7]}, 1, v{vL}
        v_lshlrev_b32 v{T[7]}, {HBSH}, v{T[7]}
        v_and_b32 v{T[8]}, 1, v{vL}
        v_lshl_add_u32 v{T[7]}, v{T[8]}, 4, v{T[7]}
        v_add_u32 v{T[7]}, s76, v{T[7]}
        v_subrev_u32 v{T[8]}, 448, v0
        v_cmp_gt_u32 vcc, {2*R_}, v{T[8]}
        v_cndmask_b32 v{T[6]}, v{T[6]}, v{T[7]}, vcc
        v_mov_b32 v{T[8]}, -1
        v_mov_b32 v{T[9]}, -1
        v_mov_b32 v{T[10]}, -1
        v_mov_b32 v{T[11]}, -1
        """)
        g.vm(f"buffer_store_dwordx4 {q4(T[8])}, v{T[6]}, {WS}, 0 offen sc1")
        g(f"""
        v_and_b32 v{T[5]}, 1, v{vL}
        v_lshlrev_b32 v{T[5]}, 4, v{T[5]}
        v_mov_b32 v{T[7]}, 0xffff
        v_lshlrev_b32 v{T[5]}, v{T[5]}, v{T[7]}
        v_bfe_u32 v{T[7]}, v{vL}, 1, 2
        """)
        for r in range(4):
            g(f"v_cmp_eq_u32 vcc, {r}, v{T[7]}")
            g(f"v_cndmask_b32 v{vM+r}, 0, v{T[5]}, vcc")
        g(f"""
        s_mov_b32 s{sONE}, 0x3f803f80
        s_mov_b32 s{sPL}, 0x05040100
        s_mov_b32 s{sPH}, 0x07060302
        s_mov_b32 s80, 0x22222222
        s_mov_b32 s81, 0x22222222
        s_mov_b32 s82, 0x44444444
        s_mov_b32 s83, 0x44444444
        s_mov_b32 s84, 0x88888888
        s_mov_b32 s85, 0x88888888
        v_mov_b32 v{vZ}, 0
        v_mul_u32_u24 v{vWO}, 9216, v{vG}
        v_lshl_add_u32 v{vWO}, v{vJ}, 3, v{vWO}
        s_mul_i32 s76, s{sW}, 36864
        s_add_u32 s76, s76, 1024
        v_add_u32 v{vWO9}, s76, v{vWO}
        s_lshl_b32 s76, s{sW}, 7
        v_add_u32 v{vWO}, s76, v{vWO}
        """)

    def warm():
        r = pool.pop(0)
        g("s_getpc_b64 s[76:77]")
        g(f"v_lshlrev_b32 v{r}, 6, v0")
        g(f"v_min_u32 v{r}, L_end-L_warm-64, v{r}")
        g.label("L_warm")
        tok = g.vm(f"global_load_dword v{r+1}, v{r}, s[76:77]")
        aux.append((tok, lambda: pool.append(r)))

    qi = 0
    for n in range(64):
        queue.append(kv_item('K', n))
        if n & 3 == 3 and qi < 18:
            for _ in range(4):
                if qi < 18:
                    queue.append(wq_item(qi)); qi += 1
            if n == 3:
                queue.append(fn_item(setup2))
                if P['warm']:
                    queue.append((1, 1, warm))
    published = [False]
    def cnt_load():
        g(f"s_cmp_lg_u32 s{sW}, 0"); g("s_cbranch_scc1 L_nocnt")
        g("s_mov_b64 exec, 1")
        g.emit(f"global_load_dword v{vCNT}, v{vZ}, s[24:25] sc1"); g.vm_issued -= 1
        g("s_mov_b64 exec, -1")
        g.label("L_nocnt")
        items['cnt'] = g.vm_issued
    def barrier_x():
        assert published[0]
        stamp(4)
        g.wait(items['cnt'])
        g(f"s_cmp_lg_u32 s{sW}, 0"); g("s_cbranch_scc1 L_cnt_ok")
        g(f"v_readfirstlane_b32 s77, v{vML}")
        g(f"v_readfirstlane_b32 s76, v{vCNT}")
        g("s_or_b32 s77, s77, 255"); g("s_add_u32 s77, s77, 1")
        g("s_cmp_eq_u32 s76, s77"); g("s_cbranch_scc1 L_cnt_ok")
        g(f"s_mov_b32 s{sCNT}, 0")
        g.label("L_cnt_spin")
        g("s_sleep 8")
        g.emit(f"global_load_dword v{vCNT}, v{vZ}, s[24:25] sc1"); g.vm_issued -= 1
        g("s_waitcnt vmcnt(0)")
        g(f"v_readfirstlane_b32 s76, v{vCNT}")
        g(f"s_add_u32 s{sCNT}, s{sCNT}, 1")
        g(f"s_cmp_ge_u32 s{sCNT}, {P['LIMIT']}"); g("s_cbranch_scc1 L_cnt_ok")
        g("s_cmp_eq_u32 s76, s77"); g("s_cbranch_scc0 L_cnt_spin")
        g.label("L_cnt_ok")
        g("s_barrier")
        g(f"s_lshr_b32 s76, s{sC}, 2"); g("s_lshl_b32 s76, s76, 8")
        g(f"v_and_b32 v{vCNT}, 31, v{vL}"); g(f"v_lshlrev_b32 v{vCNT}, 3, v{vCNT}")
        g(f"v_add_u32 v{vCNT}, s76, v{vCNT}")
        tok = g.vm(f"buffer_load_dwordx2 {q2(vML)}, v{vCNT}, {WS}, 0 offen offset:{ML} sc1")
        def fin():
            g(f"s_mov_b32 s{sCNT}, 0")
            g.label("L_ml_chk")
            g(f"v_max_u32 v{T[0]}, v{vML}, v{vML+1}")
            g(f"v_cmp_eq_u32 vcc, -1, v{T[0]}")
            g("s_cbranch_vccz L_ml_ok")
            g("s_sleep 8")
            g.emit(f"buffer_load_dwordx2 {q2(vML)}, v{vCNT}, {WS}, 0 offen offset:{ML} sc1"); g.vm_issued -= 1
            g("s_waitcnt vmcnt(0)")
            g(f"s_add_u32 s{sCNT}, s{sCNT}, 1")
            g(f"s_cmp_lt_u32 s{sCNT}, {P['LIMIT']}"); g("s_cbranch_scc1 L_ml_chk")
            g.label("L_ml_ok")
            g(f"v_mov_b32 v{T[0]}, v{vML}")
            allred("v_max_f32", [T[0]], [T[1]], rows=2)
            g(f"v_sub_f32 v{T[2]}, v{vML}, v{T[0]}")
            g(f"v_exp_f32 v{T[2]}, v{T[2]}")
            g(f"v_sub_f32 v{T[3]}, v{vMW}, v{T[0]}")
            g(f"v_mul_f32 v{T[2]}, v{T[2]}, v{vML+1}")
            g(f"v_exp_f32 v{T[3]}, v{T[3]}")
            allred("v_add_f32", [T[2]], [T[1]], rows=2)
            g(f"v_rcp_f32 v{T[2]}, v{T[2]}")
            g(f"v_mul_f32 v{vFAC}, v{T[2]}, v{T[3]}")
        aux.append((tok, fin))

    def setup_ffn():
        g(f"""
        s_cmp_lt_u32 s{sW}, 4
        s_cselect_b32 s44, s16, s18
        s_cselect_b32 s45, s17, s19
        s_cmp_lt_u32 s{sI}, 18
        s_cselect_b32 s76, s{sF}, 0
        s_lshl_b32 s77, s76, 6
        s_add_u32 s44, s44, s77
        s_addc_u32 s45, s45, 0
        s_sub_u32 s46, {576*9216}, s77
        s_mul_i32 s77, s76, {32*1152}
        s_add_u32 s48, s20, s77
        s_addc_u32 s49, s21, 0
        s_cmp_lt_u32 s{sI}, 18
        s_cselect_b32 s46, s46, 0
        s_cselect_b32 s50, {32*1152}, 0
        s_mov_b32 s47, 0x20000
        s_mov_b32 s51, 0x20000
        s_and_b32 s{sGo}, s{sW}, 3
        s_mul_i32 s{sGo}, s{sGo}, {144*9216}
        v_mul_u32_u24 v{vGU}, {8*9216}, v{vG}
        v_lshl_add_u32 v{vGU}, v{vJ}, 2, v{vGU}
        v_bfrev_b32 v{vGU4}, 1
        v_cmp_gt_u32 vcc, 32, v{vL}
        v_cndmask_b32 v{vGU4}, v{vGU4}, v{vGU}, vcc
        """)

    wo_list = [dense2_item(s, WOP, vWO, WO, s * 36864, P['polw']) for s in range(4)] + [dense2_item(9, WOP, vWO9, WO, 0, P['polw'])]
    for n in range(64):
        if n == P['cnt_at']:
            queue.append(fn_item(cnt_load, 0))
        if n == P['XB']:
            queue.append(fn_item(barrier_x))
        queue.append(kv_item('V', n))
    def insert_after_main(idx, item):
        cnt = -1
        for pos, it in enumerate(queue):
            if it[2].__qualname__.endswith('kv_item.<locals>.issue'):
                cnt += 1
                if cnt == idx:
                    queue.insert(pos + 1, item)
                    return
        raise Exception
    for k, it in enumerate(wo_list):
        insert_after_main(P['wo_start'] + k * P['wo_every'] - 1, it)
    def prefetch():
        g(f"""
        s_lshl_b32 s76, s{sI}, 3
        s_add_u32 s76, s76, s{sW}
        s_mov_b32 s60, s16
        s_mov_b32 s61, s17
        s_cmp_ge_u32 s76, 81
        s_cselect_b32 s60, s18, s60
        s_cselect_b32 s61, s19, s61
        s_cselect_b32 s77, 81, 0
        s_mul_i32 s{sTo}, s{sX}, 1152
        s_mul_i32 s62, s{sX}, {576*1152}
        s_cmp_ge_u32 s76, 162
        s_cselect_b32 s60, s20, s60
        s_cselect_b32 s61, s21, s61
        s_cselect_b32 s77, 162, s77
        s_cselect_b32 s{sTo}, s62, s{sTo}
        s_cselect_b32 s63, 0, {9216-1152}
        s_sub_u32 s77, s76, s77
        s_lshl_b32 s77, s77, 6
        v_add_u32 v{T[14]}, s77, v{vL}
        v_mul_u32_u24 v{T[15]}, 7282, v{T[14]}
        v_lshrrev_b32 v{T[15]}, 16, v{T[15]}
        v_mul_u32_u24 v{T[15]}, s63, v{T[15]}
        v_lshl_add_u32 v{T[14]}, v{T[14]}, 7, v{T[15]}
        s_cmp_ge_u32 s76, 243
        s_cselect_b32 s62, 0, {576*9216}
        s_mov_b32 s63, 0x20000
        """)
        dummy = pool.pop(0)
        g.vm(f"buffer_load_dword v{dummy}, v{T[14]}, {OUT}, s{sTo} offen {P['polp']}")
    if P['pf']:
        queue.append((1, 1, prefetch))
    gu_steps = list(range(5))
    guA = [int(t) for t in str(P['guA']).split(',') if t != '']

    pump(P['L1'])
    g.wait(tx)
    a, b_, t1, t2 = T[12], T[13], T[14], T[15]
    xs = [X4, X4 + 1, X4 + 2, X4 + 3, XE]
    for k, r in enumerate(xs):
        g(f"v_dot2_f32_bf16 v{a}, v{r}, s{sONE}, {'0' if k == 0 else 'v%d' % a}")
        g(f"v_dot2_f32_bf16 v{b_}, v{r}, v{r}, {'0' if k == 0 else 'v%d' % b_}")
    allred("v_add_f32", [a, b_], [t1, t2])
    def ln_scalars(sm, sq, t):
        g(f"v_mul_f32 v{sm}, {1.0/576!r}, v{sm}")
        g(f"v_mul_f32 v{t}, v{sm}, v{sm}")
        g(f"v_fma_f32 v{sq}, v{sq}, s91, -v{t}")
        g(f"v_max_f32 v{sq}, 0, v{sq}")
        bf16r(sq, sq)
        bf16r(sm, sm)
        g(f"v_add_f32 v{sq}, 0x3727c5ac, v{sq}")
        bf16r(sq, sq)
        g(f"v_sqrt_f32 v{sq}, v{sq}")
        bf16r(sq, sq)
        g(f"v_rcp_f32 v{sq}, v{sq}")
    import struct
    inv576 = struct.unpack('<I', struct.pack('<f', 1.0 / 576))[0]
    g(f"s_mov_b32 s91, {inv576:#x}")
    ln_scalars(a, b_, t1)
    for k in (1, 2):
        g(f"v_lshlrev_b32 v{XE+k}, 16, v{XE+k}")
        g(f"v_sub_f32 v{XE+k}, v{XE+k}, v{a}")
        bf16r(XE + k, XE + k)
        g(f"v_mul_f32 v{XE+k}, v{XE+k}, v{b_}")
        g(f"v_cvt_pk_bf16_f32 v{XE+k}, v{XE+k}, v{XE+k}")
    pool.append(X4)
    stamp(1)
    for m in range(18):
        pump(P['L1'])
        A = vA0 if m & 1 == 0 else vA1
        for r in range(4):
            g(f"v_and_b32_dpp v{A+r}, v{XE+1+(m>>4)}, v{vM+r} row_newbcast:{m&15} row_mask:0xf bank_mask:0xf")
        tok, r = items[('Q', m)]
        g.wait(tok)
        g(f"v_mfma_f32_16x16x32_bf16 {q4(vACC)}, {q4(A)}, {q4(r)}, {'0' if m == 0 else q4(vACC)}")
        pool.append(r)
        run_aux()
    pool.append(XE)
    pump(P['L1b'])
    g(f"""
    v_lshlrev_b32 v{T[0]}, 5, v{vJ}
    v_lshl_add_u32 v{T[0]}, v{vG}, 4, v{T[0]}
    s_lshl_b32 s76, s{sW}, 9
    v_add_u32 v{T[0]}, s76, v{T[0]}
    s_mov_b32 exec_hi, 0
    ds_write_b128 v{T[0]}, {q4(vACC)} offset:{QP}
    s_mov_b32 exec_hi, -1
    v_lshlrev_b32 v{T[1]}, 3, v{vL}
    v_lshlrev_b32 v{T[2]}, 2, v{vL}
    v_lshlrev_b32 v{T[3]}, 4, v{vJ}
    s_waitcnt lgkmcnt(0)
    s_barrier
    """)
    tq = [vA0, vA1, vACC, vS]
    for k in range(4):
        g(f"ds_read2st64_b64 {q4(tq[k])}, v{T[1]} offset0:{2*k} offset1:{2*k+1}")
    g(f"s_cmp_eq_u32 s{sW}, 0"); g("s_cbranch_scc0 L_noadd")
    g(f"v_mov_b32 v{T[4]}, 1"); g("s_mov_b64 exec, 1")
    g.emit(f"global_atomic_add v{vML}, v{vZ}, v{T[4]}, s[24:25] sc0 sc1"); g.vm_issued -= 1
    g("s_mov_b64 exec, -1")
    g.label("L_noadd")
    g.lgk(0)
    for k in range(4):
        g(f"v_pk_add_f32 {q2(tq[k])}, {q2(tq[k])}, {q2(tq[k]+2)}")
    g(f"v_pk_add_f32 {q2(tq[0])}, {q2(tq[0])}, {q2(tq[1])}")
    g(f"v_pk_add_f32 {q2(tq[2])}, {q2(tq[2])}, {q2(tq[3])}")
    g(f"v_pk_add_f32 {q2(tq[0])}, {q2(tq[0])}, {q2(tq[2])}")
    g(f"v_cvt_pk_bf16_f32 v{tq[0]}, v{tq[0]}, v{tq[0]+1}")
    g(f"ds_write_b32 v{T[2]}, v{tq[0]} offset:{QS}")
    g.lgk(0)
    g(f"ds_read_b128 {q4(vQ)}, v{T[3]} offset:{QS}")
    g.lgk(0)
    stamp(2)

    for gk in range(16):
        pump(P['D'])
        rs = [items[('K', 4 * gk + u)] for u in range(4)]
        g.wait(rs[3][0])
        t = T[0:4]
        for k in range(4):
            for u in range(4):
                g(f"v_dot2_f32_bf16 v{t[u]}, v{rs[u][1]+k}, v{vQ+k}, {'0' if k == 0 else 'v%d' % t[u]}")
        for u in range(4):
            pool.append(rs[u][1])
        backlog = gk < 15 and ('K', 4 * gk + 7) in items and items[('K', 4 * gk + 7)][0] < g.vm_done
        pump(P['Dk'] if backlog else P['D'])
        a, b2, c = T[4], T[5], T[6]
        g(f"v_add_f32_dpp v{a}, v{t[0]}, v{t[0]} row_ror:8 row_mask:0xf bank_mask:0x3")
        g(f"v_add_f32_dpp v{b2}, v{t[2]}, v{t[2]} row_ror:8 row_mask:0xf bank_mask:0x3")
        g(f"v_add_f32_dpp v{a}, v{t[1]}, v{t[1]} row_ror:8 row_mask:0xf bank_mask:0xc")
        g(f"v_add_f32_dpp v{b2}, v{t[3]}, v{t[3]} row_ror:8 row_mask:0xf bank_mask:0xc")
        g(f"v_add_f32_dpp v{c}, v{a}, v{a} row_half_mirror row_mask:0xf bank_mask:0x5")
        g(f"v_add_f32_dpp v{c}, v{b2}, v{b2} row_half_mirror row_mask:0xf bank_mask:0xa")
        g(f"v_add_f32_dpp v{c}, v{c}, v{c} quad_perm:[1,0,3,2] row_mask:0xf bank_mask:0xf")
        lam = gk & 3
        S = vS + (gk >> 2)
        if lam == 0:
            g(f"v_add_f32_dpp v{S}, v{c}, v{c} quad_perm:[2,3,0,1] row_mask:0xf bank_mask:0xf")
        else:
            g(f"v_add_f32_dpp v{c}, v{c}, v{c} quad_perm:[2,3,0,1] row_mask:0xf bank_mask:0xf")
            g(f"v_cndmask_b32 v{S}, v{S}, v{c}, {sMK[lam]}")
        run_aux()
    stamp(3)
    for r in range(4): g(f"v_cvt_pk_bf16_f32 v{vS+r}, v{vS+r}, v{vS+r}")
    for r in range(4): g(f"v_and_b32 v{vS+r}, 0xffff0000, v{vS+r}")
    for r in range(4): g(f"v_mul_f32 v{vS+r}, 0x3db504f3, v{vS+r}")
    for r in range(4): g(f"v_cvt_pk_bf16_f32 v{vS+r}, v{vS+r}, v{vS+r}")
    for r in range(4): g(f"v_and_b32 v{vS+r}, 0xffff0000, v{vS+r}")
    g(f"v_max3_f32 v{vMW}, v{vS}, v{vS+1}, v{vS+2}")
    g(f"v_max_f32 v{vMW}, v{vMW}, v{vS+3}")
    allred("v_max_f32", [vMW], [T[0]])
    for r in range(4): g(f"v_sub_f32 v{vS+r}, v{vS+r}, v{vMW}")
    for r in range(4): g(f"v_mul_f32 v{vS+r}, 0x3fb8aa3b, v{vS+r}")
    for r in range(4): g(f"v_exp_f32 v{vS+r}, v{vS+r}")
    g(f"v_mul_f32 v{vMW}, 0x3fb8aa3b, v{vMW}")
    g(f"v_add_f32 v{vMW+1}, v{vS}, v{vS+1}")
    g(f"v_add_f32 v{T[1]}, v{vS+2}, v{vS+3}")
    g(f"v_add_f32 v{vMW+1}, v{vMW+1}, v{T[1]}")
    for r in range(4): g(f"v_cvt_pk_bf16_f32 v{vS+r}, v{vS+r}, v{vS+r}")
    allred("v_add_f32", [vMW + 1], [T[0]])
    g(f"s_lshl_b32 s76, s{sC}, 3"); g(f"s_add_u32 s76, s76, s{sW}"); g("s_lshl_b32 s76, s76, 3")
    g("s_mov_b64 exec, 1")
    g.vm(f"buffer_store_dwordx2 {q2(vMW)}, v{vZ}, {WS}, s76 offen offset:{ML} sc1")
    g("s_mov_b64 exec, -1")
    published[0] = True

    beta = {0: 0, 1: 2, 2: 1, 3: 3}
    for n in range(64):
        pump(P['D'])
        A = vA0 if n & 1 == 0 else vA1
        j = 4 * beta[n & 3] + ((n >> 2) & 3)
        for r in range(4):
            g(f"v_and_b32_dpp v{A+r}, v{vS+(n>>4)}, v{vM+r} row_newbcast:{j} row_mask:0xf bank_mask:0xf")
        if n == 62:
            g(f"""
            v_and_b32 v{T[8]}, 1, v{vG}
            v_lshlrev_b32 v{T[8]}, 3, v{T[8]}
            v_lshl_add_u32 v{T[8]}, v{vJ}, 4, v{T[8]}
            s_mul_i32 s76, s{sW}, 320
            v_add_u32 v{T[8]}, s76, v{T[8]}
            v_and_b32 v{T[9]}, 7, v{vL}
            v_mul_u32_u24 v{T[9]}, 320, v{T[9]}
            v_lshl_add_u32 v{T[9]}, v{vG}, 4, v{T[9]}
            s_lshl_b32 s76, s{sW}, 6
            v_add_u32 v{T[10]}, s76, v{T[9]}
            v_lshlrev_b32 v{T[11]}, 4, v{vJ}
            s_lshl_b32 s76, s{sW}, 8
            v_add_u32 v{T[12]}, s76, v{T[11]}
            v_lshlrev_b32 v{T[13]}, 4, v{vL}
            s_lshl_b32 s76, s{sW}, 9
            v_add_u32 v{T[13]}, s76, v{T[13]}
            """)
        tok, r = items[('V', n)]
        g.wait(tok)
        g(f"v_mfma_f32_16x16x32_bf16 {q4(vACC)}, {q4(A)}, {q4(r)}, {'0' if n == 0 else q4(vACC)}")
        pool.append(r)
        if n == 0:
            setup_ffn()
        while n in guA:
            guA.remove(n)
            gu_item(gu_steps.pop(0))[2]()
        if n < 63:
            run_aux()
    assert not queue
    assert len(WOP) == 5
    stamp(5)
    for r in range(4): g(f"v_mul_f32 v{vACC+r}, v{vACC+r}, v{vFAC}")
    g(f"v_cvt_pk_bf16_f32 v{vACC}, v{vACC}, v{vACC+1}")
    g(f"v_cvt_pk_bf16_f32 v{vACC+1}, v{vACC+2}, v{vACC+3}")
    g("s_mov_b32 exec_hi, 0")
    g(f"ds_write_b64 v{T[8]}, {q2(vACC)} offset:{OB}")
    g("s_mov_b32 exec_hi, -1")
    g.lgk(0)
    g("s_barrier")
    AO = [pool.pop(0) for _ in range(5)]
    DD = [pool.pop(0) for _ in range(4)]
    NN = [pool.pop(0) for _ in range(4)]
    Yq = pool.pop(0); Zq = pool.pop(0)
    NR = NN + [vA0, vA1, vQ, vS]
    def main_mfma(lo, hi):
        for k in range(lo, hi):
            s, c = k // 4, k % 4
            g(f"v_mfma_f32_16x16x32_bf16 {q4(DD[c])}, {q4(AO[s])}, {q4(WOP[s][c])}, {'0' if s == 0 else q4(DD[c])}")
    def post_main():
        for c in range(4): g(f"v_pk_add_f32 {q2(DD[c])}, {q2(DD[c])}, {q2(DD[c]+2)}")
        for c in range(4): g(f"v_add_f32 v{Yq+c}, v{DD[c]}, v{DD[c]+1}")
        g(f"v_permlane16_swap_b32 v{Yq}, v{Yq+1}")
        g(f"v_permlane16_swap_b32 v{Yq+2}, v{Yq+3}")
        g(f"v_add_f32 v{Zq}, v{Yq}, v{Yq+1}"); g(f"v_add_f32 v{Zq+1}, v{Yq}, v{Yq+1}")
        g(f"v_add_f32 v{Zq+2}, v{Yq+2}, v{Yq+3}"); g(f"v_add_f32 v{Zq+3}, v{Yq+2}, v{Yq+3}")
        g(f"v_permlane16_swap_b32 v{Zq}, v{Zq+1}")
        g(f"v_permlane16_swap_b32 v{Zq+2}, v{Zq+3}")
        g("s_mov_b64 exec, 0xffff")
        g.emit(f"buffer_store_dwordx4 {q4(Zq)}, v{T[12]}, {WS}, s{sYB} offen sc1"); g.vm_issued -= 1
        g("s_mov_b64 exec, -1")
    g(f"s_cmp_ge_u32 s{sW}, 4"); g("s_cbranch_scc1 L_wo_hi")
    g(f"ds_read_b128 {q4(AO[4])}, v{T[10]} offset:{OB}")
    for s in range(4):
        g(f"ds_read_b128 {q4(AO[s])}, v{T[9]} offset:{OB+64*s}")
    g.lgk(4)
    for c in range(4):
        g(f"v_mfma_f32_16x16x32_bf16 {q4(NN[c])}, {q4(AO[4])}, {q4(WOP[9][c])}, 0")
    g.lgk(0)
    main_mfma(0, 6)
    for c in range(4): g(f"v_pk_add_f32 {q2(NN[c])}, {q2(NN[c])}, {q2(NN[c]+2)}")
    main_mfma(6, 7)
    for c in range(4): g(f"v_add_f32 v{Yq+c}, v{NN[c]}, v{NN[c]+1}")
    g("s_mov_b32 exec_hi, 0")
    g(f"ds_write_b128 v{T[13]}, {q4(Yq)} offset:{N9}")
    g("s_mov_b32 exec_hi, -1")
    main_mfma(7, 10)
    g.lgk(0)
    g("s_barrier")
    for p in range(8):
        g(f"ds_read_b128 {q4(NR[p])}, v{T[11]} offset:{N9+256*p}")
    main_mfma(10, 16)
    post_main()
    g(f"s_cmp_eq_u32 s{sW}, 3"); g("s_cbranch_scc0 L_wo_done")
    g.lgk(0)
    st = 1
    while st < 8:
        for p in range(0, 8, 2 * st):
            g(f"v_pk_add_f32 {q2(NR[p])}, {q2(NR[p])}, {q2(NR[p+st])}")
            g(f"v_pk_add_f32 {q2(NR[p]+2)}, {q2(NR[p]+2)}, {q2(NR[p+st]+2)}")
        st *= 2
    g("s_mov_b64 exec, 0xffff")
    g.emit(f"buffer_store_dwordx4 {q4(NR[0])}, v{T[11]}, {WS}, s{sYB} offen offset:2048 sc1"); g.vm_issued -= 1
    g("s_mov_b64 exec, -1")
    g("s_branch L_wo_done")
    g.label("L_wo_hi")
    for s in range(4):
        g(f"ds_read_b128 {q4(AO[s])}, v{T[9]} offset:{OB+64*s}")
    g("s_barrier")
    g.lgk(0)
    main_mfma(0, 16)
    post_main()
    g.flush()
    g.label("L_wo_done")
    g.lgk(0)
    stamp(6)
    for k in WOP: pool.extend(WOP[k])
    pool.extend(AO + DD + NN[1:4])
    g(f"s_cmp_lt_u32 s{sI}, 18"); g("s_cbranch_scc1 L_ffn")
    g(f"s_cmp_lt_u32 s{sI}, 27"); g("s_cbranch_scc0 L_fin")
    save_pool = list(pool); save_vm = (g.vm_issued, g.vm_done); save_nst = nst[0]

    g(f"s_cmp_ge_u32 s{sW}, {P['NP']}"); g("s_cbranch_scc1 L_fin")
    g(f"""
    s_cmp_ge_u32 s{sRr}, 36
    s_cselect_b32 s76, 1, 0
    s_mul_i32 s77, s76, 36
    s_sub_u32 s77, s{sRr}, s77
    s_mov_b32 s56, s4
    s_mov_b32 s57, s5
    s_mov_b32 s58, 2304
    s_mov_b32 s59, 0x20000
    s_mov_b32 s60, s22
    s_mov_b32 s61, s23
    s_mov_b32 s62, 2304
    s_mov_b32 s63, 0x20000
    v_and_b32 v{T[0]}, 3, v{vL}
    v_lshrrev_b32 v{T[1]}, 2, v{vL}
    v_lshlrev_b32 v{T[2]}, 3, v{T[0]}
    v_lshl_add_u32 v{T[3]}, v{vG}, 1, v{T[2]}
    s_lshl_b32 s{sTo}, s{sRr}, 5
    s_lshl_b32 s77, s77, 6
    s_mul_i32 s70, s76, {128*2304}
    s_add_u32 s70, s70, s77
    s_add_u32 s70, s70, {YB}
    s_mul_i32 s71, s76, 2304
    s_add_u32 s71, s71, s77
    s_add_u32 s71, s71, {DB}
    v_lshlrev_b32 v{T[4]}, 4, v{T[0]}
    v_mad_u32_u24 v{T[5]}, v{T[1]}, s58, v{T[4]}
    v_lshl_add_u32 v{T[6]}, v{T[5]}, 1, 0
    v_sub_u32 v{T[6]}, v{T[6]}, v{T[4]}
    v_lshl_add_u32 v{T[7]}, v{T[1]}, {HBSH}, v{T[2]}
    v_bfrev_b32 v{T[8]}, 1
    v_cmp_gt_u32 vcc, {R_}, v{T[1]}
    v_cndmask_b32 v{T[7]}, v{T[8]}, v{T[7]}, vcc
    s_lshl_b32 s72, s{sRr}, {P['psh']}
    s_add_u32 s72, s72, {HB}
    """)
    g(f"buffer_load_ushort v{T[9]}, v{T[3]}, {XS}, s{sTo} offen")
    YR = [pool.pop(0) for _ in range(9)]
    def reduce_poll(name, nl, vaddr, sbase, stride, res):
        g(f"s_mov_b32 s{sCNT}, 0")
        g.label(name)
        g(f"s_mov_b32 s76, s{sbase}")
        for n in range(nl):
            g(f"buffer_load_dwordx4 {q4(YR[n])}, v{vaddr}, {WS}, s76 offen sc1")
            if n < nl - 1:
                g(f"s_add_u32 s76, s76, {stride}")
        for n in range(1, nl):
            g(f"s_waitcnt vmcnt({nl-1-n})")
            d = YR[0] if n % 2 == 0 or n == 1 else YR[1]
            if n == 1:
                continue
            g(f"v_pk_add_f32 {q2(d)}, {q2(d)}, {q2(YR[n])}")
            g(f"v_pk_add_f32 {q2(d+2)}, {q2(d+2)}, {q2(YR[n]+2)}")
        g(f"v_pk_add_f32 {q2(YR[0])}, {q2(YR[0])}, {q2(YR[1])}")
        g(f"v_pk_add_f32 {q2(YR[0]+2)}, {q2(YR[0]+2)}, {q2(YR[1]+2)}")
        y = YR[0]
        g(f"v_permlane16_swap_b32 v{y}, v{y+1}")
        g(f"v_permlane16_swap_b32 v{y+2}, v{y+3}")
        g(f"v_add_f32 v{y}, v{y}, v{y+1}")
        g(f"v_add_f32 v{y+2}, v{y+2}, v{y+3}")
        g(f"v_permlane32_swap_b32 v{y}, v{y+2}")
        g(f"v_add_f32 v{y}, v{y}, v{y+2}")
        g(f"v_add_f32_dpp v{y}, v{y}, v{y} row_ror:4 row_mask:0xf bank_mask:0xf")
        g(f"v_add_f32_dpp v{res}, v{y}, v{y} row_ror:8 row_mask:0xf bank_mask:0xf")
        g(f"s_add_u32 s{sCNT}, s{sCNT}, 1")
        g(f"v_cmp_u_f32 vcc, v{res}, v{res}")
        g(f"s_cbranch_vccz {name}_ok")
        if P['rsleep']: g(f"s_sleep {P['rsleep']}")
        g(f"s_cmp_lt_u32 s{sCNT}, {P['LIMIT']}"); g(f"s_cbranch_scc1 {name}")
        g.label(name + "_ok")
    reduce_poll("L_r1", 8, T[5], 70, 16 * 2304, T[10])
    stamp(7)
    bf16r(T[10], T[10])
    g(f"v_lshlrev_b32 v{T[9]}, 16, v{T[9]}")
    g(f"v_add_f32 v{T[10]}, v{T[10]}, v{T[9]}")
    g(f"v_cvt_pk_bf16_f32 v{T[12]}, v{T[10]}, v{T[10]}")
    g(f"v_cvt_pk_bf16_f32 v{T[13]}, v{T[10]}, v{T[10]}")
    g(f"v_and_b32 v{T[10]}, 0xffff0000, v{T[12]}")
    g(f"v_permlane16_swap_b32 v{T[12]}, v{T[13]}")
    g(f"v_perm_b32 v{T[14]}, v{T[13]}, v{T[12]}, s{sPL}")
    g(f"v_perm_b32 v{T[15]}, v{T[13]}, v{T[12]}, s{sPL}")
    g(f"v_permlane32_swap_b32 v{T[14]}, v{T[15]}")
    g(f"buffer_store_dwordx2 {q2(T[14])}, v{T[7]}, {WS}, s72 offen sc1")
    stamp(8)
    reduce_poll("L_r2", 9, T[6], 71, 16 * 4608, T[11])
    stamp(9)
    bf16r(T[11], T[11])
    g(f"v_add_f32 v{T[11]}, v{T[11]}, v{T[10]}")
    g(f"v_cvt_pk_bf16_f32 v{T[11]}, v{T[11]}, v{T[11]}")
    g("s_mov_b32 exec_lo, 0x000f000f"); g("s_mov_b32 exec_hi, 0x000f000f")
    g(f"buffer_store_short v{T[11]}, v{T[3]}, {OUT}, s{sTo} offen")
    g("s_mov_b64 exec, -1")
    if P['stamps']:
        g("s_waitcnt vmcnt(0)")
        stamp_end(10)
    if P['padto']:
        g.label("L_pad")
        g("s_memrealtime s[96:97]")
        g("s_waitcnt lgkmcnt(0)")
        g("s_sub_u32 s96, s96, s98")
        g(f"s_cmp_lt_u32 s96, {P['padto']}")
        g("s_cbranch_scc1 L_pad")
    g("s_endpgm")

    g.label("L_ffn")
    pool[:] = save_pool; g.vm_issued, g.vm_done = save_vm; nst[0] = save_nst
    DNP = {}
    for s in gu_steps:
        gu_item(s)[2]()
    vD1 = T[0]
    g(f"v_add_u32 v{vD1}, 512, v{vWO}")
    g(f"s_cmp_lt_u32 s{sW}, 4"); g("s_cselect_b32 s50, s50, 0")
    dense2_item(0, DNP, vWO, WD, 0, P['pold'], True)[2]()
    dense2_item(1, DNP, vD1, WD, 0, P['pold'], True)[2]()
    vH, vE, vSTa, vRd, vRs, vAW = T[1], T[2], T[3], T[4], T[5], T[6]
    vAC = [T[7], T[8], T[9], T[10]]
    vDS = T[11]
    g(f"""
    v_and_b32 v{T[12]}, 1, v{vJ}
    v_mul_u32_u24 v{vH}, 36, v{T[12]}
    v_lshrrev_b32 v{T[13]}, 1, v{vJ}
    v_lshl_add_u32 v{T[13]}, v{T[13]}, 2, v{vG}
    v_lshrrev_b32 v{T[14]}, 1, v{T[13]}
    v_add_u32 v{vH}, v{vH}, v{T[14]}
    v_lshlrev_b32 v{vH}, {P['psh']}, v{vH}
    v_and_b32 v{T[14]}, 1, v{vG}
    v_lshl_add_u32 v{vH}, v{T[14]}, 4, v{vH}
    v_bfrev_b32 v{T[14]}, 1
    v_cmp_gt_u32 vcc, 18, v{T[13]}
    v_cndmask_b32 v{vH}, v{T[14]}, v{vH}, vcc
    s_and_b32 s76, s{sW}, 3
    s_mul_i32 s70, s76, {9 << P['psh']}
    s_and_b32 s77, s2, {R_-1}
    s_lshl_b32 s77, s77, {HBSH}
    s_add_u32 s70, s70, s77
    s_add_u32 s70, s70, {HB}
    s_lshr_b32 s77, s{sW}, 2
    s_lshl_b32 s77, s77, 11
    s_lshl_b32 s76, s76, 2
    s_add_u32 s77, s77, s76
    v_lshlrev_b32 v{vE}, 10, v{vG}
    v_lshl_add_u32 v{vE}, v{vJ}, 5, v{vE}
    v_add_u32 v{vE}, s77, v{vE}
    v_add_u32 v{vE}, {GUL}, v{vE}
    v_lshlrev_b32 v{vSTa}, 4, v{vL}
    v_add_u32 v{vSTa}, s76, v{vSTa}
    v_add_u32 v{vSTa}, {STB}, v{vSTa}
    v_lshlrev_b32 v{vRd}, 4, v{vL}
    v_and_b32 v{vAW}, 31, v{vL}
    v_lshlrev_b32 v{vAW}, 4, v{vAW}
    v_lshrrev_b32 v{T[12]}, 5, v{vL}
    v_lshlrev_b32 v{vRs}, 4, v{T[12]}
    v_mul_u32_u24 v{T[15]}, 528, v{T[12]}
    v_lshrrev_b32 v{T[12]}, 2, v{vJ}
    v_lshlrev_b32 v{T[12]}, 6, v{T[12]}
    v_lshl_add_u32 v{T[12]}, v{vG}, 4, v{T[12]}
    v_mov_b32 v{T[13]}, 128
    v_mul_u32_u24 v{vDS}, 2304, v{vG}
    v_lshl_add_u32 v{vDS}, v{vJ}, 4, v{vDS}
    s_lshl_b32 s76, s{sW}, 8
    s_add_u32 s71, s{sDBo}, s76
    v_mov_b32 v{vA0}, 0
    v_mov_b32 v{vA0+1}, 0
    v_mov_b32 v{vA0+2}, 0
    v_mov_b32 v{vA0+3}, 0
    v_lshlrev_b32 v{vK}, 1, v{vL}
    """)
    g(f"ds_write_b128 v{vZ}, {q4(vA0)} offset:{ACT+128}")
    for c in range(4):
        g(f"v_and_b32 v{T[14]}, 11, v{vJ}")
        g(f"v_cmp_eq_u32 vcc, {c}, v{T[14]}")
        g(f"v_cndmask_b32 v{vAC[c]}, v{T[13]}, v{T[12]}, vcc")
    vSQ = T[15]
    dense2_item(2, DNP, vWO9, WD, 0, P['pold'], True)[2]()
    AS = [pool.pop(0) for _ in range(5)]
    for s in range(5):
        for r in range(4):
            g(f"v_mov_b32 v{AS[s]+r}, s{sONE}")
    G = P['G']
    HR = [pool.pop(0) for _ in range(G)]
    ht = [g.vm(f"buffer_load_dwordx4 {q4(HR[k])}, v{vH}, {WS}, s70 offen sc1") for k in range(G)]
    run_aux(True)
    stamp(7)
    g(f"s_mov_b32 s{sCNT}, 0")
    g.label("L_hp")
    for k in range(G):
        g(f"s_waitcnt vmcnt({G-1})")
        g(f"v_max3_u32 v{T[12]}, v{HR[k]}, v{HR[k]+1}, v{HR[k]+2}")
        g(f"v_max_u32 v{T[12]}, v{T[12]}, v{HR[k]+3}")
        g(f"v_cmp_eq_u32 vcc, -1, v{T[12]}")
        g(f"s_cbranch_vccz L_hp_ok{k}")
        if P['hsleep']: g(f"s_sleep {P['hsleep']}")
        g(f"buffer_load_dwordx4 {q4(HR[k])}, v{vH}, {WS}, s70 offen sc1")
        if P['psleep'] and G > 1:
            g(f"s_sleep {P['psleep']}")
    g(f"s_add_u32 s{sCNT}, s{sCNT}, 1")
    g(f"s_cmp_lt_u32 s{sCNT}, {P['LIMIT']}"); g("s_cbranch_scc1 L_hp")
    g("s_waitcnt vmcnt(0)")
    H = vA1
    for k in range(G):
        g.label(f"L_hp_ok{k}")
        for r in range(4):
            g(f"v_mov_b32 v{H+r}, v{HR[k]+r}")
        if k < G - 1:
            g("s_branch L_hp_go")
    g.flush()
    g.label("L_hp_go")
    stamp(8)
    E0, E1, STq = pool.pop(0), pool.pop(0), pool.pop(0)
    def amov(s):
        for r in range(4):
            ctl = "quad_perm:[0,1,2,3]" if s == 0 else f"row_shl:{2*s}"
            g(f"v_mov_b32_dpp v{AS[s]+r}, v{H+r} {ctl} row_mask:0xf bank_mask:0x1")
    def gu_mfma(stats):
        amov(0)
        amov(1)
        for s in range(5):
            g(f"v_mfma_f32_16x16x32_bf16 {q4(E0)}, {q4(AS[s])}, {q4(GUP[s][0])}, {'0' if s == 0 else q4(E0)}")
            if s + 2 < 5: amov(s + 2)
            g(f"v_mfma_f32_16x16x32_bf16 {q4(E1)}, {q4(AS[s])}, {q4(GUP[s][1])}, {'0' if s == 0 else q4(E1)}")
            if stats:
                g(f"v_mfma_f32_16x16x32_bf16 {q4(STq)}, {q4(AS[s])}, {q4(AS[s])}, {'0' if s == 0 else q4(STq)}")
        g("s_mov_b32 exec_hi, 0")
        g(f"ds_write2_b32 v{vE}, v{E0}, v{E0+1} offset0:0 offset1:128")
        g(f"ds_write2_b32 v{vE}, v{E1}, v{E1+1} offset0:4 offset1:132")
        if stats:
            g(f"ds_write2_b32 v{vSTa}, v{STq}, v{STq+1} offset0:0 offset1:128")
        g("s_mov_b32 exec_hi, -1")
        g.lgk(0)
        g("s_barrier")
    g(f"s_cmp_lt_u32 s{sW}, 4"); g("s_cbranch_scc1 L_gate")
    gu_mfma(False)
    g("s_branch L_fin")
    g.label("L_gate")
    gu_mfma(True)
    stamp(9)
    G4, U4, CG, CU, SQ, SM = [pool.pop(0) for _ in range(6)]
    g(f"ds_read_b128 {q4(SQ)}, v{vSQ} offset:{STB}")
    g(f"ds_read_b128 {q4(SM)}, v{vRs} offset:{STB+256}")
    g(f"ds_read_b128 {q4(G4)}, v{vRd} offset:{GUL}")
    g(f"ds_read_b128 {q4(CG)}, v{vAW} offset:{GUL+1024}")
    g(f"ds_read_b128 {q4(U4)}, v{vRd} offset:{GUL+2048}")
    g(f"ds_read_b128 {q4(CU)}, v{vAW} offset:{GUL+3072}")
    def sum4(r):
        g(f"v_pk_add_f32 {q2(r)}, {q2(r)}, {q2(r+2)}")
        g(f"v_add_f32 v{r}, v{r}, v{r+1}")
    g.lgk(4)
    sum4(SQ); sum4(SM)
    ln_scalars(SM, SQ, SQ + 1)
    g.lgk(0)
    sum4(G4); sum4(CG); sum4(U4); sum4(CU)
    g(f"v_fma_f32 v{G4}, -v{SM}, v{CG}, v{G4}")
    g(f"v_fma_f32 v{U4}, -v{SM}, v{CU}, v{U4}")
    g(f"v_mul_f32 v{G4}, v{G4}, v{SQ}")
    g(f"v_mul_f32 v{U4}, v{U4}, v{SQ}")
    bf16r(G4, G4); bf16r(U4, U4)
    import math
    k1 = -2 * math.sqrt(2 / math.pi) * math.log2(math.e)
    k3 = k1 * 0.044715
    f2h = lambda f: "0x%08x" % struct.unpack('<I', struct.pack('<f', f))[0]
    g(f"v_mul_f32 v{CG}, v{G4}, v{G4}")
    g(f"v_mov_b32 v{CG+1}, {f2h(k1)}")
    g(f"v_fmac_f32 v{CG+1}, {f2h(k3)}, v{CG}")
    g(f"v_mul_f32 v{CG}, v{CG+1}, v{G4}")
    g(f"v_exp_f32 v{CG}, v{CG}")
    g(f"v_add_f32 v{CG}, 1.0, v{CG}")
    g(f"v_rcp_f32 v{CG}, v{CG}")
    g(f"v_mul_f32 v{CG}, v{CG}, v{G4}")
    bf16r(CG, CG)
    g(f"v_mul_f32 v{CG}, v{CG}, v{U4}")
    g(f"v_cvt_pk_bf16_f32 v{CG}, v{CG}, v{CG}")
    g(f"ds_write_b16 v{vK}, v{CG} offset:{ACT}")
    g.lgk(0)
    AD = AS[0:4]
    for c in range(4):
        g(f"ds_read_b128 {q4(AD[c])}, v{vAC[c]} offset:{ACT}")
    F = [E0, E1, STq]
    for c in range(4):
        g.lgk(3 - c)
        for u in range(2):
            g(f"v_mfma_f32_16x16x32_bf16 {q4(F[u])}, {q4(AD[c])}, {q4(DNP[u][c])}, {'0' if c == 0 else q4(F[u])}")
    g(f"s_cmp_eq_u32 s{sW}, 0"); g("s_cbranch_scc0 L_dn2")
    for c in range(4):
        g(f"v_mfma_f32_16x16x32_bf16 {q4(F[2])}, {q4(AD[c])}, {q4(DNP[2][c])}, {'0' if c == 0 else q4(F[2])}")
    g("s_mov_b32 exec_hi, 0")
    g(f"buffer_store_dwordx4 {q4(F[0])}, v{vDS}, {WS}, s71 offen sc1")
    g(f"buffer_store_dwordx4 {q4(F[1])}, v{vDS}, {WS}, s71 offen offset:1024 sc1")
    g(f"buffer_store_dwordx4 {q4(F[2])}, v{vDS}, {WS}, s71 offen offset:2048 sc1")
    g("s_mov_b32 exec_hi, -1")
    g("s_branch L_fin")
    g.label("L_dn2")
    g("s_mov_b32 exec_hi, 0")
    g(f"buffer_store_dwordx4 {q4(F[0])}, v{vDS}, {WS}, s71 offen sc1")
    g(f"buffer_store_dwordx4 {q4(F[1])}, v{vDS}, {WS}, s71 offen offset:1024 sc1")
    g("s_mov_b32 exec_hi, -1")
    g.label("L_fin")
    if P['stamps']:
        nst[0] = 15
        stamp_end(15)
    g.label("L_end")
    g("s_endpgm")

    tail = ['.section .rodata,"a"', ".p2align 6", f".amdhsa_kernel {KN}",
            "  .amdhsa_next_free_vgpr 256", "  .amdhsa_next_free_sgpr 102", "  .amdhsa_accum_offset 256",
            "  .amdhsa_group_segment_fixed_size 0", "  .amdhsa_kernarg_size 96", "  .amdhsa_user_sgpr_count 2",
            "  .amdhsa_user_sgpr_kernarg_segment_ptr 1", "  .amdhsa_system_sgpr_workgroup_id_x 1", ".end_amdhsa_kernel"]
    return "\n".join(hdr) + "\n" + g.text() + "\n".join(tail) + "\n"


if __name__ == "__main__":
    out = sys.argv[1]
    kw = {}
    for a in sys.argv[2:]:
        k, v = a.split('=')
        try:
            v = int(v)
        except ValueError:
            try:
                v = float(v)
            except ValueError:
                pass
        kw[k] = v
    open(out, 'w').write(gen(**kw))
```

```python
import sys, os, struct, math
sys.path.insert(0, os.path.dirname(os.path.abspath(__file__)))
from asmlib import Gen

KN = "sequential_preLN__mha_block_cached__glu_gated_geglu__decode_kernel"

PG0 = 0
YP = 256 << 10
DB = YP + 8 * 18432
QP = 768 << 10
EP = 1280 << 10
WSN = 2 << 20
OOR = 0x80000000
QS = 0
ROLE = 256
OB = 512
GUL = 4608
STB = 12800
ACT = 14848
LDS_BYTES = 16384

DEF = dict(rot=5, L0=28, K0=4, D=16, Dk=20, XB=52, TK=40, TW=7, R=8, NRW=4, stamps=0, prog=0, pol="nt", polq="nt",
           warm=1, LIMIT=20000, qsleep=0, mlsleep=64, prio=1, order='BF', bsleep=0, hsleep=0, rsleep=0, padto=0, KA=4, bar0=1, pf=0, polp='', Dv=16, vg=1, exp=0, probe=-1, prole=0)


def q4(b): return f"v[{b}:{b+3}]"
def q2(b): return f"v[{b}:{b+1}]"
f2h = lambda f: "0x%08x" % struct.unpack('<I', struct.pack('<f', f))[0]


def gen(**kw):
    P = dict(DEF); P.update(kw)
    g = Gen()
    R_ = P['R']; L0 = P['L0']; K0 = P['K0']
    hdr = []
    hdr.append(f"; @launch grid=(256,1,1) block=(512,1,1) lds={LDS_BYTES}")
    hdr.append('.amdgcn_target "amdgcn-amd-amdhsa--gfx950"')
    hdr += [".text", f".globl {KN}", ".p2align 8", f".type {KN},@function", f"{KN}:"]

    vL, vG, vJ, vK, vX, vM, vTK = 1, 2, 3, 4, 5, 6, 10
    vQ, vS, vACC, vA0, vA1 = 12, 16, 20, 24, 28
    T = list(range(32, 48))
    vMW, vFAC, vST, vZ, vCNT, vW, vML = 48, 49, 50, 51, 52, 53, 54
    POOL = list(range(56, 256, 4))
    pool = list(POOL)
    KS, VS, W1, W2, W3, _u, WS, XS, OUT = [f"s[{a}:{a+3}]" for a in range(28, 64, 4)]
    sW, sC, sB, sH, sI, sX = 64, 65, 66, 67, 68, 69
    sKo, sVo, sQo, sTo, sR, sE = 70, 71, 72, 73, 74, 75
    sPL, sPH = 78, 79
    sMK = {1: "s[80:81]", 2: "s[82:83]", 3: "s[84:85]"}
    sONE, sCNT = 86, 87
    sINV = 91

    nst = [0]
    crole = [0]
    def stamp(k):
        if P['probe'] == k and P['prole'] in (0, crole[0]):
            g("s_memrealtime s[96:97]")
            g.lgk(0)
        if not P['stamps']:
            return
        g.lgk(0)
        if nst[0]:
            g(f"v_writelane_b32 v{vST}, s92, {nst[0]-1}")
        g("s_memrealtime s[92:93]")
        nst[0] = k + 1
    def stamp_flush():
        if P['stamps'] and nst[0]:
            g.lgk(0)
            g(f"v_writelane_b32 v{vST}, s92, {nst[0]-1}")
            nst[0] = 0
    def stamp_end():
        if not P['stamps']:
            return
        stamp(15)
        stamp_flush()
        g(f"s_add_u32 s94, s26, {260<<20}"); g("s_addc_u32 s95, s27, 0")
        g(f"s_lshl_b32 s96, s2, 3"); g(f"s_add_u32 s96, s96, s{sW}"); g("s_lshl_b32 s96, s96, 8")
        g(f"v_lshlrev_b32 v{T[0]}, 2, v{vL}"); g(f"v_add_u32 v{T[0]}, s96, v{T[0]}")
        g(f"global_store_dword v{T[0]}, v{vST}, s[94:95]")
    prog = []
    bytes_of = {}
    def pstamp():
        if not (P['stamps'] and P['prog']):
            return
        k = 16 + len(prog)
        assert k < 64
        prog.append(sum(v for t, v in bytes_of.items() if t < g.vm_done))
        stamp(k)

    def bf16r(d, s):
        g(f"v_cvt_pk_bf16_f32 v{d}, v{s}, v{s}")
        g(f"v_and_b32 v{d}, 0xffff0000, v{d}")

    def allred(op, regs, tmps, rows=4):
        for sh in (8, 4, 2, 1):
            for r in regs:
                g(f"{op}_dpp v{r}, v{r}, v{r} row_ror:{sh} row_mask:0xf bank_mask:0xf")
        for sw in (("16", "32") if rows == 4 else ("16",)):
            for r, t in zip(regs, tmps):
                g(f"v_mov_b32 v{t}, v{r}")
            for r, t in zip(regs, tmps):
                g(f"v_permlane{sw}_swap_b32 v{r}, v{t}")
            for r, t in zip(regs, tmps):
                g(f"{op} v{r}, v{r}, v{t}")

    def ln_scalars(sm, sq, t):
        g(f"v_mul_f32 v{sm}, s{sINV}, v{sm}")
        g(f"v_mul_f32 v{t}, v{sm}, v{sm}")
        g(f"v_fma_f32 v{sq}, v{sq}, s{sINV}, -v{t}")
        g(f"v_max_f32 v{sq}, 0, v{sq}")
        bf16r(sq, sq)
        bf16r(sm, sm)
        g(f"v_add_f32 v{sq}, 0x3727c5ac, v{sq}")
        bf16r(sq, sq)
        g(f"v_sqrt_f32 v{sq}, v{sq}")
        bf16r(sq, sq)
        g(f"v_rcp_f32 v{sq}, v{sq}")

    def untracked(text):
        g.emit(text); g.vm_issued -= 1

    g("s_cmp_ge_u32 s2, 256"); g("s_cbranch_scc1 L_end")
    g("s_load_dwordx16 s[4:19], s[0:1], 0")
    g("s_load_dwordx8 s[20:27], s[0:1], 64")
    if P['padto'] or P['probe'] >= 0:
        g("s_memrealtime s[98:99]")
    if P['stamps']:
        g("s_memrealtime s[92:93]"); nst[0] = 1
        g(f"v_mov_b32 v{vST}, 0")
    g(f"""
    v_lshrrev_b32 v{T[0]}, 6, v0
    v_and_b32 v{vL}, 63, v0
    s_and_b32 s{sX}, s2, 7
    v_readfirstlane_b32 s{sW}, v{T[0]}
    s_lshr_b32 s{sI}, s2, 3
    s_lshr_b32 s{sB}, s{sI}, 4
    s_and_b32 s76, s{sI}, 15
    s_lshl_b32 s77, s{sX}, 4
    s_add_u32 s76, s76, s77
    s_lshr_b32 s{sH}, s76, 2
    s_lshl_b32 s{sC}, s{sB}, 7
    s_add_u32 s{sC}, s{sC}, s76
    v_lshlrev_b32 v{T[1]}, 4, v{vL}
    v_lshl_add_u32 v{vK}, v{T[0]}, 12, v{T[1]}
    s_mul_i32 s{sKo}, s{sC}, {P['rot']}
    s_and_b32 s{sKo}, s{sKo}, 15
    s_lshl_b32 s{sKo}, s{sKo}, 15
    s_mov_b32 s{sVo}, s{sKo}
    s_lshl_b32 s76, s{sC}, 19
    s_mov_b32 s30, 0x80000
    s_mov_b32 s31, 0x20000
    s_waitcnt lgkmcnt(0)
    s_add_u32 s28, s6, s76
    s_addc_u32 s29, s7, 0
    """)
    if P['probe'] >= 0: g("s_mov_b32 s96, s98")

    items = {}
    def issue_kv(kind, n, r):
        srd, so = (KS, sKo) if kind == 'K' else (VS, sVo)
        tok = g.vm(f"buffer_load_dwordx4 {q4(r)}, v{vK}, {srd}, s{so} offen offset:{(n&3)*1024} nt")
        if n & 3 == 3 and n != 63:
            g(f"s_add_u32 s{so}, s{so}, 0x8000"); g(f"s_and_b32 s{so}, s{so}, 0x7ffff")
        items[(kind, n)] = (tok, r)
        bytes_of[tok] = 1024

    def setup_ws():
        g(f"""
        s_mov_b32 s52, s26
        s_mov_b32 s53, s27
        s_mov_b32 s54, {WSN}
        s_mov_b32 s55, 0x20000
        """)
    def setup2(tag):
        g(f"""
        s_lshl_b32 s76, s{sC}, 19
        s_add_u32 s32, s8, s76
        s_addc_u32 s33, s9, 0
        s_mov_b32 s34, 0x80000
        s_mov_b32 s35, 0x20000
        v_and_b32 v{T[5]}, 1, v{vL}
        v_lshlrev_b32 v{T[5]}, 4, v{T[5]}
        v_mov_b32 v{T[7]}, 0xffff
        v_lshlrev_b32 v{T[5]}, v{T[5]}, v{T[7]}
        v_bfe_u32 v{T[7]}, v{vL}, 1, 2
        """)
        for r in range(4):
            g(f"v_cmp_eq_u32 vcc, {r}, v{T[7]}")
            g(f"v_cndmask_b32 v{vM+r}, 0, v{T[5]}, vcc")
        g(f"""
        s_mov_b32 s{sONE}, 0x3f803f80
        s_mov_b32 s{sPL}, 0x05040100
        s_mov_b32 s{sPH}, 0x07060302
        s_mov_b32 s80, 0x22222222
        s_mov_b32 s81, 0x22222222
        s_mov_b32 s82, 0x44444444
        s_mov_b32 s83, 0x44444444
        s_mov_b32 s84, 0x88888888
        s_mov_b32 s85, 0x88888888
        s_mov_b32 s{sINV}, {f2h(1.0/576)}
        v_mov_b32 v{vZ}, 0
        """)
        if P['warm']:
            g(f"""
            s_and_b32 s76, s{sI}, 7
            s_lshl_b32 s76, s76, 3
            s_add_u32 s76, s76, s{sW}
            s_lshl_b32 s76, s76, 10
            v_and_b32 v{vW}, 7, v{vL}
            v_lshl_add_u32 v{vW}, v{vW}, 7, s76
            v_min_u32 v{vW}, L_end-{KN}-64, v{vW}
            s_getpc_b64 s[76:77]
            """)
            g.label(f"L_warm{tag}")
            g(f"s_sub_u32 s76, s76, L_warm{tag}-{KN}"); g("s_subb_u32 s77, s77, 0")
            g.vm(f"global_load_dword v{vW}, v{vW}, s[76:77]")

    KA = P['KA']
    for n in range(KA):
        issue_kv('K', n, POOL[n])
    g(f"s_cmp_lg_u32 s{sW}, 0"); g("s_cbranch_scc1 L_oth")
    pre_out = g.out; g.out = []
    g.label("L_oth")
    g(f"v_lshrrev_b32 v{vG}, 4, v{vL}"); g(f"v_and_b32 v{vJ}, 15, v{vL}")
    setup_ws()
    setup2('a')
    if P['bar0']: g("s_barrier")
    for n in range(KA, L0):
        issue_kv('K', n, POOL[n])
    g("s_barrier")
    main_state = (g.vm_issued, g.vm_done, dict(items), dict(bytes_of), nst[0])
    main_out = g.out; main_hist = g.hist

    g.out = []; g.hist = []
    g.vm_issued = KA; g.vm_done = 0
    if P['prio']: g("s_setprio 3")
    XA, XB_, XE = POOL[26], POOL[27], POOL[28]
    XR = POOL[29]
    WQR = POOL[8:26]
    g(f"""
    s_lshl_b32 s76, s{sH}, 7
    s_add_u32 s76, s76, {EP}
    s_load_dword s{sE}, s[26:27], s76
    s_mov_b32 s56, s4
    s_mov_b32 s57, s5
    s_mov_b32 s58, 2304
    s_mov_b32 s59, 0x20000
    v_lshrrev_b32 v{T[2]}, 5, v{vL}
    v_mul_u32_u24 v{T[2]}, 1152, v{T[2]}
    v_and_b32 v{T[3]}, 31, v{vL}
    v_lshl_add_u32 v{T[4]}, v{T[3]}, 4, v{T[2]}
    v_lshl_add_u32 v{T[3]}, v{T[3]}, 2, v{T[2]}
    v_lshrrev_b32 v{vG}, 4, v{vL}
    v_and_b32 v{vJ}, 15, v{vL}
    """)
    g.vm(f"buffer_load_dwordx4 {q4(XA)}, v{T[4]}, {XS}, 0 offen")
    g.vm(f"buffer_load_dwordx4 {q4(XB_)}, v{T[4]}, {XS}, 0 offen offset:512")
    g.vm(f"buffer_load_dword v{XE}, v{T[3]}, {XS}, 0 offen offset:1024")
    g(f"""
    s_and_b32 s76, s{sI}, 3
    s_lshl_b32 s77, s{sB}, 2
    s_add_u32 s{sR}, s76, s77
    s_mul_i32 s{sTo}, s{sR}, 144
    v_lshlrev_b32 v{T[2]}, 3, v{vJ}
    v_lshl_add_u32 v{T[2]}, v{vG}, 1, v{T[2]}
    """)
    g.vm(f"buffer_load_ushort v{XR}, v{T[2]}, {XS}, s{sTo} offen")
    g.vm(f"buffer_load_ushort v{XR+1}, v{T[2]}, {XS}, s{sTo} offen offset:128")
    g.vm(f"buffer_load_ushort v{XR+2}, v{T[2]}, {XS}, s{sTo} offen offset:1152")
    tx = g.vm(f"buffer_load_ushort v{XR+3}, v{T[2]}, {XS}, s{sTo} offen offset:1280")
    g(f"""
    s_lshl_b32 s76, s{sH}, 8
    s_add_u32 s36, s10, s76
    s_addc_u32 s37, s11, 0
    s_sub_u32 s38, {576*8192}, s76
    s_mov_b32 s39, 0x20000
    s_mul_i32 s{sQo}, s{sR}, {72*8192}
    v_lshlrev_b32 v{vX}, 13, v{vG}
    v_lshl_add_u32 v{vX}, v{vJ}, 4, v{vX}
    """)
    tq = []
    for m in range(18):
        tq.append(g.vm(f"buffer_load_dwordx4 {q4(WQR[m])}, v{vX}, {W1}, s{sQo} offen {P['polq']}"))
        if m != 17:
            g(f"s_add_u32 s{sQo}, s{sQo}, 0x8000")
    setup_ws()
    g(f"""
    s_lshl_b32 s76, s{sC}, 10
    s_add_u32 s77, s76, {256<<10}
    s_add_u32 s{sTo}, s76, {512<<10}
    v_mov_b32 v{T[8]}, -1
    v_mov_b32 v{T[9]}, -1
    v_mov_b32 v{T[10]}, -1
    v_mov_b32 v{T[11]}, -1
    s_mov_b64 exec, 0xffffff
    """)
    g.vm(f"buffer_store_dwordx4 {q4(T[8])}, v{T[1]}, {WS}, s76 offen sc1")
    g("s_mov_b64 exec, -1")
    g.vm(f"buffer_store_dwordx4 {q4(T[8])}, v{T[1]}, {WS}, s77 offen sc1")
    tinit = g.vm(f"buffer_store_dwordx4 {q4(T[8])}, v{T[1]}, {WS}, s{sTo} offen sc1")
    if P['bar0']: g("s_barrier")
    for n in range(KA, K0):
        issue_kv('K', n, POOL[n])
    setup2('b')
    g.wait(tx)
    a, b_, t1, t2 = T[12], T[13], T[14], T[15]
    xs = [XA, XA + 1, XA + 2, XA + 3, XB_, XB_ + 1, XB_ + 2, XB_ + 3, XE]
    for k, r in enumerate(xs):
        g(f"v_dot2_f32_bf16 v{a}, v{r}, s{sONE}, {'0' if k == 0 else 'v%d' % a}")
        g(f"v_dot2_f32_bf16 v{b_}, v{r}, v{r}, {'0' if k == 0 else 'v%d' % b_}")
    allred("v_add_f32", [a, b_], [t1, t2], rows=2)
    ln_scalars(a, b_, t1)
    g(f"v_readlane_b32 s76, v{a}, 0"); g(f"v_readlane_b32 s77, v{a}, 32")
    g(f"v_readlane_b32 s88, v{b_}, 0"); g(f"v_readlane_b32 s89, v{b_}, 32")
    for k in range(4): g(f"v_lshlrev_b32 v{XR+k}, 16, v{XR+k}")
    for k in range(4): g(f"v_subrev_f32 v{XR+k}, s{76 + (k>>1)}, v{XR+k}")
    for k in range(4): bf16r(XR + k, XR + k)
    for k in range(4): g(f"v_mul_f32 v{XR+k}, s{88 + (k>>1)}, v{XR+k}")
    for k in range(4): g(f"v_cvt_pk_bf16_f32 v{XR+k}, v{XR+k}, v{XR+k}")
    for m in range(18):
        A = vA0 if m & 1 == 0 else vA1
        t = T[12 + (m & 1)]
        g(f"v_mov_b32_dpp v{t}, v{XR+(m>>4)} row_newbcast:{m&15} row_mask:0xf bank_mask:0x3")
        g(f"v_mov_b32_dpp v{t}, v{XR+2+(m>>4)} row_newbcast:{m&15} row_mask:0xf bank_mask:0xc")
        for r in range(4):
            g(f"v_and_b32 v{A+r}, v{t}, v{vM+r}")
        g.wait(tq[m])
        g(f"v_mfma_f32_16x16x32_bf16 {q4(vACC)}, {q4(A)}, {q4(WQR[m])}, {'0' if m == 0 else q4(vACC)}")
    g(f"""
    s_waitcnt lgkmcnt(0)
    s_add_u32 s{sE}, s{sE}, 1
    s_lshl_b32 s76, s{sH}, 4
    s_add_u32 s76, s76, s{sR}
    s_lshl_b32 s76, s76, 10
    s_add_u32 s76, s76, {QP}
    v_lshrrev_b32 v{T[2]}, 1, v{vG}
    v_lshlrev_b32 v{T[2]}, 13, v{T[2]}
    v_lshl_add_u32 v{T[2]}, v{vJ}, 5, v{T[2]}
    v_and_b32 v{T[3]}, 1, v{vG}
    v_lshl_add_u32 v{T[2]}, v{T[3]}, 4, v{T[2]}
    v_mov_b32 v{vA0+1}, s{sE}
    v_mov_b32 v{vA0+3}, s{sE}
    v_mov_b32 v{vA1+1}, s{sE}
    v_mov_b32 v{vA1+3}, s{sE}
    v_mov_b32 v{T[4]}, 1
    v_mov_b32 v{vA0}, v{vACC}
    v_mov_b32 v{vA0+2}, v{vACC+1}
    v_mov_b32 v{vA1}, v{vACC+2}
    v_mov_b32 v{vA1+2}, v{vACC+3}
    """)
    g.wait(tinit)
    g.vm(f"buffer_store_dwordx4 {q4(vA0)}, v{T[2]}, {WS}, s76 offen sc1")
    g.vm(f"buffer_store_dwordx4 {q4(vA1)}, v{T[2]}, {WS}, s76 offen offset:512 sc1")
    g("s_mov_b64 exec, 1")
    g.vm(f"global_atomic_add v{vZ}, v{T[4]}, s[24:25] sc1")
    g("s_mov_b64 exec, -1")
    stamp(1)
    QR = POOL[8:16]
    g(f"""
    s_lshl_b32 s76, s{sH}, 1
    s_add_u32 s76, s76, s{sB}
    s_lshl_b32 s76, s76, 13
    s_add_u32 s76, s76, {QP}
    s_add_u32 s77, s76, 4096
    s_mov_b32 s{sCNT}, 0
    v_and_b32 v{T[3]}, 31, v{vL}
    v_lshlrev_b32 v{T[3]}, 3, v{T[3]}
    v_lshrrev_b32 v{T[2]}, 5, v{vL}
    v_lshl_add_u32 v{T[3]}, v{T[2]}, 2, v{T[3]}
    """)
    if P['qsleep']: g(f"s_sleep {P['qsleep']}")
    g.label("L_qp")
    for n in range(8):
        g(f"buffer_load_dwordx4 {q4(QR[n])}, v{T[1]}, {WS}, s{76 + (n>>2)} offen offset:{(n&3)*1024} sc1")
    g.waitall()
    mn, mx = T[4], T[5]
    g(f"v_min_u32 v{mn}, v{QR[0]+1}, v{QR[0]+3}"); g(f"v_max_u32 v{mx}, v{QR[0]+1}, v{QR[0]+3}")
    for n in range(1, 8):
        g(f"v_min3_u32 v{mn}, v{mn}, v{QR[n]+1}, v{QR[n]+3}"); g(f"v_max3_u32 v{mx}, v{mx}, v{QR[n]+1}, v{QR[n]+3}")
    g(f"v_cmp_ne_u32 vcc, s{sE}, v{mn}")
    g(f"v_cmp_ne_u32 s[88:89], s{sE}, v{mx}")
    g(f"s_add_u32 s{sCNT}, s{sCNT}, 1")
    g("s_or_b64 vcc, vcc, s[88:89]")
    g("s_cbranch_scc0 L_qp_ok")
    g(f"s_cmp_lt_u32 s{sCNT}, {P['LIMIT']}"); g("s_cbranch_scc1 L_qp")
    g.label("L_qp_ok")
    for st in (1, 2, 4):
        for n in range(0, 8, 2 * st):
            g(f"v_add_f32 v{QR[n]}, v{QR[n]}, v{QR[n+st]}")
            g(f"v_add_f32 v{QR[n]+2}, v{QR[n]+2}, v{QR[n+st]+2}")
    g(f"v_cvt_pk_bf16_f32 v{QR[0]}, v{QR[0]}, v{QR[0]+2}")
    g(f"ds_write_b32 v{T[3]}, v{QR[0]} offset:{QS}")
    g.lgk(0)
    g("s_barrier")
    if P['prio']: g("s_setprio 0")
    g(f"s_cmp_eq_u32 s{sR}, 0"); g("s_cbranch_scc0 L_noep")
    g(f"s_lshl_b32 s76, s{sH}, 7"); g(f"s_add_u32 s76, s76, {EP}")
    g("s_mov_b64 exec, 1")
    g(f"buffer_store_dword v{vA0+1}, v{vZ}, {WS}, s76 offen sc1")
    g("s_mov_b64 exec, -1")
    g.label("L_noep")
    for n in range(K0, L0):
        issue_kv('K', n, POOL[n])
    stamp_flush()
    g("s_branch L_q2")
    w0_out = g.out

    g.out = pre_out + w0_out + main_out; g.hist = main_hist
    g.vm_issued, g.vm_done, it, bo, nst[0] = main_state
    items.clear(); items.update(it); bytes_of.clear(); bytes_of.update(bo)
    stamp_flush()
    g.flush()
    g.label("L_q2")
    pool[:] = POOL[L0:]
    g(f"v_lshlrev_b32 v{T[3]}, 4, v{vJ}")
    g(f"ds_read_b128 {q4(vQ)}, v{T[3]} offset:{QS}")
    g.lgk(0)
    stamp(2)

    queue = []
    aux = []
    def kv_item(kind, n):
        return (1, lambda: issue_kv(kind, n, pool.pop(0)))
    def pump(limit):
        while queue:
            nq, issue = queue[0]
            if len(pool) < nq or g.outstanding() >= min(limit, 60):
                break
            queue.pop(0)
            issue()
    def run_aux(force=False):
        while aux and (force or aux[0][0] < g.vm_done):
            tok, fn = aux.pop(0)
            g.wait(tok)
            fn()

    def ticket():
        g(f"s_cmp_lg_u32 s{sW}, {P['TW']}"); g("s_cbranch_scc1 L_notk")
        g(f"v_mov_b32 v{T[14]}, 0"); g(f"v_mov_b32 v{T[15]}, 1")
        g("s_mov_b64 exec, 1")
        untracked(f"global_atomic_add_x2 {q2(vTK)}, v{vZ}, {q2(T[14])}, s[24:25] sc0 sc1")
        g("s_mov_b64 exec, -1")
        g.label("L_notk")
    published = [False]
    def ml_load():
        assert published[0]
        g(f"s_and_b32 s76, s{sC}, 0xfc"); g("s_lshl_b32 s76, s76, 10")
        g(f"v_bfe_u32 v{vCNT}, v{vL}, 3, 2"); g(f"v_lshlrev_b32 v{vCNT}, 10, v{vCNT}")
        g(f"v_and_b32 v{vX}, 7, v{vL}"); g(f"v_lshl_add_u32 v{vCNT}, v{vX}, 3, v{vCNT}")
        g(f"v_add_u32 v{vCNT}, s76, v{vCNT}")
        tok = g.vm(f"buffer_load_dwordx2 {q2(vML)}, v{vCNT}, {WS}, 0 offen sc1")
        def fin():
            assert not queue
            if P['pf']:
                g(f"s_cmp_ge_u32 s{sW}, 4"); g("s_cbranch_scc1 L_nopf")
                g(f"""
                s_mov_b32 s36, s12
                s_mov_b32 s37, s13
                s_cmp_eq_u32 s{sW}, 1
                s_cselect_b32 s36, s16, s36
                s_cselect_b32 s37, s17, s37
                s_cmp_eq_u32 s{sW}, 2
                s_cselect_b32 s36, s18, s36
                s_cselect_b32 s37, s19, s37
                s_cmp_eq_u32 s{sW}, 3
                s_cselect_b32 s36, s20, s36
                s_cselect_b32 s37, s21, s37
                s_cmp_eq_u32 s{sW}, 0
                s_mov_b32 s76, 20736
                s_cselect_b32 s76, 18432, s76
                s_mul_i32 s77, s76, s2
                s_add_u32 s38, s77, s76
                s_mov_b32 s39, 0x20000
                v_lshlrev_b32 v{T[0]}, 4, v{vL}
                """)
                for n in range(21):
                    untracked(f"buffer_load_dwordx4 {q4(pool[n])}, v{T[0]}, {W1}, s77 offen offset:{(n&3)*1024} {P['polp']}")
                    if n & 3 == 3: g("s_add_u32 s77, s77, 4096")
                g.label("L_nopf")
            g(f"s_mov_b32 s{sCNT}, 0")
            g.label("L_ml_chk")
            g(f"v_max_u32 v{T[0]}, v{vML}, v{vML+1}")
            g(f"v_cmp_eq_u32 vcc, -1, v{T[0]}")
            g("s_cbranch_vccz L_ml_ok")
            g(f"s_sleep {P['mlsleep']}")
            untracked(f"buffer_load_dwordx2 {q2(vML)}, v{vCNT}, {WS}, 0 offen sc1")
            g("s_waitcnt vmcnt(0)")
            g(f"s_add_u32 s{sCNT}, s{sCNT}, 1")
            g(f"s_cmp_lt_u32 s{sCNT}, {P['LIMIT']}"); g("s_cbranch_scc1 L_ml_chk")
            g.label("L_ml_ok")
            g(f"v_mov_b32 v{T[0]}, v{vML}")
            allred("v_max_f32", [T[0]], [T[1]], rows=2)
            g(f"v_sub_f32 v{T[2]}, v{vML}, v{T[0]}")
            g(f"v_exp_f32 v{T[2]}, v{T[2]}")
            g(f"v_sub_f32 v{T[3]}, v{vMW}, v{T[0]}")
            g(f"v_mul_f32 v{T[2]}, v{T[2]}, v{vML+1}")
            g(f"v_exp_f32 v{T[3]}, v{T[3]}")
            allred("v_add_f32", [T[2]], [T[1]], rows=2)
            g(f"v_rcp_f32 v{T[2]}, v{T[2]}")
            g(f"v_mul_f32 v{vFAC}, v{T[2]}, v{T[3]}")
            stamp(4)
        aux.append((tok, fin))

    for n in range(L0, 64):
        queue.append(kv_item('K', n))
    for n in range(64):
        if n == P['TK']: queue.append((0, ticket))
        if n == P['XB'] and not P['exp'] & 4: queue.append((0, ml_load))
        queue.append(kv_item('V', n))

    for gk in range(16):
        rs = [items[('K', 4 * gk + u)] for u in range(4)]
        g.wait(rs[3][0])
        pstamp()
        t = T[0:4]
        for k in range(4):
            for u in range(4):
                g(f"v_dot2_f32_bf16 v{t[u]}, v{rs[u][1]+k}, v{vQ+k}, {'0' if k == 0 else 'v%d' % t[u]}")
        for u in range(4):
            pool.append(rs[u][1])
        pump(P['Dk'] if 4 * gk + 4 < L0 else P['D'])
        a, b2, c = T[4], T[5], T[6]
        g(f"v_add_f32_dpp v{a}, v{t[0]}, v{t[0]} row_ror:8 row_mask:0xf bank_mask:0x3")
        g(f"v_add_f32_dpp v{b2}, v{t[2]}, v{t[2]} row_ror:8 row_mask:0xf bank_mask:0x3")
        g(f"v_add_f32_dpp v{a}, v{t[1]}, v{t[1]} row_ror:8 row_mask:0xf bank_mask:0xc")
        g(f"v_add_f32_dpp v{b2}, v{t[3]}, v{t[3]} row_ror:8 row_mask:0xf bank_mask:0xc")
        g(f"v_add_f32_dpp v{c}, v{a}, v{a} row_half_mirror row_mask:0xf bank_mask:0x5")
        g(f"v_add_f32_dpp v{c}, v{b2}, v{b2} row_half_mirror row_mask:0xf bank_mask:0xa")
        g(f"v_add_f32_dpp v{c}, v{c}, v{c} quad_perm:[1,0,3,2] row_mask:0xf bank_mask:0xf")
        lam = gk & 3
        S = vS + (gk >> 2)
        if lam == 0:
            g(f"v_add_f32_dpp v{S}, v{c}, v{c} quad_perm:[2,3,0,1] row_mask:0xf bank_mask:0xf")
        else:
            g(f"v_add_f32_dpp v{c}, v{c}, v{c} quad_perm:[2,3,0,1] row_mask:0xf bank_mask:0xf")
            g(f"v_cndmask_b32 v{S}, v{S}, v{c}, {sMK[lam]}")
    stamp(3)
    for r in range(4): g(f"v_cvt_pk_bf16_f32 v{vS+r}, v{vS+r}, v{vS+r}")
    for r in range(4): g(f"v_and_b32 v{vS+r}, 0xffff0000, v{vS+r}")
    for r in range(4): g(f"v_mul_f32 v{vS+r}, 0x3db504f3, v{vS+r}")
    for r in range(4): g(f"v_cvt_pk_bf16_f32 v{vS+r}, v{vS+r}, v{vS+r}")
    for r in range(4): g(f"v_and_b32 v{vS+r}, 0xffff0000, v{vS+r}")
    g(f"v_max3_f32 v{vMW}, v{vS}, v{vS+1}, v{vS+2}")
    g(f"v_max_f32 v{vMW}, v{vMW}, v{vS+3}")
    allred("v_max_f32", [vMW], [T[0]])
    for r in range(4): g(f"v_sub_f32 v{vS+r}, v{vS+r}, v{vMW}")
    for r in range(4): g(f"v_mul_f32 v{vS+r}, 0x3fb8aa3b, v{vS+r}")
    for r in range(4): g(f"v_exp_f32 v{vS+r}, v{vS+r}")
    g(f"v_mul_f32 v{vMW}, 0x3fb8aa3b, v{vMW}")
    g(f"v_add_f32 v{vMW+1}, v{vS}, v{vS+1}")
    g(f"v_add_f32 v{T[1]}, v{vS+2}, v{vS+3}")
    g(f"v_add_f32 v{vMW+1}, v{vMW+1}, v{T[1]}")
    for r in range(4): g(f"v_cvt_pk_bf16_f32 v{vS+r}, v{vS+r}, v{vS+r}")
    allred("v_add_f32", [vMW + 1], [T[0]])
    g(f"s_lshl_b32 s76, s{sC}, 7"); g(f"s_add_u32 s76, s76, s{sW}"); g("s_lshl_b32 s76, s76, 3")
    g("s_mov_b64 exec, 1")
    if not P['exp'] & 4:
        g.vm(f"buffer_store_dwordx2 {q2(vMW)}, v{vZ}, {WS}, s76 offen sc1")
    else:
        g("s_mov_b64 exec, -1"); g(f"v_rcp_f32 v{vFAC}, v{vFAC}")
    g("s_mov_b64 exec, -1")
    published[0] = True

    beta = {0: 0, 1: 2, 2: 1, 3: 3}
    for n in range(64):
        if n % P['vg'] == 0: pump(P['Dv'])
        A = vA0 if n & 1 == 0 else vA1
        j = 4 * beta[n & 3] + ((n >> 2) & 3)
        for r in range(4):
            if P['exp'] & 2 and n > 1: continue
            g(f"v_and_b32_dpp v{A+r}, v{vS+(n>>4)}, v{vM+r} row_newbcast:{j} row_mask:0xf bank_mask:0xf")
        if n == 61:
            g(f"s_cmp_lg_u32 s{sW}, {P['TW']}"); g("s_cbranch_scc1 L_tk_done")
            g(f"s_mov_b32 s{sCNT}, 0")
            g.label("L_tk_chk")
            g(f"v_readfirstlane_b32 s76, v{vTK}")
            g("s_and_b32 s76, s76, 255"); g("s_cbranch_scc0 L_tk_ok")
            g("s_sleep 8")
            untracked(f"global_load_dword v{vTK}, v{vZ}, s[24:25] sc1")
            g("s_waitcnt vmcnt(0)")
            g(f"s_add_u32 s{sCNT}, s{sCNT}, 1")
            g(f"s_cmp_lt_u32 s{sCNT}, {P['LIMIT']}"); g("s_cbranch_scc1 L_tk_chk")
            g.label("L_tk_ok")
            g("s_mov_b64 exec, 1")
            g(f"ds_write_b32 v{vZ}, v{vTK+1} offset:{ROLE}")
            g("s_mov_b64 exec, -1")
            g.label("L_tk_done")
        if n == 62:
            g(f"""
            v_lshlrev_b32 v{T[8]}, 5, v{vJ}
            v_lshl_add_u32 v{T[8]}, v{vG}, 4, v{T[8]}
            s_lshl_b32 s76, s{sW}, 9
            v_add_u32 v{T[8]}, s76, v{T[8]}
            v_and_b32 v{T[9]}, 31, v{vL}
            v_lshrrev_b32 v{T[11]}, 5, v{vL}
            v_lshlrev_b32 v{T[10]}, 3, v{T[9]}
            v_lshl_add_u32 v{T[10]}, v{T[11]}, 2, v{T[10]}
            v_lshlrev_b32 v{T[9]}, 4, v{T[9]}
            v_lshl_add_u32 v{T[9]}, v{T[11]}, 11, v{T[9]}
            s_lshl_b32 s{sTo}, s{sC}, 10
            """)
        tok, r = items[('V', n)]
        g.wait(tok)
        if P['exp'] & 1 and n > 0:
            g(f"v_xor_b32 v{T[7]}, v{r}, v{A}")
        else:
            g(f"v_mfma_f32_16x16x32_bf16 {q4(vACC)}, {q4(A)}, {q4(r)}, {'0' if n == 0 else q4(vACC)}")
        pool.append(r)
        if n & 3 == 3: pstamp()
        if n < 63:
            run_aux()
    assert not queue and not aux
    stamp(5)
    vOBW, vOBR = T[8], T[9]
    g(f"v_pk_mul_f32 {q2(vACC)}, {q2(vACC)}, {q2(vFAC-1)} op_sel:[0,1] op_sel_hi:[1,1]")
    g(f"v_pk_mul_f32 {q2(vACC+2)}, {q2(vACC+2)}, {q2(vFAC-1)} op_sel:[0,1] op_sel_hi:[1,1]")
    g("s_mov_b32 exec_hi, 0")
    g(f"ds_write_b128 v{vOBW}, {q4(vACC)} offset:{OB}")
    g("s_mov_b32 exec_hi, -1")
    g(f"s_cmp_lg_u32 s{sW}, 0")
    g.lgk(0)
    g("s_barrier")
    g("s_cbranch_scc1 L_osum_done")
    def sum8(regs):
        g.lgk(2)
        g(f"v_pk_add_f32 {q2(regs[0])}, {q2(regs[0])}, {q2(regs[1])}")
        g(f"v_pk_add_f32 {q2(regs[0]+2)}, {q2(regs[0]+2)}, {q2(regs[1]+2)}")
        g.lgk(0)
        g(f"v_pk_add_f32 {q2(regs[2])}, {q2(regs[2])}, {q2(regs[3])}")
        g(f"v_pk_add_f32 {q2(regs[2]+2)}, {q2(regs[2]+2)}, {q2(regs[3]+2)}")
        g(f"v_pk_add_f32 {q2(regs[0])}, {q2(regs[0])}, {q2(regs[2])}")
        g(f"v_pk_add_f32 {q2(regs[0]+2)}, {q2(regs[0]+2)}, {q2(regs[2]+2)}")
        g(f"v_permlane32_swap_b32 v{regs[0]}, v{regs[0]+2}")
        g(f"v_permlane32_swap_b32 v{regs[0]+1}, v{regs[0]+3}")
        g(f"v_pk_add_f32 {q2(regs[0])}, {q2(regs[0])}, {q2(regs[0]+2)}")
    SR = [vA0, vA1, vQ, vS]
    for n in range(4):
        g(f"ds_read_b128 {q4(SR[n])}, v{vOBR} offset:{OB+512*n}")
    sum8(SR)
    g(f"v_cvt_pk_bf16_f32 v{vA0}, v{vA0}, v{vA0+1}")
    untracked(f"buffer_store_dword v{vA0}, v{T[10]}, {WS}, s{sTo} offen offset:128 sc1")
    g.label("L_osum_done")
    g(f"ds_read_b32 v{T[0]}, v{vZ} offset:{ROLE}")
    g.lgk(0)
    stamp(6); stamp_flush()
    g(f"v_readfirstlane_b32 s{sR}, v{T[0]}")
    g(f"s_and_b32 s{sR}, s{sR}, 255")
    if P['stamps']:
        g(f"s_add_u32 s76, s{sR}, 1"); g(f"v_writelane_b32 v{vST}, s76, 11")
    if P['order'] == 'BF':
        g(f"s_cmp_lt_u32 s{sR}, 36"); g("s_cbranch_scc1 L_stb")
        g(f"s_sub_u32 s{sR}, s{sR}, 36")
        g(f"s_cmp_lt_u32 s{sR}, 72"); g("s_cbranch_scc1 L_ffn")
        g(f"s_sub_u32 s{sR}, s{sR}, 72")
    else:
        g(f"s_cmp_lt_u32 s{sR}, 72"); g("s_cbranch_scc1 L_ffn")
        g(f"s_sub_u32 s{sR}, s{sR}, 72")
        g(f"s_cmp_lt_u32 s{sR}, 36"); g("s_cbranch_scc1 L_stb")
        g(f"s_sub_u32 s{sR}, s{sR}, 36")
    g(f"s_cmp_lt_u32 s{sR}, 72"); g("s_cbranch_scc0 L_fin")
    g(f"s_cmp_lg_u32 s{sW}, 0"); g("s_cbranch_scc1 L_fin")
    save_nst = nst[0]
    def role_begin(label):
        g.label(label)
        g.hist = []
        pool[:] = POOL
        g.vm_issued = 0; g.vm_done = 0
        nst[0] = save_nst
        aux.clear()

    def dense(store, key, vaddr, srd, sbase, base, rstride, pol):
        while g.outstanding() + 8 > 60 or len(pool) < 8:
            tok, fn = aux.pop(0); g.wait(tok); fn()
        rs = [pool.pop(0) for _ in range(4)]
        raw = []
        per = max(1, 4096 // rstride) if rstride * 3 < 4096 else 1
        per = 4 if per >= 3 else 1
        for e in range(8):
            if e % per == 0:
                g(f"s_add_u32 s{sTo}, s{sbase}, {base + e*rstride}")
            r = rs[e // 2] + 2 * (e & 1)
            raw.append(r)
            tok = g.vm(f"buffer_load_dwordx2 {q2(r)}, v{vaddr}, {srd}, s{sTo} offen offset:{(e%per)*rstride} {pol}")
        def fin():
            outs = [pool.pop(0) for _ in range(4)]
            for k in range(4):
                for d in range(2):
                    g(f"v_perm_b32 v{outs[2*d]+k}, v{raw[2*k+1]+d}, v{raw[2*k]+d}, s{sPL}")
                    g(f"v_perm_b32 v{outs[2*d+1]+k}, v{raw[2*k+1]+d}, v{raw[2*k]+d}, s{sPH}")
            pool.extend(rs)
            store[key] = outs
        aux.append((tok, fin))

    crole[0] = 3
    g(f"""
    s_mov_b32 s56, s4
    s_mov_b32 s57, s5
    s_mov_b32 s58, 2304
    s_mov_b32 s59, 0x20000
    s_mov_b32 s60, s22
    s_mov_b32 s61, s23
    s_mov_b32 s62, 2304
    s_mov_b32 s63, 0x20000
    s_lshr_b32 s76, s{sR}, 3
    s_lshl_b32 s76, s76, 6
    s_bfe_u32 s77, s{sR}, 0x20001
    s_add_u32 s76, s76, s77
    s_and_b32 s77, s{sR}, 1
    s_lshl_b32 s77, s77, 5
    s_add_u32 s76, s76, s77
    v_and_b32 v{T[0]}, 3, v{vL}
    v_lshrrev_b32 v{T[1]}, 1, v{vG}
    v_lshl_add_u32 v{T[1]}, v{T[0]}, 1, v{T[1]}
    v_lshl_add_u32 v{T[1]}, v{T[1]}, 2, s76
    v_and_b32 v{T[2]}, 1, v{vG}
    v_mul_u32_u24 v{T[2]}, 1152, v{T[2]}
    v_lshl_add_u32 v{T[3]}, v{T[1]}, 1, v{T[2]}
    v_lshrrev_b32 v{T[4]}, 3, v{T[1]}
    v_lshl_add_u32 v{T[4]}, v{T[4]}, 4, v{T[2]}
    v_and_b32 v{T[5]}, 3, v{T[1]}
    v_lshl_add_u32 v{T[4]}, v{T[5]}, 2, v{T[4]}
    v_bfe_u32 v{T[5]}, v{T[1]}, 2, 1
    v_mad_u32_u24 v{T[4]}, v{T[5]}, s58, v{T[4]}
    v_lshrrev_b32 v{T[5]}, 2, v{vJ}
    v_mul_u32_u24 v{T[5]}, 4608, v{T[5]}
    v_add_u32 v{T[4]}, v{T[4]}, v{T[5]}
    s_and_b32 s70, s{sR}, {R_-1}
    s_mul_i32 s70, s70, 18432
    s_add_u32 s70, s70, {YP}
    v_lshrrev_b32 v{T[5]}, 2, v{vL}
    v_mul_u32_u24 v{T[5]}, 4608, v{T[5]}
    v_lshl_add_u32 v{T[5]}, v{T[0]}, 4, v{T[5]}
    s_lshl_b32 s71, s{sR}, 6
    s_add_u32 s71, s71, {DB}
    s_mov_b32 s{sCNT}, 0
    """)
    g(f"buffer_load_ushort v{T[9]}, v{T[3]}, {XS}, 0 offen")
    g.label("L_r1")
    g(f"buffer_load_dword v{T[10]}, v{T[4]}, {WS}, s70 offen sc1")
    g("s_waitcnt vmcnt(0)")
    g(f"v_cmp_u_f32 vcc, v{T[10]}, v{T[10]}")
    g(f"s_add_u32 s{sCNT}, s{sCNT}, 1")
    g("s_cbranch_vccz L_r1_ok")
    g("s_sleep 4")
    g(f"s_cmp_lt_u32 s{sCNT}, {P['LIMIT']}"); g("s_cbranch_scc1 L_r1")
    g.label("L_r1_ok")
    stamp(8)
    YR = POOL[0:5]
    sMs = [f"s[{a}:{a+1}]" for a in (80, 82, 84, 48, 50)]
    for n in range(5):
        g(f"s_mov_b64 {sMs[n]}, -1")
        if n == 4: g("s_mov_b32 s51, 0")
        g(f"s_add_u32 s{28+n}, s71, {n*16*4608}")
    for r in range(4): g(f"v_mov_b32 v{YR[4]+r}, 0")
    g(f"v_add_f32_dpp v{T[10]}, v{T[10]}, v{T[10]} row_ror:4 row_mask:0xf bank_mask:0xf")
    g(f"v_add_f32_dpp v{T[10]}, v{T[10]}, v{T[10]} row_ror:8 row_mask:0xf bank_mask:0xf")
    bf16r(T[10], T[10])
    g(f"v_lshlrev_b32 v{T[9]}, 16, v{T[9]}")
    g(f"v_add_f32 v{T[10]}, v{T[10]}, v{T[9]}")
    bf16r(T[10], T[10])
    g(f"s_mov_b32 s{sCNT}, 0")
    g.label("L_r2")
    for n in range(5):
        g(f"s_mov_b64 exec, {sMs[n]}")
        g(f"s_cbranch_execz L_r2s{n}")
        g(f"buffer_load_dwordx4 {q4(YR[n])}, v{T[5]}, {WS}, s{28+n} offen sc1")
        g.label(f"L_r2s{n}")
    g("s_mov_b64 exec, -1")
    g("s_waitcnt vmcnt(0)")
    y, y2 = vA0, vA1
    g(f"v_pk_add_f32 {q2(y)}, {q2(YR[0])}, {q2(YR[1])}")
    g(f"v_pk_add_f32 {q2(y+2)}, {q2(YR[0]+2)}, {q2(YR[1]+2)}")
    g(f"v_pk_add_f32 {q2(y2)}, {q2(YR[2])}, {q2(YR[3])}")
    g(f"v_pk_add_f32 {q2(y2+2)}, {q2(YR[2]+2)}, {q2(YR[3]+2)}")
    g(f"v_pk_add_f32 {q2(y)}, {q2(y)}, {q2(YR[4])}")
    g(f"v_pk_add_f32 {q2(y+2)}, {q2(y+2)}, {q2(YR[4]+2)}")
    g(f"v_pk_add_f32 {q2(y)}, {q2(y)}, {q2(y2)}")
    g(f"v_pk_add_f32 {q2(y+2)}, {q2(y+2)}, {q2(y2+2)}")
    g(f"v_permlane16_swap_b32 v{y}, v{y+1}")
    g(f"v_permlane16_swap_b32 v{y+2}, v{y+3}")
    g(f"v_add_f32 v{y}, v{y}, v{y+1}")
    g(f"v_add_f32 v{y+2}, v{y+2}, v{y+3}")
    g(f"v_permlane32_swap_b32 v{y}, v{y+2}")
    g(f"v_add_f32 v{y}, v{y}, v{y+2}")
    g(f"v_add_f32_dpp v{y}, v{y}, v{y} row_ror:4 row_mask:0xf bank_mask:0xf")
    g(f"v_add_f32_dpp v{y}, v{y}, v{y} row_ror:8 row_mask:0xf bank_mask:0xf")
    g(f"s_add_u32 s{sCNT}, s{sCNT}, 1")
    g(f"v_cmp_u_f32 vcc, v{y}, v{y}")
    g("s_cbranch_vccz L_r2_ok")
    for n in range(5):
        g(f"v_cmp_u_f32 {sMs[n]}, v{YR[n]}, v{YR[n]+1}")
        g(f"v_cmp_u_f32 vcc, v{YR[n]+2}, v{YR[n]+3}")
        g(f"s_or_b64 {sMs[n]}, {sMs[n]}, vcc")
    if P['rsleep']: g(f"s_sleep {P['rsleep']}")
    g(f"s_cmp_lt_u32 s{sCNT}, {P['LIMIT']}"); g("s_cbranch_scc1 L_r2")
    g.label("L_r2_ok")
    stamp(9)
    bf16r(y, y)
    g(f"v_add_f32 v{y}, v{y}, v{T[10]}")
    g(f"v_cvt_pk_bf16_f32 v{y}, v{y}, v{y}")
    g("s_mov_b32 exec_lo, 0x000f000f"); g("s_mov_b32 exec_hi, 0x000f000f")
    g(f"buffer_store_short v{y}, v{T[3]}, {OUT}, 0 offen")
    g("s_mov_b64 exec, -1")
    if P['stamps'] or P['probe'] == 10:
        g("s_waitcnt vmcnt(0)")
        stamp(10)
        stamp_flush()
    if P['padto']:
        g.label("L_pad")
        g("s_memrealtime s[96:97]"); g("s_waitcnt lgkmcnt(0)"); g("s_sub_u32 s96, s96, s98")
        g(f"s_cmp_lt_u32 s96, {P['padto']}"); g("s_cbranch_scc1 L_pad")
    g("s_branch L_fin" if P['stamps'] or P['probe'] >= 0 else "s_endpgm")

    role_begin("L_stb")
    crole[0] = 1
    g(f"""
    s_mul_i32 s76, s{sR}, 57
    s_lshr_b32 s76, s76, 9
    s_mul_i32 s77, s76, 9
    s_sub_u32 s77, s{sR}, s77
    s_mov_b32 s36, s12
    s_mov_b32 s37, s13
    s_mov_b32 s38, {4096*1152}
    s_mov_b32 s39, 0x20000
    s_lshl_b32 s70, s76, 3
    s_add_u32 s70, s70, s{sW}
    s_mul_i32 s71, s70, {128*1152}
    s_lshl_b32 s77, s77, 7
    s_add_u32 s71, s71, s77
    v_mul_u32_u24 v{vX}, 9216, v{vG}
    v_lshl_add_u32 v{vX}, v{vJ}, 3, v{vX}
    """)
    WOP = {}
    for t in range(4):
        dense(WOP, t, vX, W1, 71, t * 32 * 1152, 1152, P['pol'])
    g(f"""
    s_lshl_b32 s70, s70, 12
    v_bfe_u32 v{T[0]}, v{vJ}, 2, 1
    v_lshlrev_b32 v{T[0]}, 17, v{T[0]}
    v_and_b32 v{T[1]}, 3, v{vJ}
    v_lshl_add_u32 v{T[0]}, v{T[1]}, 10, v{T[0]}
    v_lshl_add_u32 v{T[0]}, v{vG}, 4, v{T[0]}
    s_mul_i32 s76, s76, 4608
    s_add_u32 s76, s76, s77
    s_mul_i32 s77, s{sW}, {18432 * (R_ // P['NRW'])}
    s_add_u32 s76, s76, s77
    s_add_u32 s72, s76, {YP}
    v_lshlrev_b32 v{T[1]}, 4, v{vL}
    s_lshl_b32 s77, s{sW}, 9
    v_add_u32 v{T[1]}, s77, v{T[1]}
    v_and_b32 v{T[2]}, 1, v{vG}
    v_mul_u32_u24 v{T[2]}, 1152, v{T[2]}
    v_and_b32 v{T[3]}, 1, v{vJ}
    v_mul_u32_u24 v{T[3]}, 2304, v{T[3]}
    v_add_u32 v{T[2]}, v{T[2]}, v{T[3]}
    v_lshrrev_b32 v{T[3]}, 1, v{vJ}
    v_lshl_add_u32 v{T[2]}, v{T[3]}, 4, v{T[2]}
    v_lshrrev_b32 v{T[3]}, 1, v{vG}
    v_lshl_add_u32 v{T[2]}, v{T[3]}, 3, v{T[2]}
    s_mov_b32 s{sCNT}, 0
    """)
    run_aux(True)
    stamp(7)
    AO = [pool.pop(0) for _ in range(4)]
    DD = [pool.pop(0) for _ in range(4)]
    g.label("L_bp")
    for t in range(4):
        g(f"buffer_load_dwordx4 {q4(AO[t])}, v{T[0]}, {WS}, s70 offen offset:{128+64*t} sc1")
    g("s_mov_b64 exec, -1")
    for t in range(4):
        g(f"s_waitcnt vmcnt({3-t})")
        if t == 0:
            g(f"v_max3_u32 v{T[4]}, v{AO[t]}, v{AO[t]+1}, v{AO[t]+2}")
            g(f"v_max_u32 v{T[4]}, v{T[4]}, v{AO[t]+3}")
        else:
            g(f"v_max3_u32 v{T[4]}, v{T[4]}, v{AO[t]}, v{AO[t]+1}")
            g(f"v_max3_u32 v{T[4]}, v{T[4]}, v{AO[t]+2}, v{AO[t]+3}")
    g(f"v_cmp_eq_u32 vcc, -1, v{T[4]}")
    g(f"s_add_u32 s{sCNT}, s{sCNT}, 1")
    g("s_cbranch_vccz L_bp_ok")
    if P['bsleep']: g(f"s_sleep {P['bsleep']}")
    g("s_mov_b64 exec, vcc")
    g(f"s_cmp_lt_u32 s{sCNT}, {P['LIMIT']}"); g("s_cbranch_scc1 L_bp")
    g("s_mov_b64 exec, -1")
    g.label("L_bp_ok")
    stamp(8)
    for t in range(4):
        for c in range(4):
            g(f"v_mfma_f32_16x16x32_bf16 {q4(DD[c])}, {q4(AO[t])}, {q4(WOP[t][c])}, {'0' if t == 0 else q4(DD[c])}")
    for c in range(4): g(f"v_pk_add_f32 {q2(DD[c])}, {q2(DD[c])}, {q2(DD[c]+2)}")
    for c in range(4): g(f"v_add_f32 v{vACC+c}, v{DD[c]}, v{DD[c]+1}")
    g("s_mov_b32 exec_hi, 0")
    g(f"ds_write_b128 v{T[1]}, {q4(vACC)} offset:{GUL}")
    g("s_mov_b32 exec_hi, -1")
    g(f"s_cmp_ge_u32 s{sW}, {P['NRW']}")
    g.lgk(0)
    stamp_flush()
    g("s_barrier")
    g("s_cbranch_scc1 L_fin")
    for n in range(4):
        g(f"ds_read_b128 {q4(SR[n])}, v{vOBR} offset:{GUL+512*n}")
    sum8(SR)
    for k in range(R_ // P['NRW']):
        g(f"buffer_store_dwordx2 {q2(vA0)}, v{T[2]}, {WS}, s72 offen sc1")
        if k < R_ // P['NRW'] - 1:
            g("s_add_u32 s72, s72, 18432")
    stamp(10); stamp_flush()
    g("s_branch L_fin")

    role_begin("L_ffn")
    crole[0] = 2
    g(f"""
    s_mov_b32 s36, s16
    s_mov_b32 s37, s17
    s_mov_b32 s38, {576*9216}
    s_mov_b32 s39, 0x20000
    s_mov_b32 s40, s18
    s_mov_b32 s41, s19
    s_mov_b32 s42, {576*9216}
    s_mov_b32 s43, 0x20000
    s_mov_b32 s44, s20
    s_mov_b32 s45, s21
    s_mov_b32 s46, {4608*1152}
    s_mov_b32 s47, 0x20000
    s_lshl_b32 s76, s{sR}, 7
    s_mul_i32 s70, s{sW}, {64*9216}
    s_add_u32 s70, s70, s76
    s_mul_i32 s71, s{sW}, {32*9216}
    s_add_u32 s71, s71, s76
    s_add_u32 s71, s71, {512*9216}
    s_mul_i32 s72, s{sR}, {64*1152}
    s_lshl_b32 s76, s{sW}, 7
    s_add_u32 s88, s72, 1024
    s_add_u32 s72, s72, s76
    v_mul_u32_u24 v{vX}, {8*9216}, v{vG}
    v_lshl_add_u32 v{vX}, v{vJ}, 3, v{vX}
    v_mul_u32_u24 v{vW}, 9216, v{vG}
    v_lshl_add_u32 v{vW}, v{vJ}, 3, v{vW}
    """)
    EX = {}
    g(f"s_cmp_gt_u32 s{sW}, 2"); g("s_cbranch_scc1 L_ex_done")
    g(f"s_cmp_eq_u32 s{sW}, 2"); g("s_cbranch_scc1 L_ex_d")
    dense(EX, 0, vX, W1, 71, 0, 9216, P['pol'])
    dense(EX, 1, vX, W2, 71, 0, 9216, P['pol'])
    g("s_branch L_ex_done")
    g.label("L_ex_d")
    pool[:] = POOL; g.vm_issued = 0; aux.clear()
    dense(EX, 0, vW, W3, 88, 0, 1152, P['pol'])
    dense(EX, 1, vW, W3, 88, 32 * 1152, 1152, P['pol'])
    g.label("L_ex_done")
    GU = {}
    for s in range(2):
        dense(GU, (0, s), vX, W1, 70, s * 32 * 9216, 9216, P['pol'])
        dense(GU, (1, s), vX, W2, 70, s * 32 * 9216, 9216, P['pol'])
    dense(GU, ('d', 0), vW, W3, 72, 0, 1152, P['pol'])
    vH, vE, vSTa, vRd, vRs, vSQ, vAW, vAR, vDS, vXa = T[0:10]
    g(f"""
    s_mov_b32 s56, s4
    s_mov_b32 s57, s5
    s_mov_b32 s58, 2304
    s_mov_b32 s59, 0x20000
    v_bfe_u32 v{T[10]}, v{vJ}, 1, 2
    v_lshl_add_u32 v{T[11]}, v{T[10]}, 2, v{vG}
    s_lshl_b32 s76, s{sW}, 3
    v_add_u32 v{T[12]}, s76, v{T[11]}
    s_lshl_b32 s76, s{sW}, 2
    s_add_u32 s76, s76, 64
    v_add_u32 v{T[13]}, s76, v{vG}
    v_cmp_eq_u32 vcc, 2, v{T[10]}
    v_cndmask_b32 v{T[12]}, v{T[12]}, v{T[13]}, vcc
    v_lshlrev_b32 v{T[12]}, 4, v{T[12]}
    v_and_b32 v{T[13]}, 1, v{vJ}
    v_mul_u32_u24 v{T[13]}, 1152, v{T[13]}
    v_add_u32 v{vXa}, v{T[12]}, v{T[13]}
    v_lshrrev_b32 v{T[13]}, 3, v{vJ}
    v_mul_u32_u24 v{T[13]}, 4608, v{T[13]}
    v_add_u32 v{vH}, v{vXa}, v{T[13]}
    s_cmp_lt_u32 s{sW}, 2
    s_cselect_b32 s76, 3, 2
    v_bfrev_b32 v{T[13]}, 1
    v_cmp_gt_u32 vcc, s76, v{T[10]}
    v_cndmask_b32 v{vH}, v{T[13]}, v{vH}, vcc
    v_cndmask_b32 v{vXa}, v{T[13]}, v{vXa}, vcc
    s_and_b32 s89, s{sR}, {R_-1}
    s_mul_i32 s89, s89, 18432
    s_add_u32 s89, s89, {YP}
    s_add_u32 s90, s89, 9216
    s_lshr_b32 s76, s{sW}, 2
    s_lshl_b32 s77, s76, 12
    s_lshl_b32 s76, s76, 10
    s_and_b32 s{sCNT}, s{sW}, 3
    s_lshl_b32 s{sCNT}, s{sCNT}, 2
    s_add_u32 s77, s77, s{sCNT}
    s_add_u32 s76, s76, s{sCNT}
    v_lshlrev_b32 v{vRd}, 4, v{vL}
    v_add_u32 v{vE}, s77, v{vRd}
    v_add_u32 v{vSTa}, s76, v{vRd}
    s_lshl_b32 s76, s{sW}, 10
    v_add_u32 v{vRd}, s76, v{vRd}
    s_mul_i32 s76, s{sW}, 528
    v_mov_b32 v{vSQ}, s76
    s_lshl_b32 s76, s{sW}, 4
    v_mov_b32 v{vRs}, s76
    v_lshlrev_b32 v{vAW}, 3, v{vJ}
    v_lshl_add_u32 v{vAW}, v{vG}, 1, v{vAW}
    s_lshl_b32 s76, s{sW}, 7
    v_add_u32 v{vAW}, s76, v{vAW}
    v_and_b32 v{vAR}, 1, v{vJ}
    v_lshlrev_b32 v{vAR}, 7, v{vAR}
    v_lshl_add_u32 v{vAR}, v{vG}, 4, v{vAR}
    v_lshlrev_b32 v{vDS}, 3, v{vL}
    s_mul_i32 s28, s{sR}, 4608
    s_add_u32 s28, s28, {DB}
    s_add_u32 s29, s28, 4096
    s_lshl_b32 s76, s{sW}, 9
    s_add_u32 s28, s28, s76
    """)
    XH = vQ
    g.vm(f"buffer_load_dwordx4 {q4(XH)}, v{vXa}, {XS}, 0 offen")
    AS = [vA0, vA1, vACC]
    for s in range(3):
        for r in range(4):
            g(f"v_mov_b32 v{AS[s]+r}, s{sONE}")
    dense(GU, ('d', 1), vW, W3, 72, 32 * 1152, 1152, P['pol'])
    run_aux(True)
    E = [[pool.pop(0) for _ in range(4)] for _ in range(2)]
    STq = pool.pop(0)
    XF = [pool.pop(0), pool.pop(0)]
    for r in range(4):
        g(f"v_lshlrev_b32 v{XF[r>>1]+2*(r&1)}, 16, v{XH+r}")
        g(f"v_and_b32 v{XF[r>>1]+2*(r&1)+1}, 0xffff0000, v{XH+r}")
    def gu_mfma(tag, stats, pre=None):
        def step(s, W):
            for m in range(2):
                for c in range(4):
                    g(f"v_mfma_f32_16x16x32_bf16 {q4(E[m][c])}, {q4(AS[s])}, {q4(W[m][c])}, {'0' if s == 0 else q4(E[m][c])}")
                    if pre and m == 0 and c == 0 and s < 2: pre(s + 1)
            if stats:
                g(f"v_mfma_f32_16x16x32_bf16 {q4(STq)}, {q4(AS[s])}, {q4(AS[s])}, {'0' if s == 0 else q4(STq)}")
        if pre: pre(0)
        step(0, [GU[(0, 0)], GU[(1, 0)]])
        step(1, [GU[(0, 1)], GU[(1, 1)]])
        g(f"s_cmp_ge_u32 s{sW}, 2"); g.emit(f"s_cbranch_scc1 L_gu2{tag}")
        step(2, [EX[0], EX[1]])
        g.flush()
        g.label(f"L_gu2{tag}")
        g("s_mov_b64 exec, 0xffff")
        for m in range(2):
            for c in range(4):
                g(f"ds_write2st64_b32 v{vE}, v{E[m][c]}, v{E[m][c]+1} offset0:{(GUL>>8) + 8*m + c} offset1:{(GUL>>8) + 8*m + 4 + c}")
        if stats:
            g("s_mov_b32 exec_lo, -1")
            g(f"ds_write2st64_b32 v{vSTa}, v{STq}, v{STq+1} offset0:{STB>>8} offset1:{(STB>>8)+2}")
        g("s_mov_b64 exec, -1")
        g(f"s_cmp_ge_u32 s{sW}, 2")
        g.lgk(0)
        g("s_barrier")
    G4, G5, U4, U5, SQ, SQ2, SM, SM2 = E[0] + E[1]
    CG, CU = T[10], T[11]
    def sum8b(r, r2, d):
        g(f"v_pk_add_f32 {q2(r)}, {q2(r)}, {q2(r2)}")
        g(f"v_pk_add_f32 {q2(r+2)}, {q2(r+2)}, {q2(r2+2)}")
        g(f"v_pk_add_f32 {q2(r)}, {q2(r)}, {q2(r+2)}")
        g(f"v_add_f32 v{d}, v{r}, v{r+1}")
    def rd_gu():
        g(f"ds_read_b128 {q4(G4)}, v{vRd} offset:{GUL}")
        g(f"ds_read_b128 {q4(G5)}, v{vRd} offset:{GUL+4096}")
        g(f"ds_read_b128 {q4(U4)}, v{vRd} offset:{GUL+2048}")
        g(f"ds_read_b128 {q4(U5)}, v{vRd} offset:{GUL+6144}")
    gu_mfma('c', False)
    g("s_cbranch_scc1 L_cs_done")
    rd_gu()
    g.lgk(0)
    sum8b(G4, G5, CG); sum8b(U4, U5, CU)
    g.flush()
    g.label("L_cs_done")
    g("s_barrier")
    stamp(7)
    HL = [pool.pop(0) for _ in range(4)]
    H0, H1 = pool.pop(0), pool.pop(0)
    H = vS
    g(f"s_mov_b32 s{sCNT}, 0")
    g.label("L_hp")
    g(f"buffer_load_dwordx4 {q4(HL[0])}, v{vH}, {WS}, s89 offen sc1")
    g(f"buffer_load_dwordx4 {q4(HL[1])}, v{vH}, {WS}, s90 offen sc1")
    g(f"buffer_load_dwordx4 {q4(HL[2])}, v{vH}, {WS}, s89 offen offset:2304 sc1")
    g(f"buffer_load_dwordx4 {q4(HL[3])}, v{vH}, {WS}, s90 offen offset:2304 sc1")
    g("s_mov_b64 exec, -1")
    g("s_waitcnt vmcnt(2)")
    g(f"v_pk_add_f32 {q2(H0)}, {q2(HL[0])}, {q2(HL[1])}")
    g(f"v_pk_add_f32 {q2(H0+2)}, {q2(HL[0]+2)}, {q2(HL[1]+2)}")
    g("s_waitcnt vmcnt(0)")
    g(f"v_pk_add_f32 {q2(H1)}, {q2(HL[2])}, {q2(HL[3])}")
    g(f"v_pk_add_f32 {q2(H1+2)}, {q2(HL[2]+2)}, {q2(HL[3]+2)}")
    g(f"v_pk_add_f32 {q2(T[12])}, {q2(H0)}, {q2(H0+2)}")
    g(f"v_pk_add_f32 {q2(T[14])}, {q2(H1)}, {q2(H1+2)}")
    for r in range(4): g(f"v_add_f32_dpp v{H0+r}, v{H0+r}, v{H0+r} row_ror:8 row_mask:0xf bank_mask:0xf")
    g(f"v_pk_add_f32 {q2(T[12])}, {q2(T[12])}, {q2(T[14])}")
    for r in range(4): g(f"v_add_f32_dpp v{H1+r}, v{H1+r}, v{H1+r} row_ror:8 row_mask:0xf bank_mask:0xf")
    g(f"v_cmp_u_f32 vcc, v{T[12]}, v{T[13]}")
    g(f"s_add_u32 s{sCNT}, s{sCNT}, 1")
    g("s_cbranch_vccz L_hp_ok")
    if P['hsleep']: g(f"s_sleep {P['hsleep']}")
    g("s_mov_b64 exec, vcc")
    g(f"s_cmp_lt_u32 s{sCNT}, {P['LIMIT']}"); g("s_cbranch_scc1 L_hp")
    g("s_mov_b64 exec, -1")
    g.label("L_hp_ok")
    stamp(8)
    HH = [H0, H1]
    for r in range(4): g(f"v_cvt_pk_bf16_f32 v{H+r}, v{HH[r>>1]+2*(r&1)}, v{HH[r>>1]+2*(r&1)+1}")
    for r in range(4):
        g(f"v_lshlrev_b32 v{HH[r>>1]+2*(r&1)}, 16, v{H+r}")
        g(f"v_and_b32 v{HH[r>>1]+2*(r&1)+1}, 0xffff0000, v{H+r}")
    for r in range(4): g(f"v_pk_add_f32 {q2(HH[r>>1]+2*(r&1))}, {q2(HH[r>>1]+2*(r&1))}, {q2(XF[r>>1]+2*(r&1))}")
    for r in range(4): g(f"v_cvt_pk_bf16_f32 v{H+r}, v{HH[r>>1]+2*(r&1)}, v{HH[r>>1]+2*(r&1)+1}")
    def amov(s):
        for r in range(4):
            ctl = "quad_perm:[0,1,2,3]" if s == 0 else f"row_shl:{2*s}"
            g(f"v_mov_b32_dpp v{AS[s]+r}, v{H+r} {ctl} row_mask:0xf bank_mask:0x1")
    gu_mfma('m', True, amov)
    g("s_cbranch_scc1 L_act_done")
    g(f"ds_read_b128 {q4(SQ)}, v{vSQ} offset:{STB}")
    g(f"ds_read_b128 {q4(SQ2)}, v{vSQ} offset:{STB+1024}")
    g(f"ds_read_b128 {q4(SM)}, v{vRs} offset:{STB+256}")
    g(f"ds_read_b128 {q4(SM2)}, v{vRs} offset:{STB+1024+256}")
    rd_gu()
    g.lgk(4)
    sum8b(SQ, SQ2, SQ); sum8b(SM, SM2, SM)
    ln_scalars(SM, SQ, SQ + 1)
    g.lgk(0)
    sum8b(G4, G5, G4); sum8b(U4, U5, U4)
    g(f"v_fma_f32 v{G4}, -v{SM}, v{CG}, v{G4}")
    g(f"v_fma_f32 v{U4}, -v{SM}, v{CU}, v{U4}")
    g(f"v_mul_f32 v{G4}, v{G4}, v{SQ}")
    g(f"v_mul_f32 v{U4}, v{U4}, v{SQ}")
    bf16r(G4, G4); bf16r(U4, U4)
    k1 = -2 * math.sqrt(2 / math.pi) * math.log2(math.e)
    k3 = k1 * 0.044715
    t = G5
    g(f"v_mul_f32 v{t}, v{G4}, v{G4}")
    g(f"v_mov_b32 v{t+1}, {f2h(k1)}")
    g(f"v_fmac_f32 v{t+1}, {f2h(k3)}, v{t}")
    g(f"v_mul_f32 v{t}, v{t+1}, v{G4}")
    g(f"v_exp_f32 v{t}, v{t}")
    g(f"v_add_f32 v{t}, 1.0, v{t}")
    g(f"v_rcp_f32 v{t}, v{t}")
    g(f"v_mul_f32 v{t}, v{t}, v{G4}")
    bf16r(t, t)
    g(f"v_mul_f32 v{t}, v{t}, v{U4}")
    g(f"v_cvt_pk_bf16_f32 v{t}, v{t}, v{t}")
    g(f"ds_write_b16 v{vAW}, v{t} offset:{ACT}")
    g.lgk(0)
    g.label("L_act_done")
    g("s_barrier")
    stamp(9)
    g(f"ds_read_b128 {q4(vA0)}, v{vAR} offset:{ACT}")
    g(f"ds_read_b128 {q4(vA1)}, v{vAR} offset:{ACT+64}")
    def down(F, W0_, W1_, so, first):
        for s, Wd in enumerate((W0_, W1_)):
            if first: g.lgk(1 - s)
            for c in range(4):
                g(f"v_mfma_f32_16x16x32_bf16 {q4(F[c])}, {q4(AS[s])}, {q4(Wd[c])}, {'0' if s == 0 else q4(F[c])}")
    def down_fin(F, so):
        for c in range(1, 4):
            for r in range(2):
                g(f"v_mov_b32_dpp v{F[0]+r}, v{F[c]+r} quad_perm:[0,1,2,3] row_mask:{1<<c:#x} bank_mask:0xf")
        g(f"buffer_store_dwordx2 {q2(F[0])}, v{vDS}, {WS}, s{so} offen sc1")
    g(f"s_cmp_eq_u32 s{sW}, 2"); g("s_cbranch_scc1 L_dn2")
    down(E[0], GU[('d', 0)], GU[('d', 1)], 28, True)
    down_fin(E[0], 28)
    sv = nst[0]
    stamp(10); stamp_flush()
    g("s_branch L_fin")
    g.label("L_dn2")
    nst[0] = sv
    down(E[0], GU[('d', 0)], GU[('d', 1)], 28, True)
    down(E[1], EX[0], EX[1], 29, False)
    down_fin(E[0], 28)
    down_fin(E[1], 29)
    stamp(10); stamp_flush()
    g.label("L_fin")
    stamp_end()
    if P['probe'] >= 0:
        g("s_sub_u32 s96, s96, s98"); g("s_lshl_b32 s96, s96, 2"); g("s_add_u32 s96, s96, 8000")
        g.label("L_pad2")
        g("s_sleep 16")
        g("s_memrealtime s[94:95]"); g("s_waitcnt lgkmcnt(0)"); g("s_sub_u32 s94, s94, s98")
        g("s_cmp_lt_u32 s94, s96"); g("s_cbranch_scc1 L_pad2")
    g("s_endpgm")
    g.label("L_end")
    g("s_endpgm")

    tail = ['.section .rodata,"a"', ".p2align 6", f".amdhsa_kernel {KN}",
            "  .amdhsa_next_free_vgpr 256", "  .amdhsa_next_free_sgpr 102", "  .amdhsa_accum_offset 256",
            "  .amdhsa_group_segment_fixed_size 0", "  .amdhsa_kernarg_size 96", "  .amdhsa_user_sgpr_count 2",
            "  .amdhsa_user_sgpr_kernarg_segment_ptr 1", "  .amdhsa_system_sgpr_workgroup_id_x 1", ".end_amdhsa_kernel"]
    if P['stamps']:
        hdr.insert(1, "; PROG " + ",".join(str(v) for v in prog))
        hdr.insert(1, "; ORDER " + P['order'])
    return "\n".join(hdr) + "\n" + g.text() + "\n".join(tail) + "\n"


if __name__ == "__main__":
    out = sys.argv[1]
    kw = {}
    for a in sys.argv[2:]:
        k, v = a.split('=')
        try:
            v = int(v)
        except ValueError:
            try:
                v = float(v)
            except ValueError:
                pass
        kw[k] = v
    open(out, 'w').write(gen(**kw))
```

```python
import sys, os, struct, math
sys.path.insert(0, os.path.dirname(os.path.abspath(__file__)))
from asmlib import Gen

KN = "sequential_preLN__mha_block_cached__glu_gated_geglu__decode_kernel"

PG0 = 0
YP = 256 << 10
DB = YP + 8 * 18432
QP = 768 << 10
EP = 1280 << 10
WSN = 2 << 20
OOR = 0x80000000
QS = 0
ROLE = 256
OB = 512
GUL = 4608
STB = 12800
ACT = 14848
LDS_BYTES = 16384

DEF = dict(rot=5, L0=28, K0=4, D=16, Dk=20, XB=52, TK=40, TW=7, R=8, NRW=4, stamps=0, prog=0, pol="nt", polq="nt",
           warm=1, LIMIT=20000, qsleep=0, mlsleep=64, prio=1, order='BF', bsleep=0, hsleep=0, rsleep=0, padto=0, KA=4, bar0=1, pf=0, polp='', Dv=16, vg=1, exp=0, probe=-1, prole=0, gref=1, pmul=2)


def q4(b): return f"v[{b}:{b+3}]"
def q2(b): return f"v[{b}:{b+1}]"
f2h = lambda f: "0x%08x" % struct.unpack('<I', struct.pack('<f', f))[0]


def gen(**kw):
    P = dict(DEF); P.update(kw)
    g = Gen()
    R_ = P['R']; L0 = P['L0']; K0 = P['K0']
    hdr = []
    hdr.append(f"; @launch grid=(256,1,1) block=(512,1,1) lds={LDS_BYTES}")
    hdr.append('.amdgcn_target "amdgcn-amd-amdhsa--gfx950"')
    hdr += [".text", f".globl {KN}", ".p2align 8", f".type {KN},@function", f"{KN}:"]

    vL, vG, vJ, vK, vX, vM, vTK = 1, 2, 3, 4, 5, 6, 10
    vQ, vS, vACC, vA0, vA1 = 12, 16, 20, 24, 28
    T = list(range(32, 48))
    vMW, vFAC, vST, vZ, vCNT, vW, vML = 48, 49, 50, 51, 52, 53, 54
    POOL = list(range(56, 256, 4))
    pool = list(POOL)
    KS, VS, W1, W2, W3, _u, WS, XS, OUT = [f"s[{a}:{a+3}]" for a in range(28, 64, 4)]
    sW, sC, sB, sH, sI, sX = 64, 65, 66, 67, 68, 69
    sKo, sVo, sQo, sTo, sR, sE = 70, 71, 72, 73, 74, 75
    sPL, sPH = 78, 79
    sMK = {1: "s[80:81]", 2: "s[82:83]", 3: "s[84:85]"}
    sONE, sCNT = 86, 87
    sINV = 91

    nst = [0]
    crole = [0]
    def stamp(k):
        if P['probe'] == k and P['prole'] in (0, crole[0]):
            g("s_memrealtime s[96:97]")
            g.lgk(0)
        if not P['stamps']:
            return
        g.lgk(0)
        if nst[0]:
            g(f"v_writelane_b32 v{vST}, s92, {nst[0]-1}")
        g("s_memrealtime s[92:93]")
        nst[0] = k + 1
    def stamp_flush():
        if P['stamps'] and nst[0]:
            g.lgk(0)
            g(f"v_writelane_b32 v{vST}, s92, {nst[0]-1}")
            nst[0] = 0
    def stamp_end():
        if not P['stamps']:
            return
        stamp(15)
        stamp_flush()
        g(f"s_add_u32 s94, s26, {260<<20}"); g("s_addc_u32 s95, s27, 0")
        g(f"s_lshl_b32 s96, s2, 3"); g(f"s_add_u32 s96, s96, s{sW}"); g("s_lshl_b32 s96, s96, 8")
        g(f"v_lshlrev_b32 v{T[0]}, 2, v{vL}"); g(f"v_add_u32 v{T[0]}, s96, v{T[0]}")
        g(f"global_store_dword v{T[0]}, v{vST}, s[94:95]")
    prog = []
    bytes_of = {}
    def pstamp():
        if not (P['stamps'] and P['prog']):
            return
        k = 16 + len(prog)
        assert k < 64
        prog.append(sum(v for t, v in bytes_of.items() if t < g.vm_done))
        stamp(k)

    def bf16r(d, s):
        g(f"v_cvt_pk_bf16_f32 v{d}, v{s}, v{s}")
        g(f"v_and_b32 v{d}, 0xffff0000, v{d}")

    def allred(op, regs, tmps, rows=4):
        for sh in (8, 4, 2, 1):
            for r in regs:
                g(f"{op}_dpp v{r}, v{r}, v{r} row_ror:{sh} row_mask:0xf bank_mask:0xf")
        for sw in (("16", "32") if rows == 4 else ("16",)):
            for r, t in zip(regs, tmps):
                g(f"v_mov_b32 v{t}, v{r}")
            for r, t in zip(regs, tmps):
                g(f"v_permlane{sw}_swap_b32 v{r}, v{t}")
            for r, t in zip(regs, tmps):
                g(f"{op} v{r}, v{r}, v{t}")

    def ln_scalars(sm, sq, t):
        g(f"v_mul_f32 v{sm}, s{sINV}, v{sm}")
        g(f"v_mul_f32 v{t}, v{sm}, v{sm}")
        g(f"v_fma_f32 v{sq}, v{sq}, s{sINV}, -v{t}")
        g(f"v_max_f32 v{sq}, 0, v{sq}")
        bf16r(sq, sq)
        bf16r(sm, sm)
        g(f"v_add_f32 v{sq}, 0x3727c5ac, v{sq}")
        bf16r(sq, sq)
        g(f"v_sqrt_f32 v{sq}, v{sq}")
        bf16r(sq, sq)
        g(f"v_rcp_f32 v{sq}, v{sq}")

    def untracked(text):
        g.emit(text); g.vm_issued -= 1

    g("s_cmp_ge_u32 s2, 256"); g("s_cbranch_scc1 L_end")
    g("s_load_dwordx16 s[4:19], s[0:1], 0")
    g("s_load_dwordx8 s[20:27], s[0:1], 64")
    if P['padto'] or P['probe'] >= 0:
        g("s_memrealtime s[98:99]")
    if P['stamps']:
        g("s_memrealtime s[92:93]"); nst[0] = 1
        g(f"v_mov_b32 v{vST}, 0")
    g(f"""
    v_lshrrev_b32 v{T[0]}, 6, v0
    v_and_b32 v{vL}, 63, v0
    s_and_b32 s{sX}, s2, 7
    v_readfirstlane_b32 s{sW}, v{T[0]}
    s_lshr_b32 s{sI}, s2, 3
    s_lshr_b32 s{sB}, s{sI}, 4
    s_and_b32 s76, s{sI}, 15
    s_lshl_b32 s77, s{sX}, 4
    s_add_u32 s76, s76, s77
    s_lshr_b32 s{sH}, s76, 2
    s_lshl_b32 s{sC}, s{sB}, 7
    s_add_u32 s{sC}, s{sC}, s76
    v_lshlrev_b32 v{T[1]}, 4, v{vL}
    v_lshl_add_u32 v{vK}, v{T[0]}, 12, v{T[1]}
    s_mul_i32 s{sKo}, s{sC}, {P['rot']}
    s_and_b32 s{sKo}, s{sKo}, 15
    s_lshl_b32 s{sKo}, s{sKo}, 15
    s_mov_b32 s{sVo}, s{sKo}
    s_lshl_b32 s76, s{sC}, 19
    s_mov_b32 s30, 0x80000
    s_mov_b32 s31, 0x20000
    s_waitcnt lgkmcnt(0)
    s_add_u32 s28, s6, s76
    s_addc_u32 s29, s7, 0
    """)
    if P['probe'] >= 0:
        g("s_mov_b32 s96, s98")
        if P['gref']:
            g(f"s_not_b32 s76, s98"); g(f"v_mov_b32 v{T[2]}, s76"); g(f"v_mov_b32 v{T[3]}, 0")
            g(f"s_cmp_lg_u32 s{sW}, 0"); g("s_cbranch_scc1 L_nogref")
            g("s_mov_b64 exec, 1")
            untracked(f"global_atomic_umax v{T[3]}, v{T[2]}, s[24:25] offset:128 sc1")
            g("s_mov_b64 exec, -1")
            g.label("L_nogref")

    items = {}
    def issue_kv(kind, n, r):
        srd, so = (KS, sKo) if kind == 'K' else (VS, sVo)
        tok = g.vm(f"buffer_load_dwordx4 {q4(r)}, v{vK}, {srd}, s{so} offen offset:{(n&3)*1024} nt")
        if n & 3 == 3 and n != 63:
            g(f"s_add_u32 s{so}, s{so}, 0x8000"); g(f"s_and_b32 s{so}, s{so}, 0x7ffff")
        items[(kind, n)] = (tok, r)
        bytes_of[tok] = 1024

    def setup_ws():
        g(f"""
        s_mov_b32 s52, s26
        s_mov_b32 s53, s27
        s_mov_b32 s54, {WSN}
        s_mov_b32 s55, 0x20000
        """)
    def setup2(tag):
        g(f"""
        s_lshl_b32 s76, s{sC}, 19
        s_add_u32 s32, s8, s76
        s_addc_u32 s33, s9, 0
        s_mov_b32 s34, 0x80000
        s_mov_b32 s35, 0x20000
        v_and_b32 v{T[5]}, 1, v{vL}
        v_lshlrev_b32 v{T[5]}, 4, v{T[5]}
        v_mov_b32 v{T[7]}, 0xffff
        v_lshlrev_b32 v{T[5]}, v{T[5]}, v{T[7]}
        v_bfe_u32 v{T[7]}, v{vL}, 1, 2
        """)
        for r in range(4):
            g(f"v_cmp_eq_u32 vcc, {r}, v{T[7]}")
            g(f"v_cndmask_b32 v{vM+r}, 0, v{T[5]}, vcc")
        g(f"""
        s_mov_b32 s{sONE}, 0x3f803f80
        s_mov_b32 s{sPL}, 0x05040100
        s_mov_b32 s{sPH}, 0x07060302
        s_mov_b32 s80, 0x22222222
        s_mov_b32 s81, 0x22222222
        s_mov_b32 s82, 0x44444444
        s_mov_b32 s83, 0x44444444
        s_mov_b32 s84, 0x88888888
        s_mov_b32 s85, 0x88888888
        s_mov_b32 s{sINV}, {f2h(1.0/576)}
        v_mov_b32 v{vZ}, 0
        """)
        if P['warm']:
            g(f"""
            s_and_b32 s76, s{sI}, 7
            s_lshl_b32 s76, s76, 3
            s_add_u32 s76, s76, s{sW}
            s_lshl_b32 s76, s76, 10
            v_and_b32 v{vW}, 7, v{vL}
            v_lshl_add_u32 v{vW}, v{vW}, 7, s76
            v_min_u32 v{vW}, L_end-{KN}-64, v{vW}
            s_getpc_b64 s[76:77]
            """)
            g.label(f"L_warm{tag}")
            g(f"s_sub_u32 s76, s76, L_warm{tag}-{KN}"); g("s_subb_u32 s77, s77, 0")
            g.vm(f"global_load_dword v{vW}, v{vW}, s[76:77]")

    KA = P['KA']
    for n in range(KA):
        issue_kv('K', n, POOL[n])
    g(f"s_cmp_lg_u32 s{sW}, 0"); g("s_cbranch_scc1 L_oth")
    pre_out = g.out; g.out = []
    g.label("L_oth")
    g(f"v_lshrrev_b32 v{vG}, 4, v{vL}"); g(f"v_and_b32 v{vJ}, 15, v{vL}")
    setup_ws()
    setup2('a')
    if P['bar0']: g("s_barrier")
    for n in range(KA, L0):
        issue_kv('K', n, POOL[n])
    g("s_barrier")
    main_state = (g.vm_issued, g.vm_done, dict(items), dict(bytes_of), nst[0])
    main_out = g.out; main_hist = g.hist

    g.out = []; g.hist = []
    g.vm_issued = KA; g.vm_done = 0
    if P['prio']: g("s_setprio 3")
    XA, XB_, XE = POOL[26], POOL[27], POOL[28]
    XR = POOL[29]
    WQR = POOL[8:26]
    g(f"""
    s_lshl_b32 s76, s{sH}, 7
    s_add_u32 s76, s76, {EP}
    s_load_dword s{sE}, s[26:27], s76
    s_mov_b32 s56, s4
    s_mov_b32 s57, s5
    s_mov_b32 s58, 2304
    s_mov_b32 s59, 0x20000
    v_lshrrev_b32 v{T[2]}, 5, v{vL}
    v_mul_u32_u24 v{T[2]}, 1152, v{T[2]}
    v_and_b32 v{T[3]}, 31, v{vL}
    v_lshl_add_u32 v{T[4]}, v{T[3]}, 4, v{T[2]}
    v_lshl_add_u32 v{T[3]}, v{T[3]}, 2, v{T[2]}
    v_lshrrev_b32 v{vG}, 4, v{vL}
    v_and_b32 v{vJ}, 15, v{vL}
    """)
    g.vm(f"buffer_load_dwordx4 {q4(XA)}, v{T[4]}, {XS}, 0 offen")
    g.vm(f"buffer_load_dwordx4 {q4(XB_)}, v{T[4]}, {XS}, 0 offen offset:512")
    g.vm(f"buffer_load_dword v{XE}, v{T[3]}, {XS}, 0 offen offset:1024")
    g(f"""
    s_and_b32 s76, s{sI}, 3
    s_lshl_b32 s77, s{sB}, 2
    s_add_u32 s{sR}, s76, s77
    s_mul_i32 s{sTo}, s{sR}, 144
    v_lshlrev_b32 v{T[2]}, 3, v{vJ}
    v_lshl_add_u32 v{T[2]}, v{vG}, 1, v{T[2]}
    """)
    g.vm(f"buffer_load_ushort v{XR}, v{T[2]}, {XS}, s{sTo} offen")
    g.vm(f"buffer_load_ushort v{XR+1}, v{T[2]}, {XS}, s{sTo} offen offset:128")
    g.vm(f"buffer_load_ushort v{XR+2}, v{T[2]}, {XS}, s{sTo} offen offset:1152")
    tx = g.vm(f"buffer_load_ushort v{XR+3}, v{T[2]}, {XS}, s{sTo} offen offset:1280")
    g(f"""
    s_lshl_b32 s76, s{sH}, 8
    s_add_u32 s36, s10, s76
    s_addc_u32 s37, s11, 0
    s_sub_u32 s38, {576*8192}, s76
    s_mov_b32 s39, 0x20000
    s_mul_i32 s{sQo}, s{sR}, {72*8192}
    v_lshlrev_b32 v{vX}, 13, v{vG}
    v_lshl_add_u32 v{vX}, v{vJ}, 4, v{vX}
    """)
    tq = []
    for m in range(18):
        tq.append(g.vm(f"buffer_load_dwordx4 {q4(WQR[m])}, v{vX}, {W1}, s{sQo} offen {P['polq']}"))
        if m != 17:
            g(f"s_add_u32 s{sQo}, s{sQo}, 0x8000")
    setup_ws()
    g(f"""
    s_lshl_b32 s76, s{sC}, 10
    s_add_u32 s77, s76, {256<<10}
    s_add_u32 s{sTo}, s76, {512<<10}
    v_mov_b32 v{T[8]}, -1
    v_mov_b32 v{T[9]}, -1
    v_mov_b32 v{T[10]}, -1
    v_mov_b32 v{T[11]}, -1
    s_mov_b64 exec, 0xffffff
    """)
    g.vm(f"buffer_store_dwordx4 {q4(T[8])}, v{T[1]}, {WS}, s76 offen sc1")
    g("s_mov_b64 exec, -1")
    g.vm(f"buffer_store_dwordx4 {q4(T[8])}, v{T[1]}, {WS}, s77 offen sc1")
    tinit = g.vm(f"buffer_store_dwordx4 {q4(T[8])}, v{T[1]}, {WS}, s{sTo} offen sc1")
    if P['bar0']: g("s_barrier")
    for n in range(KA, K0):
        issue_kv('K', n, POOL[n])
    setup2('b')
    g.wait(tx)
    a, b_, t1, t2 = T[12], T[13], T[14], T[15]
    xs = [XA, XA + 1, XA + 2, XA + 3, XB_, XB_ + 1, XB_ + 2, XB_ + 3, XE]
    for k, r in enumerate(xs):
        g(f"v_dot2_f32_bf16 v{a}, v{r}, s{sONE}, {'0' if k == 0 else 'v%d' % a}")
        g(f"v_dot2_f32_bf16 v{b_}, v{r}, v{r}, {'0' if k == 0 else 'v%d' % b_}")
    allred("v_add_f32", [a, b_], [t1, t2], rows=2)
    ln_scalars(a, b_, t1)
    g(f"v_readlane_b32 s76, v{a}, 0"); g(f"v_readlane_b32 s77, v{a}, 32")
    g(f"v_readlane_b32 s88, v{b_}, 0"); g(f"v_readlane_b32 s89, v{b_}, 32")
    for k in range(4): g(f"v_lshlrev_b32 v{XR+k}, 16, v{XR+k}")
    for k in range(4): g(f"v_subrev_f32 v{XR+k}, s{76 + (k>>1)}, v{XR+k}")
    for k in range(4): bf16r(XR + k, XR + k)
    for k in range(4): g(f"v_mul_f32 v{XR+k}, s{88 + (k>>1)}, v{XR+k}")
    for k in range(4): g(f"v_cvt_pk_bf16_f32 v{XR+k}, v{XR+k}, v{XR+k}")
    for m in range(18):
        A = vA0 if m & 1 == 0 else vA1
        t = T[12 + (m & 1)]
        g(f"v_mov_b32_dpp v{t}, v{XR+(m>>4)} row_newbcast:{m&15} row_mask:0xf bank_mask:0x3")
        g(f"v_mov_b32_dpp v{t}, v{XR+2+(m>>4)} row_newbcast:{m&15} row_mask:0xf bank_mask:0xc")
        for r in range(4):
            g(f"v_and_b32 v{A+r}, v{t}, v{vM+r}")
        g.wait(tq[m])
        g(f"v_mfma_f32_16x16x32_bf16 {q4(vACC)}, {q4(A)}, {q4(WQR[m])}, {'0' if m == 0 else q4(vACC)}")
    g(f"""
    s_waitcnt lgkmcnt(0)
    s_add_u32 s{sE}, s{sE}, 1
    s_lshl_b32 s76, s{sH}, 4
    s_add_u32 s76, s76, s{sR}
    s_lshl_b32 s76, s76, 10
    s_add_u32 s76, s76, {QP}
    v_lshrrev_b32 v{T[2]}, 1, v{vG}
    v_lshlrev_b32 v{T[2]}, 13, v{T[2]}
    v_lshl_add_u32 v{T[2]}, v{vJ}, 5, v{T[2]}
    v_and_b32 v{T[3]}, 1, v{vG}
    v_lshl_add_u32 v{T[2]}, v{T[3]}, 4, v{T[2]}
    v_mov_b32 v{vA0+1}, s{sE}
    v_mov_b32 v{vA0+3}, s{sE}
    v_mov_b32 v{vA1+1}, s{sE}
    v_mov_b32 v{vA1+3}, s{sE}
    v_mov_b32 v{T[4]}, 1
    v_mov_b32 v{vA0}, v{vACC}
    v_mov_b32 v{vA0+2}, v{vACC+1}
    v_mov_b32 v{vA1}, v{vACC+2}
    v_mov_b32 v{vA1+2}, v{vACC+3}
    """)
    g.wait(tinit)
    g.vm(f"buffer_store_dwordx4 {q4(vA0)}, v{T[2]}, {WS}, s76 offen sc1")
    g.vm(f"buffer_store_dwordx4 {q4(vA1)}, v{T[2]}, {WS}, s76 offen offset:512 sc1")
    g("s_mov_b64 exec, 1")
    g.vm(f"global_atomic_add v{vZ}, v{T[4]}, s[24:25] sc1")
    g("s_mov_b64 exec, -1")
    stamp(1)
    QR = POOL[8:16]
    g(f"""
    s_lshl_b32 s76, s{sH}, 1
    s_add_u32 s76, s76, s{sB}
    s_lshl_b32 s76, s76, 13
    s_add_u32 s76, s76, {QP}
    s_add_u32 s77, s76, 4096
    s_mov_b32 s{sCNT}, 0
    v_and_b32 v{T[3]}, 31, v{vL}
    v_lshlrev_b32 v{T[3]}, 3, v{T[3]}
    v_lshrrev_b32 v{T[2]}, 5, v{vL}
    v_lshl_add_u32 v{T[3]}, v{T[2]}, 2, v{T[3]}
    """)
    if P['qsleep']: g(f"s_sleep {P['qsleep']}")
    g.label("L_qp")
    for n in range(8):
        g(f"buffer_load_dwordx4 {q4(QR[n])}, v{T[1]}, {WS}, s{76 + (n>>2)} offen offset:{(n&3)*1024} sc1")
    g.waitall()
    mn, mx = T[4], T[5]
    g(f"v_min_u32 v{mn}, v{QR[0]+1}, v{QR[0]+3}"); g(f"v_max_u32 v{mx}, v{QR[0]+1}, v{QR[0]+3}")
    for n in range(1, 8):
        g(f"v_min3_u32 v{mn}, v{mn}, v{QR[n]+1}, v{QR[n]+3}"); g(f"v_max3_u32 v{mx}, v{mx}, v{QR[n]+1}, v{QR[n]+3}")
    g(f"v_cmp_ne_u32 vcc, s{sE}, v{mn}")
    g(f"v_cmp_ne_u32 s[88:89], s{sE}, v{mx}")
    g(f"s_add_u32 s{sCNT}, s{sCNT}, 1")
    g("s_or_b64 vcc, vcc, s[88:89]")
    g("s_cbranch_scc0 L_qp_ok")
    g(f"s_cmp_lt_u32 s{sCNT}, {P['LIMIT']}"); g("s_cbranch_scc1 L_qp")
    g.label("L_qp_ok")
    for st in (1, 2, 4):
        for n in range(0, 8, 2 * st):
            g(f"v_add_f32 v{QR[n]}, v{QR[n]}, v{QR[n+st]}")
            g(f"v_add_f32 v{QR[n]+2}, v{QR[n]+2}, v{QR[n+st]+2}")
    g(f"v_cvt_pk_bf16_f32 v{QR[0]}, v{QR[0]}, v{QR[0]+2}")
    g(f"ds_write_b32 v{T[3]}, v{QR[0]} offset:{QS}")
    g.lgk(0)
    g("s_barrier")
    if P['prio']: g("s_setprio 0")
    g(f"s_cmp_eq_u32 s{sR}, 0"); g("s_cbranch_scc0 L_noep")
    g(f"s_lshl_b32 s76, s{sH}, 7"); g(f"s_add_u32 s76, s76, {EP}")
    g("s_mov_b64 exec, 1")
    g(f"buffer_store_dword v{vA0+1}, v{vZ}, {WS}, s76 offen sc1")
    g("s_mov_b64 exec, -1")
    g.label("L_noep")
    for n in range(K0, L0):
        issue_kv('K', n, POOL[n])
    stamp_flush()
    g("s_branch L_q2")
    w0_out = g.out

    g.out = pre_out + w0_out + main_out; g.hist = main_hist
    g.vm_issued, g.vm_done, it, bo, nst[0] = main_state
    items.clear(); items.update(it); bytes_of.clear(); bytes_of.update(bo)
    stamp_flush()
    g.flush()
    g.label("L_q2")
    pool[:] = POOL[L0:]
    g(f"v_lshlrev_b32 v{T[3]}, 4, v{vJ}")
    g(f"ds_read_b128 {q4(vQ)}, v{T[3]} offset:{QS}")
    g.lgk(0)
    stamp(2)

    queue = []
    aux = []
    def kv_item(kind, n):
        return (1, lambda: issue_kv(kind, n, pool.pop(0)))
    def pump(limit):
        while queue:
            nq, issue = queue[0]
            if len(pool) < nq or g.outstanding() >= min(limit, 60):
                break
            queue.pop(0)
            issue()
    def run_aux(force=False):
        while aux and (force or aux[0][0] < g.vm_done):
            tok, fn = aux.pop(0)
            g.wait(tok)
            fn()

    def ticket():
        g(f"s_cmp_lg_u32 s{sW}, {P['TW']}"); g("s_cbranch_scc1 L_notk")
        g(f"v_mov_b32 v{T[14]}, 0"); g(f"v_mov_b32 v{T[15]}, 1")
        g("s_mov_b64 exec, 1")
        untracked(f"global_atomic_add_x2 {q2(vTK)}, v{vZ}, {q2(T[14])}, s[24:25] sc0 sc1")
        g("s_mov_b64 exec, -1")
        g.label("L_notk")
    published = [False]
    def ml_load():
        assert published[0]
        g(f"s_and_b32 s76, s{sC}, 0xfc"); g("s_lshl_b32 s76, s76, 10")
        g(f"v_bfe_u32 v{vCNT}, v{vL}, 3, 2"); g(f"v_lshlrev_b32 v{vCNT}, 10, v{vCNT}")
        g(f"v_and_b32 v{vX}, 7, v{vL}"); g(f"v_lshl_add_u32 v{vCNT}, v{vX}, 3, v{vCNT}")
        g(f"v_add_u32 v{vCNT}, s76, v{vCNT}")
        tok = g.vm(f"buffer_load_dwordx2 {q2(vML)}, v{vCNT}, {WS}, 0 offen sc1")
        def fin():
            assert not queue
            if P['pf']:
                g(f"s_cmp_ge_u32 s{sW}, 4"); g("s_cbranch_scc1 L_nopf")
                g(f"""
                s_mov_b32 s36, s12
                s_mov_b32 s37, s13
                s_cmp_eq_u32 s{sW}, 1
                s_cselect_b32 s36, s16, s36
                s_cselect_b32 s37, s17, s37
                s_cmp_eq_u32 s{sW}, 2
                s_cselect_b32 s36, s18, s36
                s_cselect_b32 s37, s19, s37
                s_cmp_eq_u32 s{sW}, 3
                s_cselect_b32 s36, s20, s36
                s_cselect_b32 s37, s21, s37
                s_cmp_eq_u32 s{sW}, 0
                s_mov_b32 s76, 20736
                s_cselect_b32 s76, 18432, s76
                s_mul_i32 s77, s76, s2
                s_add_u32 s38, s77, s76
                s_mov_b32 s39, 0x20000
                v_lshlrev_b32 v{T[0]}, 4, v{vL}
                """)
                for n in range(21):
                    untracked(f"buffer_load_dwordx4 {q4(pool[n])}, v{T[0]}, {W1}, s77 offen offset:{(n&3)*1024} {P['polp']}")
                    if n & 3 == 3: g("s_add_u32 s77, s77, 4096")
                g.label("L_nopf")
            g(f"s_mov_b32 s{sCNT}, 0")
            g.label("L_ml_chk")
            g(f"v_max_u32 v{T[0]}, v{vML}, v{vML+1}")
            g(f"v_cmp_eq_u32 vcc, -1, v{T[0]}")
            g("s_cbranch_vccz L_ml_ok")
            g(f"s_sleep {P['mlsleep']}")
            untracked(f"buffer_load_dwordx2 {q2(vML)}, v{vCNT}, {WS}, 0 offen sc1")
            g("s_waitcnt vmcnt(0)")
            g(f"s_add_u32 s{sCNT}, s{sCNT}, 1")
            g(f"s_cmp_lt_u32 s{sCNT}, {P['LIMIT']}"); g("s_cbranch_scc1 L_ml_chk")
            g.label("L_ml_ok")
            g(f"v_mov_b32 v{T[0]}, v{vML}")
            allred("v_max_f32", [T[0]], [T[1]], rows=2)
            g(f"v_sub_f32 v{T[2]}, v{vML}, v{T[0]}")
            g(f"v_exp_f32 v{T[2]}, v{T[2]}")
            g(f"v_sub_f32 v{T[3]}, v{vMW}, v{T[0]}")
            g(f"v_mul_f32 v{T[2]}, v{T[2]}, v{vML+1}")
            g(f"v_exp_f32 v{T[3]}, v{T[3]}")
            allred("v_add_f32", [T[2]], [T[1]], rows=2)
            g(f"v_rcp_f32 v{T[2]}, v{T[2]}")
            g(f"v_mul_f32 v{vFAC}, v{T[2]}, v{T[3]}")
            stamp(4)
        aux.append((tok, fin))

    for n in range(L0, 64):
        queue.append(kv_item('K', n))
    for n in range(64):
        if n == P['TK']: queue.append((0, ticket))
        if n == P['XB'] and not P['exp'] & 4: queue.append((0, ml_load))
        queue.append(kv_item('V', n))

    for gk in range(16):
        rs = [items[('K', 4 * gk + u)] for u in range(4)]
        g.wait(rs[3][0])
        pstamp()
        t = T[0:4]
        for k in range(4):
            for u in range(4):
                g(f"v_dot2_f32_bf16 v{t[u]}, v{rs[u][1]+k}, v{vQ+k}, {'0' if k == 0 else 'v%d' % t[u]}")
        for u in range(4):
            pool.append(rs[u][1])
        pump(P['Dk'] if 4 * gk + 4 < L0 else P['D'])
        a, b2, c = T[4], T[5], T[6]
        g(f"v_add_f32_dpp v{a}, v{t[0]}, v{t[0]} row_ror:8 row_mask:0xf bank_mask:0x3")
        g(f"v_add_f32_dpp v{b2}, v{t[2]}, v{t[2]} row_ror:8 row_mask:0xf bank_mask:0x3")
        g(f"v_add_f32_dpp v{a}, v{t[1]}, v{t[1]} row_ror:8 row_mask:0xf bank_mask:0xc")
        g(f"v_add_f32_dpp v{b2}, v{t[3]}, v{t[3]} row_ror:8 row_mask:0xf bank_mask:0xc")
        g(f"v_add_f32_dpp v{c}, v{a}, v{a} row_half_mirror row_mask:0xf bank_mask:0x5")
        g(f"v_add_f32_dpp v{c}, v{b2}, v{b2} row_half_mirror row_mask:0xf bank_mask:0xa")
        g(f"v_add_f32_dpp v{c}, v{c}, v{c} quad_perm:[1,0,3,2] row_mask:0xf bank_mask:0xf")
        lam = gk & 3
        S = vS + (gk >> 2)
        if lam == 0:
            g(f"v_add_f32_dpp v{S}, v{c}, v{c} quad_perm:[2,3,0,1] row_mask:0xf bank_mask:0xf")
        else:
            g(f"v_add_f32_dpp v{c}, v{c}, v{c} quad_perm:[2,3,0,1] row_mask:0xf bank_mask:0xf")
            g(f"v_cndmask_b32 v{S}, v{S}, v{c}, {sMK[lam]}")
    stamp(3)
    for r in range(4): g(f"v_cvt_pk_bf16_f32 v{vS+r}, v{vS+r}, v{vS+r}")
    for r in range(4): g(f"v_and_b32 v{vS+r}, 0xffff0000, v{vS+r}")
    for r in range(4): g(f"v_mul_f32 v{vS+r}, 0x3db504f3, v{vS+r}")
    for r in range(4): g(f"v_cvt_pk_bf16_f32 v{vS+r}, v{vS+r}, v{vS+r}")
    for r in range(4): g(f"v_and_b32 v{vS+r}, 0xffff0000, v{vS+r}")
    g(f"v_max3_f32 v{vMW}, v{vS}, v{vS+1}, v{vS+2}")
    g(f"v_max_f32 v{vMW}, v{vMW}, v{vS+3}")
    allred("v_max_f32", [vMW], [T[0]])
    for r in range(4): g(f"v_sub_f32 v{vS+r}, v{vS+r}, v{vMW}")
    for r in range(4): g(f"v_mul_f32 v{vS+r}, 0x3fb8aa3b, v{vS+r}")
    for r in range(4): g(f"v_exp_f32 v{vS+r}, v{vS+r}")
    g(f"v_mul_f32 v{vMW}, 0x3fb8aa3b, v{vMW}")
    g(f"v_add_f32 v{vMW+1}, v{vS}, v{vS+1}")
    g(f"v_add_f32 v{T[1]}, v{vS+2}, v{vS+3}")
    g(f"v_add_f32 v{vMW+1}, v{vMW+1}, v{T[1]}")
    for r in range(4): g(f"v_cvt_pk_bf16_f32 v{vS+r}, v{vS+r}, v{vS+r}")
    allred("v_add_f32", [vMW + 1], [T[0]])
    g(f"s_lshl_b32 s76, s{sC}, 7"); g(f"s_add_u32 s76, s76, s{sW}"); g("s_lshl_b32 s76, s76, 3")
    g("s_mov_b64 exec, 1")
    if not P['exp'] & 4:
        g.vm(f"buffer_store_dwordx2 {q2(vMW)}, v{vZ}, {WS}, s76 offen sc1")
    else:
        g("s_mov_b64 exec, -1"); g(f"v_rcp_f32 v{vFAC}, v{vFAC}")
    g("s_mov_b64 exec, -1")
    published[0] = True

    beta = {0: 0, 1: 2, 2: 1, 3: 3}
    for n in range(64):
        if n % P['vg'] == 0: pump(P['Dv'])
        A = vA0 if n & 1 == 0 else vA1
        j = 4 * beta[n & 3] + ((n >> 2) & 3)
        for r in range(4):
            if P['exp'] & 2 and n > 1: continue
            g(f"v_and_b32_dpp v{A+r}, v{vS+(n>>4)}, v{vM+r} row_newbcast:{j} row_mask:0xf bank_mask:0xf")
        if n == 61:
            g(f"s_cmp_lg_u32 s{sW}, {P['TW']}"); g("s_cbranch_scc1 L_tk_done")
            g(f"s_mov_b32 s{sCNT}, 0")
            g.label("L_tk_chk")
            g(f"v_readfirstlane_b32 s76, v{vTK}")
            g("s_and_b32 s76, s76, 255"); g("s_cbranch_scc0 L_tk_ok")
            g("s_sleep 8")
            untracked(f"global_load_dword v{vTK}, v{vZ}, s[24:25] sc1")
            g("s_waitcnt vmcnt(0)")
            g(f"s_add_u32 s{sCNT}, s{sCNT}, 1")
            g(f"s_cmp_lt_u32 s{sCNT}, {P['LIMIT']}"); g("s_cbranch_scc1 L_tk_chk")
            g.label("L_tk_ok")
            g("s_mov_b64 exec, 1")
            g(f"ds_write_b32 v{vZ}, v{vTK+1} offset:{ROLE}")
            g("s_mov_b64 exec, -1")
            g.label("L_tk_done")
        if n == 62:
            g(f"""
            v_lshlrev_b32 v{T[8]}, 5, v{vJ}
            v_lshl_add_u32 v{T[8]}, v{vG}, 4, v{T[8]}
            s_lshl_b32 s76, s{sW}, 9
            v_add_u32 v{T[8]}, s76, v{T[8]}
            v_and_b32 v{T[9]}, 31, v{vL}
            v_lshrrev_b32 v{T[11]}, 5, v{vL}
            v_lshlrev_b32 v{T[10]}, 3, v{T[9]}
            v_lshl_add_u32 v{T[10]}, v{T[11]}, 2, v{T[10]}
            v_lshlrev_b32 v{T[9]}, 4, v{T[9]}
            v_lshl_add_u32 v{T[9]}, v{T[11]}, 11, v{T[9]}
            s_lshl_b32 s{sTo}, s{sC}, 10
            """)
        tok, r = items[('V', n)]
        g.wait(tok)
        if P['exp'] & 1 and n > 0:
            g(f"v_xor_b32 v{T[7]}, v{r}, v{A}")
        else:
            g(f"v_mfma_f32_16x16x32_bf16 {q4(vACC)}, {q4(A)}, {q4(r)}, {'0' if n == 0 else q4(vACC)}")
        pool.append(r)
        if n & 3 == 3: pstamp()
        if n < 63:
            run_aux()
    assert not queue and not aux
    stamp(5)
    vOBW, vOBR = T[8], T[9]
    g(f"v_pk_mul_f32 {q2(vACC)}, {q2(vACC)}, {q2(vFAC-1)} op_sel:[0,1] op_sel_hi:[1,1]")
    g(f"v_pk_mul_f32 {q2(vACC+2)}, {q2(vACC+2)}, {q2(vFAC-1)} op_sel:[0,1] op_sel_hi:[1,1]")
    g("s_mov_b32 exec_hi, 0")
    g(f"ds_write_b128 v{vOBW}, {q4(vACC)} offset:{OB}")
    g("s_mov_b32 exec_hi, -1")
    g(f"s_cmp_lg_u32 s{sW}, 0")
    g.lgk(0)
    g("s_barrier")
    g("s_cbranch_scc1 L_osum_done")
    def sum8(regs):
        g.lgk(2)
        g(f"v_pk_add_f32 {q2(regs[0])}, {q2(regs[0])}, {q2(regs[1])}")
        g(f"v_pk_add_f32 {q2(regs[0]+2)}, {q2(regs[0]+2)}, {q2(regs[1]+2)}")
        g.lgk(0)
        g(f"v_pk_add_f32 {q2(regs[2])}, {q2(regs[2])}, {q2(regs[3])}")
        g(f"v_pk_add_f32 {q2(regs[2]+2)}, {q2(regs[2]+2)}, {q2(regs[3]+2)}")
        g(f"v_pk_add_f32 {q2(regs[0])}, {q2(regs[0])}, {q2(regs[2])}")
        g(f"v_pk_add_f32 {q2(regs[0]+2)}, {q2(regs[0]+2)}, {q2(regs[2]+2)}")
        g(f"v_permlane32_swap_b32 v{regs[0]}, v{regs[0]+2}")
        g(f"v_permlane32_swap_b32 v{regs[0]+1}, v{regs[0]+3}")
        g(f"v_pk_add_f32 {q2(regs[0])}, {q2(regs[0])}, {q2(regs[0]+2)}")
    SR = [vA0, vA1, vQ, vS]
    for n in range(4):
        g(f"ds_read_b128 {q4(SR[n])}, v{vOBR} offset:{OB+512*n}")
    sum8(SR)
    g(f"v_cvt_pk_bf16_f32 v{vA0}, v{vA0}, v{vA0+1}")
    untracked(f"buffer_store_dword v{vA0}, v{T[10]}, {WS}, s{sTo} offen offset:128 sc1")
    g.label("L_osum_done")
    g(f"ds_read_b32 v{T[0]}, v{vZ} offset:{ROLE}")
    g.lgk(0)
    stamp(6); stamp_flush()
    g(f"v_readfirstlane_b32 s{sR}, v{T[0]}")
    g(f"s_and_b32 s{sR}, s{sR}, 255")
    if P['stamps']:
        g(f"s_add_u32 s76, s{sR}, 1"); g(f"v_writelane_b32 v{vST}, s76, 11")
    if P['order'] == 'BF':
        g(f"s_cmp_lt_u32 s{sR}, 36"); g("s_cbranch_scc1 L_stb")
        g(f"s_sub_u32 s{sR}, s{sR}, 36")
        g(f"s_cmp_lt_u32 s{sR}, 72"); g("s_cbranch_scc1 L_ffn")
        g(f"s_sub_u32 s{sR}, s{sR}, 72")
    else:
        g(f"s_cmp_lt_u32 s{sR}, 72"); g("s_cbranch_scc1 L_ffn")
        g(f"s_sub_u32 s{sR}, s{sR}, 72")
        g(f"s_cmp_lt_u32 s{sR}, 36"); g("s_cbranch_scc1 L_stb")
        g(f"s_sub_u32 s{sR}, s{sR}, 36")
    g(f"s_cmp_lt_u32 s{sR}, 72"); g("s_cbranch_scc0 L_fin")
    g(f"s_cmp_lg_u32 s{sW}, 0"); g("s_cbranch_scc1 L_fin")
    save_nst = nst[0]
    def role_begin(label):
        g.label(label)
        g.hist = []
        pool[:] = POOL
        g.vm_issued = 0; g.vm_done = 0
        nst[0] = save_nst
        aux.clear()

    def dense(store, key, vaddr, srd, sbase, base, rstride, pol):
        while g.outstanding() + 8 > 60 or len(pool) < 8:
            tok, fn = aux.pop(0); g.wait(tok); fn()
        rs = [pool.pop(0) for _ in range(4)]
        raw = []
        per = max(1, 4096 // rstride) if rstride * 3 < 4096 else 1
        per = 4 if per >= 3 else 1
        for e in range(8):
            if e % per == 0:
                g(f"s_add_u32 s{sTo}, s{sbase}, {base + e*rstride}")
            r = rs[e // 2] + 2 * (e & 1)
            raw.append(r)
            tok = g.vm(f"buffer_load_dwordx2 {q2(r)}, v{vaddr}, {srd}, s{sTo} offen offset:{(e%per)*rstride} {pol}")
        def fin():
            outs = [pool.pop(0) for _ in range(4)]
            for k in range(4):
                for d in range(2):
                    g(f"v_perm_b32 v{outs[2*d]+k}, v{raw[2*k+1]+d}, v{raw[2*k]+d}, s{sPL}")
                    g(f"v_perm_b32 v{outs[2*d+1]+k}, v{raw[2*k+1]+d}, v{raw[2*k]+d}, s{sPH}")
            pool.extend(rs)
            store[key] = outs
        aux.append((tok, fin))

    crole[0] = 3
    g(f"""
    s_mov_b32 s56, s4
    s_mov_b32 s57, s5
    s_mov_b32 s58, 2304
    s_mov_b32 s59, 0x20000
    s_mov_b32 s60, s22
    s_mov_b32 s61, s23
    s_mov_b32 s62, 2304
    s_mov_b32 s63, 0x20000
    s_lshr_b32 s76, s{sR}, 3
    s_lshl_b32 s76, s76, 6
    s_bfe_u32 s77, s{sR}, 0x20001
    s_add_u32 s76, s76, s77
    s_and_b32 s77, s{sR}, 1
    s_lshl_b32 s77, s77, 5
    s_add_u32 s76, s76, s77
    v_and_b32 v{T[0]}, 3, v{vL}
    v_lshrrev_b32 v{T[1]}, 1, v{vG}
    v_lshl_add_u32 v{T[1]}, v{T[0]}, 1, v{T[1]}
    v_lshl_add_u32 v{T[1]}, v{T[1]}, 2, s76
    v_and_b32 v{T[2]}, 1, v{vG}
    v_mul_u32_u24 v{T[2]}, 1152, v{T[2]}
    v_lshl_add_u32 v{T[3]}, v{T[1]}, 1, v{T[2]}
    v_lshrrev_b32 v{T[4]}, 3, v{T[1]}
    v_lshl_add_u32 v{T[4]}, v{T[4]}, 4, v{T[2]}
    v_and_b32 v{T[5]}, 3, v{T[1]}
    v_lshl_add_u32 v{T[4]}, v{T[5]}, 2, v{T[4]}
    v_bfe_u32 v{T[5]}, v{T[1]}, 2, 1
    v_mad_u32_u24 v{T[4]}, v{T[5]}, s58, v{T[4]}
    v_lshrrev_b32 v{T[5]}, 2, v{vJ}
    v_mul_u32_u24 v{T[5]}, 4608, v{T[5]}
    v_add_u32 v{T[4]}, v{T[4]}, v{T[5]}
    s_and_b32 s70, s{sR}, {R_-1}
    s_mul_i32 s70, s70, 18432
    s_add_u32 s70, s70, {YP}
    v_lshrrev_b32 v{T[5]}, 2, v{vL}
    v_mul_u32_u24 v{T[5]}, 4608, v{T[5]}
    v_lshl_add_u32 v{T[5]}, v{T[0]}, 4, v{T[5]}
    s_lshl_b32 s71, s{sR}, 6
    s_add_u32 s71, s71, {DB}
    s_mov_b32 s{sCNT}, 0
    """)
    g(f"buffer_load_ushort v{T[9]}, v{T[3]}, {XS}, 0 offen")
    g.label("L_r1")
    g(f"buffer_load_dword v{T[10]}, v{T[4]}, {WS}, s70 offen sc1")
    g("s_waitcnt vmcnt(0)")
    g(f"v_cmp_u_f32 vcc, v{T[10]}, v{T[10]}")
    g(f"s_add_u32 s{sCNT}, s{sCNT}, 1")
    g("s_cbranch_vccz L_r1_ok")
    g("s_sleep 4")
    g(f"s_cmp_lt_u32 s{sCNT}, {P['LIMIT']}"); g("s_cbranch_scc1 L_r1")
    g.label("L_r1_ok")
    stamp(8)
    YR = POOL[0:5]
    sMs = [f"s[{a}:{a+1}]" for a in (80, 82, 84, 48, 50)]
    for n in range(5):
        g(f"s_mov_b64 {sMs[n]}, -1")
        if n == 4: g("s_mov_b32 s51, 0")
        g(f"s_add_u32 s{28+n}, s71, {n*16*4608}")
    for r in range(4): g(f"v_mov_b32 v{YR[4]+r}, 0")
    g(f"v_add_f32_dpp v{T[10]}, v{T[10]}, v{T[10]} row_ror:4 row_mask:0xf bank_mask:0xf")
    g(f"v_add_f32_dpp v{T[10]}, v{T[10]}, v{T[10]} row_ror:8 row_mask:0xf bank_mask:0xf")
    bf16r(T[10], T[10])
    g(f"v_lshlrev_b32 v{T[9]}, 16, v{T[9]}")
    g(f"v_add_f32 v{T[10]}, v{T[10]}, v{T[9]}")
    bf16r(T[10], T[10])
    g(f"s_mov_b32 s{sCNT}, 0")
    g.label("L_r2")
    for n in range(5):
        g(f"s_mov_b64 exec, {sMs[n]}")
        g(f"s_cbranch_execz L_r2s{n}")
        g(f"buffer_load_dwordx4 {q4(YR[n])}, v{T[5]}, {WS}, s{28+n} offen sc1")
        g.label(f"L_r2s{n}")
    g("s_mov_b64 exec, -1")
    g("s_waitcnt vmcnt(0)")
    y, y2 = vA0, vA1
    g(f"v_pk_add_f32 {q2(y)}, {q2(YR[0])}, {q2(YR[1])}")
    g(f"v_pk_add_f32 {q2(y+2)}, {q2(YR[0]+2)}, {q2(YR[1]+2)}")
    g(f"v_pk_add_f32 {q2(y2)}, {q2(YR[2])}, {q2(YR[3])}")
    g(f"v_pk_add_f32 {q2(y2+2)}, {q2(YR[2]+2)}, {q2(YR[3]+2)}")
    g(f"v_pk_add_f32 {q2(y)}, {q2(y)}, {q2(YR[4])}")
    g(f"v_pk_add_f32 {q2(y+2)}, {q2(y+2)}, {q2(YR[4]+2)}")
    g(f"v_pk_add_f32 {q2(y)}, {q2(y)}, {q2(y2)}")
    g(f"v_pk_add_f32 {q2(y+2)}, {q2(y+2)}, {q2(y2+2)}")
    g(f"v_permlane16_swap_b32 v{y}, v{y+1}")
    g(f"v_permlane16_swap_b32 v{y+2}, v{y+3}")
    g(f"v_add_f32 v{y}, v{y}, v{y+1}")
    g(f"v_add_f32 v{y+2}, v{y+2}, v{y+3}")
    g(f"v_permlane32_swap_b32 v{y}, v{y+2}")
    g(f"v_add_f32 v{y}, v{y}, v{y+2}")
    g(f"v_add_f32_dpp v{y}, v{y}, v{y} row_ror:4 row_mask:0xf bank_mask:0xf")
    g(f"v_add_f32_dpp v{y}, v{y}, v{y} row_ror:8 row_mask:0xf bank_mask:0xf")
    g(f"s_add_u32 s{sCNT}, s{sCNT}, 1")
    g(f"v_cmp_u_f32 vcc, v{y}, v{y}")
    g("s_cbranch_vccz L_r2_ok")
    for n in range(5):
        g(f"v_cmp_u_f32 {sMs[n]}, v{YR[n]}, v{YR[n]+1}")
        g(f"v_cmp_u_f32 vcc, v{YR[n]+2}, v{YR[n]+3}")
        g(f"s_or_b64 {sMs[n]}, {sMs[n]}, vcc")
    if P['rsleep']: g(f"s_sleep {P['rsleep']}")
    g(f"s_cmp_lt_u32 s{sCNT}, {P['LIMIT']}"); g("s_cbranch_scc1 L_r2")
    g.label("L_r2_ok")
    stamp(9)
    bf16r(y, y)
    g(f"v_add_f32 v{y}, v{y}, v{T[10]}")
    g(f"v_cvt_pk_bf16_f32 v{y}, v{y}, v{y}")
    g("s_mov_b32 exec_lo, 0x000f000f"); g("s_mov_b32 exec_hi, 0x000f000f")
    g(f"buffer_store_short v{y}, v{T[3]}, {OUT}, 0 offen")
    g("s_mov_b64 exec, -1")
    if P['stamps'] or P['probe'] == 10:
        g("s_waitcnt vmcnt(0)")
        stamp(10)
        stamp_flush()
    if P['padto']:
        g.label("L_pad")
        g("s_memrealtime s[96:97]"); g("s_waitcnt lgkmcnt(0)"); g("s_sub_u32 s96, s96, s98")
        g(f"s_cmp_lt_u32 s96, {P['padto']}"); g("s_cbranch_scc1 L_pad")
    g("s_branch L_fin" if P['stamps'] or P['probe'] >= 0 else "s_endpgm")

    role_begin("L_stb")
    crole[0] = 1
    g(f"""
    s_mul_i32 s76, s{sR}, 57
    s_lshr_b32 s76, s76, 9
    s_mul_i32 s77, s76, 9
    s_sub_u32 s77, s{sR}, s77
    s_mov_b32 s36, s12
    s_mov_b32 s37, s13
    s_mov_b32 s38, {4096*1152}
    s_mov_b32 s39, 0x20000
    s_lshl_b32 s70, s76, 3
    s_add_u32 s70, s70, s{sW}
    s_mul_i32 s71, s70, {128*1152}
    s_lshl_b32 s77, s77, 7
    s_add_u32 s71, s71, s77
    v_mul_u32_u24 v{vX}, 9216, v{vG}
    v_lshl_add_u32 v{vX}, v{vJ}, 3, v{vX}
    """)
    WOP = {}
    for t in range(4):
        dense(WOP, t, vX, W1, 71, t * 32 * 1152, 1152, P['pol'])
    g(f"""
    s_lshl_b32 s70, s70, 12
    v_bfe_u32 v{T[0]}, v{vJ}, 2, 1
    v_lshlrev_b32 v{T[0]}, 17, v{T[0]}
    v_and_b32 v{T[1]}, 3, v{vJ}
    v_lshl_add_u32 v{T[0]}, v{T[1]}, 10, v{T[0]}
    v_lshl_add_u32 v{T[0]}, v{vG}, 4, v{T[0]}
    s_mul_i32 s76, s76, 4608
    s_add_u32 s76, s76, s77
    s_mul_i32 s77, s{sW}, {18432 * (R_ // P['NRW'])}
    s_add_u32 s76, s76, s77
    s_add_u32 s72, s76, {YP}
    v_lshlrev_b32 v{T[1]}, 4, v{vL}
    s_lshl_b32 s77, s{sW}, 9
    v_add_u32 v{T[1]}, s77, v{T[1]}
    v_and_b32 v{T[2]}, 1, v{vG}
    v_mul_u32_u24 v{T[2]}, 1152, v{T[2]}
    v_and_b32 v{T[3]}, 1, v{vJ}
    v_mul_u32_u24 v{T[3]}, 2304, v{T[3]}
    v_add_u32 v{T[2]}, v{T[2]}, v{T[3]}
    v_lshrrev_b32 v{T[3]}, 1, v{vJ}
    v_lshl_add_u32 v{T[2]}, v{T[3]}, 4, v{T[2]}
    v_lshrrev_b32 v{T[3]}, 1, v{vG}
    v_lshl_add_u32 v{T[2]}, v{T[3]}, 3, v{T[2]}
    s_mov_b32 s{sCNT}, 0
    """)
    run_aux(True)
    stamp(7)
    AO = [pool.pop(0) for _ in range(4)]
    DD = [pool.pop(0) for _ in range(4)]
    g.label("L_bp")
    for t in range(4):
        g(f"buffer_load_dwordx4 {q4(AO[t])}, v{T[0]}, {WS}, s70 offen offset:{128+64*t} sc1")
    g("s_mov_b64 exec, -1")
    for t in range(4):
        g(f"s_waitcnt vmcnt({3-t})")
        if t == 0:
            g(f"v_max3_u32 v{T[4]}, v{AO[t]}, v{AO[t]+1}, v{AO[t]+2}")
            g(f"v_max_u32 v{T[4]}, v{T[4]}, v{AO[t]+3}")
        else:
            g(f"v_max3_u32 v{T[4]}, v{T[4]}, v{AO[t]}, v{AO[t]+1}")
            g(f"v_max3_u32 v{T[4]}, v{T[4]}, v{AO[t]+2}, v{AO[t]+3}")
    g(f"v_cmp_eq_u32 vcc, -1, v{T[4]}")
    g(f"s_add_u32 s{sCNT}, s{sCNT}, 1")
    g("s_cbranch_vccz L_bp_ok")
    if P['bsleep']: g(f"s_sleep {P['bsleep']}")
    g("s_mov_b64 exec, vcc")
    g(f"s_cmp_lt_u32 s{sCNT}, {P['LIMIT']}"); g("s_cbranch_scc1 L_bp")
    g("s_mov_b64 exec, -1")
    g.label("L_bp_ok")
    stamp(8)
    for t in range(4):
        for c in range(4):
            g(f"v_mfma_f32_16x16x32_bf16 {q4(DD[c])}, {q4(AO[t])}, {q4(WOP[t][c])}, {'0' if t == 0 else q4(DD[c])}")
    for c in range(4): g(f"v_pk_add_f32 {q2(DD[c])}, {q2(DD[c])}, {q2(DD[c]+2)}")
    for c in range(4): g(f"v_add_f32 v{vACC+c}, v{DD[c]}, v{DD[c]+1}")
    g("s_mov_b32 exec_hi, 0")
    g(f"ds_write_b128 v{T[1]}, {q4(vACC)} offset:{GUL}")
    g("s_mov_b32 exec_hi, -1")
    g(f"s_cmp_ge_u32 s{sW}, {P['NRW']}")
    g.lgk(0)
    stamp_flush()
    g("s_barrier")
    g("s_cbranch_scc1 L_fin")
    for n in range(4):
        g(f"ds_read_b128 {q4(SR[n])}, v{vOBR} offset:{GUL+512*n}")
    sum8(SR)
    for k in range(R_ // P['NRW']):
        g(f"buffer_store_dwordx2 {q2(vA0)}, v{T[2]}, {WS}, s72 offen sc1")
        if k < R_ // P['NRW'] - 1:
            g("s_add_u32 s72, s72, 18432")
    stamp(10); stamp_flush()
    g("s_branch L_fin")

    role_begin("L_ffn")
    crole[0] = 2
    g(f"""
    s_mov_b32 s36, s16
    s_mov_b32 s37, s17
    s_mov_b32 s38, {576*9216}
    s_mov_b32 s39, 0x20000
    s_mov_b32 s40, s18
    s_mov_b32 s41, s19
    s_mov_b32 s42, {576*9216}
    s_mov_b32 s43, 0x20000
    s_mov_b32 s44, s20
    s_mov_b32 s45, s21
    s_mov_b32 s46, {4608*1152}
    s_mov_b32 s47, 0x20000
    s_lshl_b32 s76, s{sR}, 7
    s_mul_i32 s70, s{sW}, {64*9216}
    s_add_u32 s70, s70, s76
    s_mul_i32 s71, s{sW}, {32*9216}
    s_add_u32 s71, s71, s76
    s_add_u32 s71, s71, {512*9216}
    s_mul_i32 s72, s{sR}, {64*1152}
    s_lshl_b32 s76, s{sW}, 7
    s_add_u32 s88, s72, 1024
    s_add_u32 s72, s72, s76
    v_mul_u32_u24 v{vX}, {8*9216}, v{vG}
    v_lshl_add_u32 v{vX}, v{vJ}, 3, v{vX}
    v_mul_u32_u24 v{vW}, 9216, v{vG}
    v_lshl_add_u32 v{vW}, v{vJ}, 3, v{vW}
    """)
    EX = {}
    g(f"s_cmp_gt_u32 s{sW}, 2"); g("s_cbranch_scc1 L_ex_done")
    g(f"s_cmp_eq_u32 s{sW}, 2"); g("s_cbranch_scc1 L_ex_d")
    dense(EX, 0, vX, W1, 71, 0, 9216, P['pol'])
    dense(EX, 1, vX, W2, 71, 0, 9216, P['pol'])
    g("s_branch L_ex_done")
    g.label("L_ex_d")
    pool[:] = POOL; g.vm_issued = 0; aux.clear()
    dense(EX, 0, vW, W3, 88, 0, 1152, P['pol'])
    dense(EX, 1, vW, W3, 88, 32 * 1152, 1152, P['pol'])
    g.label("L_ex_done")
    GU = {}
    for s in range(2):
        dense(GU, (0, s), vX, W1, 70, s * 32 * 9216, 9216, P['pol'])
        dense(GU, (1, s), vX, W2, 70, s * 32 * 9216, 9216, P['pol'])
    dense(GU, ('d', 0), vW, W3, 72, 0, 1152, P['pol'])
    vH, vE, vSTa, vRd, vRs, vSQ, vAW, vAR, vDS, vXa = T[0:10]
    g(f"""
    s_mov_b32 s56, s4
    s_mov_b32 s57, s5
    s_mov_b32 s58, 2304
    s_mov_b32 s59, 0x20000
    v_bfe_u32 v{T[10]}, v{vJ}, 1, 2
    v_lshl_add_u32 v{T[11]}, v{T[10]}, 2, v{vG}
    s_lshl_b32 s76, s{sW}, 3
    v_add_u32 v{T[12]}, s76, v{T[11]}
    s_lshl_b32 s76, s{sW}, 2
    s_add_u32 s76, s76, 64
    v_add_u32 v{T[13]}, s76, v{vG}
    v_cmp_eq_u32 vcc, 2, v{T[10]}
    v_cndmask_b32 v{T[12]}, v{T[12]}, v{T[13]}, vcc
    v_lshlrev_b32 v{T[12]}, 4, v{T[12]}
    v_and_b32 v{T[13]}, 1, v{vJ}
    v_mul_u32_u24 v{T[13]}, 1152, v{T[13]}
    v_add_u32 v{vXa}, v{T[12]}, v{T[13]}
    v_lshrrev_b32 v{T[13]}, 3, v{vJ}
    v_mul_u32_u24 v{T[13]}, 4608, v{T[13]}
    v_add_u32 v{vH}, v{vXa}, v{T[13]}
    s_cmp_lt_u32 s{sW}, 2
    s_cselect_b32 s76, 3, 2
    v_bfrev_b32 v{T[13]}, 1
    v_cmp_gt_u32 vcc, s76, v{T[10]}
    v_cndmask_b32 v{vH}, v{T[13]}, v{vH}, vcc
    v_cndmask_b32 v{vXa}, v{T[13]}, v{vXa}, vcc
    s_and_b32 s89, s{sR}, {R_-1}
    s_mul_i32 s89, s89, 18432
    s_add_u32 s89, s89, {YP}
    s_add_u32 s90, s89, 9216
    s_lshr_b32 s76, s{sW}, 2
    s_lshl_b32 s77, s76, 12
    s_lshl_b32 s76, s76, 10
    s_and_b32 s{sCNT}, s{sW}, 3
    s_lshl_b32 s{sCNT}, s{sCNT}, 2
    s_add_u32 s77, s77, s{sCNT}
    s_add_u32 s76, s76, s{sCNT}
    v_lshlrev_b32 v{vRd}, 4, v{vL}
    v_add_u32 v{vE}, s77, v{vRd}
    v_add_u32 v{vSTa}, s76, v{vRd}
    s_lshl_b32 s76, s{sW}, 10
    v_add_u32 v{vRd}, s76, v{vRd}
    s_mul_i32 s76, s{sW}, 528
    v_mov_b32 v{vSQ}, s76
    s_lshl_b32 s76, s{sW}, 4
    v_mov_b32 v{vRs}, s76
    v_lshlrev_b32 v{vAW}, 3, v{vJ}
    v_lshl_add_u32 v{vAW}, v{vG}, 1, v{vAW}
    s_lshl_b32 s76, s{sW}, 7
    v_add_u32 v{vAW}, s76, v{vAW}
    v_and_b32 v{vAR}, 1, v{vJ}
    v_lshlrev_b32 v{vAR}, 7, v{vAR}
    v_lshl_add_u32 v{vAR}, v{vG}, 4, v{vAR}
    v_lshlrev_b32 v{vDS}, 3, v{vL}
    s_mul_i32 s28, s{sR}, 4608
    s_add_u32 s28, s28, {DB}
    s_add_u32 s29, s28, 4096
    s_lshl_b32 s76, s{sW}, 9
    s_add_u32 s28, s28, s76
    """)
    XH = vQ
    g.vm(f"buffer_load_dwordx4 {q4(XH)}, v{vXa}, {XS}, 0 offen")
    AS = [vA0, vA1, vACC]
    for s in range(3):
        for r in range(4):
            g(f"v_mov_b32 v{AS[s]+r}, s{sONE}")
    dense(GU, ('d', 1), vW, W3, 72, 32 * 1152, 1152, P['pol'])
    run_aux(True)
    E = [[pool.pop(0) for _ in range(4)] for _ in range(2)]
    STq = pool.pop(0)
    XF = [pool.pop(0), pool.pop(0)]
    for r in range(4):
        g(f"v_lshlrev_b32 v{XF[r>>1]+2*(r&1)}, 16, v{XH+r}")
        g(f"v_and_b32 v{XF[r>>1]+2*(r&1)+1}, 0xffff0000, v{XH+r}")
    def gu_mfma(tag, stats, pre=None):
        def step(s, W):
            for m in range(2):
                for c in range(4):
                    g(f"v_mfma_f32_16x16x32_bf16 {q4(E[m][c])}, {q4(AS[s])}, {q4(W[m][c])}, {'0' if s == 0 else q4(E[m][c])}")
                    if pre and m == 0 and c == 0 and s < 2: pre(s + 1)
            if stats:
                g(f"v_mfma_f32_16x16x32_bf16 {q4(STq)}, {q4(AS[s])}, {q4(AS[s])}, {'0' if s == 0 else q4(STq)}")
        if pre: pre(0)
        step(0, [GU[(0, 0)], GU[(1, 0)]])
        step(1, [GU[(0, 1)], GU[(1, 1)]])
        g(f"s_cmp_ge_u32 s{sW}, 2"); g.emit(f"s_cbranch_scc1 L_gu2{tag}")
        step(2, [EX[0], EX[1]])
        g.flush()
        g.label(f"L_gu2{tag}")
        g("s_mov_b64 exec, 0xffff")
        for m in range(2):
            for c in range(4):
                g(f"ds_write2st64_b32 v{vE}, v{E[m][c]}, v{E[m][c]+1} offset0:{(GUL>>8) + 8*m + c} offset1:{(GUL>>8) + 8*m + 4 + c}")
        if stats:
            g("s_mov_b32 exec_lo, -1")
            g(f"ds_write2st64_b32 v{vSTa}, v{STq}, v{STq+1} offset0:{STB>>8} offset1:{(STB>>8)+2}")
        g("s_mov_b64 exec, -1")
        g(f"s_cmp_ge_u32 s{sW}, 2")
        g.lgk(0)
        g("s_barrier")
    G4, G5, U4, U5, SQ, SQ2, SM, SM2 = E[0] + E[1]
    CG, CU = T[10], T[11]
    def sum8b(r, r2, d):
        g(f"v_pk_add_f32 {q2(r)}, {q2(r)}, {q2(r2)}")
        g(f"v_pk_add_f32 {q2(r+2)}, {q2(r+2)}, {q2(r2+2)}")
        g(f"v_pk_add_f32 {q2(r)}, {q2(r)}, {q2(r+2)}")
        g(f"v_add_f32 v{d}, v{r}, v{r+1}")
    def rd_gu():
        g(f"ds_read_b128 {q4(G4)}, v{vRd} offset:{GUL}")
        g(f"ds_read_b128 {q4(G5)}, v{vRd} offset:{GUL+4096}")
        g(f"ds_read_b128 {q4(U4)}, v{vRd} offset:{GUL+2048}")
        g(f"ds_read_b128 {q4(U5)}, v{vRd} offset:{GUL+6144}")
    gu_mfma('c', False)
    g("s_cbranch_scc1 L_cs_done")
    rd_gu()
    g.lgk(0)
    sum8b(G4, G5, CG); sum8b(U4, U5, CU)
    g.flush()
    g.label("L_cs_done")
    g("s_barrier")
    stamp(7)
    HL = [pool.pop(0) for _ in range(4)]
    H0, H1 = pool.pop(0), pool.pop(0)
    H = vS
    g(f"s_mov_b32 s{sCNT}, 0")
    g.label("L_hp")
    g(f"buffer_load_dwordx4 {q4(HL[0])}, v{vH}, {WS}, s89 offen sc1")
    g(f"buffer_load_dwordx4 {q4(HL[1])}, v{vH}, {WS}, s90 offen sc1")
    g(f"buffer_load_dwordx4 {q4(HL[2])}, v{vH}, {WS}, s89 offen offset:2304 sc1")
    g(f"buffer_load_dwordx4 {q4(HL[3])}, v{vH}, {WS}, s90 offen offset:2304 sc1")
    g("s_mov_b64 exec, -1")
    g("s_waitcnt vmcnt(2)")
    g(f"v_pk_add_f32 {q2(H0)}, {q2(HL[0])}, {q2(HL[1])}")
    g(f"v_pk_add_f32 {q2(H0+2)}, {q2(HL[0]+2)}, {q2(HL[1]+2)}")
    g("s_waitcnt vmcnt(0)")
    g(f"v_pk_add_f32 {q2(H1)}, {q2(HL[2])}, {q2(HL[3])}")
    g(f"v_pk_add_f32 {q2(H1+2)}, {q2(HL[2]+2)}, {q2(HL[3]+2)}")
    g(f"v_pk_add_f32 {q2(T[12])}, {q2(H0)}, {q2(H0+2)}")
    g(f"v_pk_add_f32 {q2(T[14])}, {q2(H1)}, {q2(H1+2)}")
    for r in range(4): g(f"v_add_f32_dpp v{H0+r}, v{H0+r}, v{H0+r} row_ror:8 row_mask:0xf bank_mask:0xf")
    g(f"v_pk_add_f32 {q2(T[12])}, {q2(T[12])}, {q2(T[14])}")
    for r in range(4): g(f"v_add_f32_dpp v{H1+r}, v{H1+r}, v{H1+r} row_ror:8 row_mask:0xf bank_mask:0xf")
    g(f"v_cmp_u_f32 vcc, v{T[12]}, v{T[13]}")
    g(f"s_add_u32 s{sCNT}, s{sCNT}, 1")
    g("s_cbranch_vccz L_hp_ok")
    if P['hsleep']: g(f"s_sleep {P['hsleep']}")
    g("s_mov_b64 exec, vcc")
    g(f"s_cmp_lt_u32 s{sCNT}, {P['LIMIT']}"); g("s_cbranch_scc1 L_hp")
    g("s_mov_b64 exec, -1")
    g.label("L_hp_ok")
    stamp(8)
    HH = [H0, H1]
    for r in range(4): g(f"v_cvt_pk_bf16_f32 v{H+r}, v{HH[r>>1]+2*(r&1)}, v{HH[r>>1]+2*(r&1)+1}")
    for r in range(4):
        g(f"v_lshlrev_b32 v{HH[r>>1]+2*(r&1)}, 16, v{H+r}")
        g(f"v_and_b32 v{HH[r>>1]+2*(r&1)+1}, 0xffff0000, v{H+r}")
    for r in range(4): g(f"v_pk_add_f32 {q2(HH[r>>1]+2*(r&1))}, {q2(HH[r>>1]+2*(r&1))}, {q2(XF[r>>1]+2*(r&1))}")
    for r in range(4): g(f"v_cvt_pk_bf16_f32 v{H+r}, v{HH[r>>1]+2*(r&1)}, v{HH[r>>1]+2*(r&1)+1}")
    def amov(s):
        for r in range(4):
            ctl = "quad_perm:[0,1,2,3]" if s == 0 else f"row_shl:{2*s}"
            g(f"v_mov_b32_dpp v{AS[s]+r}, v{H+r} {ctl} row_mask:0xf bank_mask:0x1")
    gu_mfma('m', True, amov)
    g("s_cbranch_scc1 L_act_done")
    g(f"ds_read_b128 {q4(SQ)}, v{vSQ} offset:{STB}")
    g(f"ds_read_b128 {q4(SQ2)}, v{vSQ} offset:{STB+1024}")
    g(f"ds_read_b128 {q4(SM)}, v{vRs} offset:{STB+256}")
    g(f"ds_read_b128 {q4(SM2)}, v{vRs} offset:{STB+1024+256}")
    rd_gu()
    g.lgk(4)
    sum8b(SQ, SQ2, SQ); sum8b(SM, SM2, SM)
    ln_scalars(SM, SQ, SQ + 1)
    g.lgk(0)
    sum8b(G4, G5, G4); sum8b(U4, U5, U4)
    g(f"v_fma_f32 v{G4}, -v{SM}, v{CG}, v{G4}")
    g(f"v_fma_f32 v{U4}, -v{SM}, v{CU}, v{U4}")
    g(f"v_mul_f32 v{G4}, v{G4}, v{SQ}")
    g(f"v_mul_f32 v{U4}, v{U4}, v{SQ}")
    bf16r(G4, G4); bf16r(U4, U4)
    k1 = -2 * math.sqrt(2 / math.pi) * math.log2(math.e)
    k3 = k1 * 0.044715
    t = G5
    g(f"v_mul_f32 v{t}, v{G4}, v{G4}")
    g(f"v_mov_b32 v{t+1}, {f2h(k1)}")
    g(f"v_fmac_f32 v{t+1}, {f2h(k3)}, v{t}")
    g(f"v_mul_f32 v{t}, v{t+1}, v{G4}")
    g(f"v_exp_f32 v{t}, v{t}")
    g(f"v_add_f32 v{t}, 1.0, v{t}")
    g(f"v_rcp_f32 v{t}, v{t}")
    g(f"v_mul_f32 v{t}, v{t}, v{G4}")
    bf16r(t, t)
    g(f"v_mul_f32 v{t}, v{t}, v{U4}")
    g(f"v_cvt_pk_bf16_f32 v{t}, v{t}, v{t}")
    g(f"ds_write_b16 v{vAW}, v{t} offset:{ACT}")
    g.lgk(0)
    g.label("L_act_done")
    g("s_barrier")
    stamp(9)
    g(f"ds_read_b128 {q4(vA0)}, v{vAR} offset:{ACT}")
    g(f"ds_read_b128 {q4(vA1)}, v{vAR} offset:{ACT+64}")
    def down(F, W0_, W1_, so, first):
        for s, Wd in enumerate((W0_, W1_)):
            if first: g.lgk(1 - s)
            for c in range(4):
                g(f"v_mfma_f32_16x16x32_bf16 {q4(F[c])}, {q4(AS[s])}, {q4(Wd[c])}, {'0' if s == 0 else q4(F[c])}")
    def down_fin(F, so):
        for c in range(1, 4):
            for r in range(2):
                g(f"v_mov_b32_dpp v{F[0]+r}, v{F[c]+r} quad_perm:[0,1,2,3] row_mask:{1<<c:#x} bank_mask:0xf")
        g(f"buffer_store_dwordx2 {q2(F[0])}, v{vDS}, {WS}, s{so} offen sc1")
    g(f"s_cmp_eq_u32 s{sW}, 2"); g("s_cbranch_scc1 L_dn2")
    down(E[0], GU[('d', 0)], GU[('d', 1)], 28, True)
    down_fin(E[0], 28)
    sv = nst[0]
    stamp(10); stamp_flush()
    g("s_branch L_fin")
    g.label("L_dn2")
    nst[0] = sv
    down(E[0], GU[('d', 0)], GU[('d', 1)], 28, True)
    down(E[1], EX[0], EX[1], 29, False)
    down_fin(E[0], 28)
    down_fin(E[1], 29)
    stamp(10); stamp_flush()
    g.label("L_fin")
    stamp_end()
    if P['probe'] >= 0:
        if P['gref']:
            g(f"v_mov_b32 v{T[3]}, 0")
            g(f"global_load_dword v{T[2]}, v{T[3]}, s[24:25] offset:128 sc1")
            g("s_waitcnt vmcnt(0)")
            g(f"v_readfirstlane_b32 s98, v{T[2]}")
            g("s_not_b32 s98, s98")
        g("s_sub_u32 s96, s96, s98")
        if P['probe'] == 99: g("s_mov_b32 s96, 0")
        g("s_min_u32 s96, s96, 10000")
        g(f"s_lshl_b32 s96, s96, {P['pmul']}"); g("s_add_u32 s96, s96, 8000")
        g.label("L_pad2")
        g("s_sleep 16")
        g("s_memrealtime s[94:95]"); g("s_waitcnt lgkmcnt(0)"); g("s_sub_u32 s94, s94, s98")
        g("s_cmp_lt_u32 s94, s96"); g("s_cbranch_scc1 L_pad2")
    g("s_endpgm")
    g.label("L_end")
    g("s_endpgm")

    tail = ['.section .rodata,"a"', ".p2align 6", f".amdhsa_kernel {KN}",
            "  .amdhsa_next_free_vgpr 256", "  .amdhsa_next_free_sgpr 102", "  .amdhsa_accum_offset 256",
            "  .amdhsa_group_segment_fixed_size 0", "  .amdhsa_kernarg_size 96", "  .amdhsa_user_sgpr_count 2",
            "  .amdhsa_user_sgpr_kernarg_segment_ptr 1", "  .amdhsa_system_sgpr_workgroup_id_x 1", ".end_amdhsa_kernel"]
    if P['stamps']:
        hdr.insert(1, "; PROG " + ",".join(str(v) for v in prog))
        hdr.insert(1, "; ORDER " + P['order'])
    return "\n".join(hdr) + "\n" + g.text() + "\n".join(tail) + "\n"


if __name__ == "__main__":
    out = sys.argv[1]
    kw = {}
    for a in sys.argv[2:]:
        k, v = a.split('=')
        try:
            v = int(v)
        except ValueError:
            try:
                v = float(v)
            except ValueError:
                pass
        kw[k] = v
    open(out, 'w').write(gen(**kw))
```

```python
import sys, os, struct, math
sys.path.insert(0, os.path.dirname(os.path.abspath(__file__)))
from asmlib import Gen

KN = "sequential_preLN__mha_block_cached__glu_gated_geglu__decode_kernel"

PG0 = 0
YP = 256 << 10
DB = YP + 8 * 18432
QP = 768 << 10
EP = 1280 << 10
WSN = 2 << 20
OOR = 0x80000000
QS = 0
ROLE = 256
OB = 512
GUL = 4608
STB = 12800
ACT = 14848
LDS_BYTES = 16384

DEF = dict(rot=5, L0=28, K0=4, D=16, Dk=20, XB=52, TK=40, TW=7, R=8, NRW=4, stamps=0, prog=0, pol="nt", polq="nt",
           warm=1, LIMIT=20000, qsleep=0, mlsleep=64, prio=1, order='BF', bsleep=0, hsleep=0, rsleep=0, padto=0, KA=4, bar0=1, pf=0, polp='', Dv=16, vg=1, exp=0)


def q4(b): return f"v[{b}:{b+3}]"
def q2(b): return f"v[{b}:{b+1}]"
f2h = lambda f: "0x%08x" % struct.unpack('<I', struct.pack('<f', f))[0]


def gen(**kw):
    P = dict(DEF); P.update(kw)
    g = Gen()
    R_ = P['R']; L0 = P['L0']; K0 = P['K0']
    hdr = []
    hdr.append(f"; @launch grid=(256,1,1) block=(512,1,1) lds={LDS_BYTES}")
    hdr.append('.amdgcn_target "amdgcn-amd-amdhsa--gfx950"')
    hdr += [".text", f".globl {KN}", ".p2align 8", f".type {KN},@function", f"{KN}:"]

    vL, vG, vJ, vK, vX, vM, vTK = 1, 2, 3, 4, 5, 6, 10
    vQ, vS, vACC, vA0, vA1 = 12, 16, 20, 24, 28
    T = list(range(32, 48))
    vMW, vFAC, vST, vZ, vCNT, vW, vML = 48, 49, 50, 51, 52, 53, 54
    POOL = list(range(56, 256, 4))
    pool = list(POOL)
    KS, VS, W1, W2, W3, _u, WS, XS, OUT = [f"s[{a}:{a+3}]" for a in range(28, 64, 4)]
    sW, sC, sB, sH, sI, sX = 64, 65, 66, 67, 68, 69
    sKo, sVo, sQo, sTo, sR, sE = 70, 71, 72, 73, 74, 75
    sPL, sPH = 78, 79
    sMK = {1: "s[80:81]", 2: "s[82:83]", 3: "s[84:85]"}
    sONE, sCNT = 86, 87
    sINV = 91

    nst = [0]
    def stamp(k):
        if not P['stamps']:
            return
        g.lgk(0)
        if nst[0]:
            g(f"v_writelane_b32 v{vST}, s92, {nst[0]-1}")
        g("s_memrealtime s[92:93]")
        nst[0] = k + 1
    def stamp_flush():
        if P['stamps'] and nst[0]:
            g.lgk(0)
            g(f"v_writelane_b32 v{vST}, s92, {nst[0]-1}")
            nst[0] = 0
    def stamp_end():
        if not P['stamps']:
            return
        stamp(15)
        stamp_flush()
        g(f"s_add_u32 s94, s26, {260<<20}"); g("s_addc_u32 s95, s27, 0")
        g(f"s_lshl_b32 s96, s2, 3"); g(f"s_add_u32 s96, s96, s{sW}"); g("s_lshl_b32 s96, s96, 8")
        g(f"v_lshlrev_b32 v{T[0]}, 2, v{vL}"); g(f"v_add_u32 v{T[0]}, s96, v{T[0]}")
        g(f"global_store_dword v{T[0]}, v{vST}, s[94:95]")
    prog = []
    bytes_of = {}
    def pstamp():
        if not (P['stamps'] and P['prog']):
            return
        k = 16 + len(prog)
        assert k < 64
        prog.append(sum(v for t, v in bytes_of.items() if t < g.vm_done))
        stamp(k)

    def bf16r(d, s):
        g(f"v_cvt_pk_bf16_f32 v{d}, v{s}, v{s}")
        g(f"v_and_b32 v{d}, 0xffff0000, v{d}")

    def allred(op, regs, tmps, rows=4):
        for sh in (8, 4, 2, 1):
            for r in regs:
                g(f"{op}_dpp v{r}, v{r}, v{r} row_ror:{sh} row_mask:0xf bank_mask:0xf")
        for sw in (("16", "32") if rows == 4 else ("16",)):
            for r, t in zip(regs, tmps):
                g(f"v_mov_b32 v{t}, v{r}")
            for r, t in zip(regs, tmps):
                g(f"v_permlane{sw}_swap_b32 v{r}, v{t}")
            for r, t in zip(regs, tmps):
                g(f"{op} v{r}, v{r}, v{t}")

    def ln_scalars(sm, sq, t):
        g(f"v_mul_f32 v{sm}, s{sINV}, v{sm}")
        g(f"v_mul_f32 v{t}, v{sm}, v{sm}")
        g(f"v_fma_f32 v{sq}, v{sq}, s{sINV}, -v{t}")
        g(f"v_max_f32 v{sq}, 0, v{sq}")
        bf16r(sq, sq)
        bf16r(sm, sm)
        g(f"v_add_f32 v{sq}, 0x3727c5ac, v{sq}")
        bf16r(sq, sq)
        g(f"v_sqrt_f32 v{sq}, v{sq}")
        bf16r(sq, sq)
        g(f"v_rcp_f32 v{sq}, v{sq}")

    def untracked(text):
        g.emit(text); g.vm_issued -= 1

    g("s_cmp_ge_u32 s2, 256"); g("s_cbranch_scc1 L_end")
    g("s_load_dwordx16 s[4:19], s[0:1], 0")
    g("s_load_dwordx8 s[20:27], s[0:1], 64")
    if P['padto']:
        g("s_memrealtime s[98:99]")
    if P['stamps']:
        g("s_memrealtime s[92:93]"); nst[0] = 1
        g(f"v_mov_b32 v{vST}, 0")
    g(f"""
    v_lshrrev_b32 v{T[0]}, 6, v0
    v_and_b32 v{vL}, 63, v0
    s_and_b32 s{sX}, s2, 7
    v_readfirstlane_b32 s{sW}, v{T[0]}
    s_lshr_b32 s{sI}, s2, 3
    s_lshr_b32 s{sB}, s{sI}, 4
    s_and_b32 s76, s{sI}, 15
    s_lshl_b32 s77, s{sX}, 4
    s_add_u32 s76, s76, s77
    s_lshr_b32 s{sH}, s76, 2
    s_lshl_b32 s{sC}, s{sB}, 7
    s_add_u32 s{sC}, s{sC}, s76
    v_lshlrev_b32 v{T[1]}, 4, v{vL}
    v_lshl_add_u32 v{vK}, v{T[0]}, 12, v{T[1]}
    s_mul_i32 s{sKo}, s{sC}, {P['rot']}
    s_and_b32 s{sKo}, s{sKo}, 15
    s_lshl_b32 s{sKo}, s{sKo}, 15
    s_mov_b32 s{sVo}, s{sKo}
    s_lshl_b32 s76, s{sC}, 19
    s_mov_b32 s30, 0x80000
    s_mov_b32 s31, 0x20000
    s_waitcnt lgkmcnt(0)
    s_add_u32 s28, s6, s76
    s_addc_u32 s29, s7, 0
    """)

    items = {}
    def issue_kv(kind, n, r):
        srd, so = (KS, sKo) if kind == 'K' else (VS, sVo)
        tok = g.vm(f"buffer_load_dwordx4 {q4(r)}, v{vK}, {srd}, s{so} offen offset:{(n&3)*1024} nt")
        if n & 3 == 3 and n != 63:
            g(f"s_add_u32 s{so}, s{so}, 0x8000"); g(f"s_and_b32 s{so}, s{so}, 0x7ffff")
        items[(kind, n)] = (tok, r)
        bytes_of[tok] = 1024

    def setup_ws():
        g(f"""
        s_mov_b32 s52, s26
        s_mov_b32 s53, s27
        s_mov_b32 s54, {WSN}
        s_mov_b32 s55, 0x20000
        """)
    def setup2(tag):
        g(f"""
        s_lshl_b32 s76, s{sC}, 19
        s_add_u32 s32, s8, s76
        s_addc_u32 s33, s9, 0
        s_mov_b32 s34, 0x80000
        s_mov_b32 s35, 0x20000
        v_and_b32 v{T[5]}, 1, v{vL}
        v_lshlrev_b32 v{T[5]}, 4, v{T[5]}
        v_mov_b32 v{T[7]}, 0xffff
        v_lshlrev_b32 v{T[5]}, v{T[5]}, v{T[7]}
        v_bfe_u32 v{T[7]}, v{vL}, 1, 2
        """)
        for r in range(4):
            g(f"v_cmp_eq_u32 vcc, {r}, v{T[7]}")
            g(f"v_cndmask_b32 v{vM+r}, 0, v{T[5]}, vcc")
        g(f"""
        s_mov_b32 s{sONE}, 0x3f803f80
        s_mov_b32 s{sPL}, 0x05040100
        s_mov_b32 s{sPH}, 0x07060302
        s_mov_b32 s80, 0x22222222
        s_mov_b32 s81, 0x22222222
        s_mov_b32 s82, 0x44444444
        s_mov_b32 s83, 0x44444444
        s_mov_b32 s84, 0x88888888
        s_mov_b32 s85, 0x88888888
        s_mov_b32 s{sINV}, {f2h(1.0/576)}
        v_mov_b32 v{vZ}, 0
        """)
        if P['warm']:
            g(f"""
            s_and_b32 s76, s{sI}, 7
            s_lshl_b32 s76, s76, 3
            s_add_u32 s76, s76, s{sW}
            s_lshl_b32 s76, s76, 10
            v_and_b32 v{vW}, 7, v{vL}
            v_lshl_add_u32 v{vW}, v{vW}, 7, s76
            v_min_u32 v{vW}, L_end-{KN}-64, v{vW}
            s_getpc_b64 s[76:77]
            """)
            g.label(f"L_warm{tag}")
            g(f"s_sub_u32 s76, s76, L_warm{tag}-{KN}"); g("s_subb_u32 s77, s77, 0")
            g.vm(f"global_load_dword v{vW}, v{vW}, s[76:77]")

    KA = P['KA']
    for n in range(KA):
        issue_kv('K', n, POOL[n])
    g(f"s_cmp_lg_u32 s{sW}, 0"); g("s_cbranch_scc1 L_oth")
    pre_out = g.out; g.out = []
    g.label("L_oth")
    g(f"v_lshrrev_b32 v{vG}, 4, v{vL}"); g(f"v_and_b32 v{vJ}, 15, v{vL}")
    setup_ws()
    setup2('a')
    if P['bar0']: g("s_barrier")
    for n in range(KA, L0):
        issue_kv('K', n, POOL[n])
    g("s_barrier")
    main_state = (g.vm_issued, g.vm_done, dict(items), dict(bytes_of), nst[0])
    main_out = g.out; main_hist = g.hist

    g.out = []; g.hist = []
    g.vm_issued = KA; g.vm_done = 0
    if P['prio']: g("s_setprio 3")
    XA, XB_, XE = POOL[26], POOL[27], POOL[28]
    XR = POOL[29]
    WQR = POOL[8:26]
    g(f"""
    s_lshl_b32 s76, s{sH}, 7
    s_add_u32 s76, s76, {EP}
    s_load_dword s{sE}, s[26:27], s76
    s_mov_b32 s56, s4
    s_mov_b32 s57, s5
    s_mov_b32 s58, 2304
    s_mov_b32 s59, 0x20000
    v_lshrrev_b32 v{T[2]}, 5, v{vL}
    v_mul_u32_u24 v{T[2]}, 1152, v{T[2]}
    v_and_b32 v{T[3]}, 31, v{vL}
    v_lshl_add_u32 v{T[4]}, v{T[3]}, 4, v{T[2]}
    v_lshl_add_u32 v{T[3]}, v{T[3]}, 2, v{T[2]}
    v_lshrrev_b32 v{vG}, 4, v{vL}
    v_and_b32 v{vJ}, 15, v{vL}
    """)
    g.vm(f"buffer_load_dwordx4 {q4(XA)}, v{T[4]}, {XS}, 0 offen")
    g.vm(f"buffer_load_dwordx4 {q4(XB_)}, v{T[4]}, {XS}, 0 offen offset:512")
    g.vm(f"buffer_load_dword v{XE}, v{T[3]}, {XS}, 0 offen offset:1024")
    g(f"""
    s_and_b32 s76, s{sI}, 3
    s_lshl_b32 s77, s{sB}, 2
    s_add_u32 s{sR}, s76, s77
    s_mul_i32 s{sTo}, s{sR}, 144
    v_lshlrev_b32 v{T[2]}, 3, v{vJ}
    v_lshl_add_u32 v{T[2]}, v{vG}, 1, v{T[2]}
    """)
    g.vm(f"buffer_load_ushort v{XR}, v{T[2]}, {XS}, s{sTo} offen")
    g.vm(f"buffer_load_ushort v{XR+1}, v{T[2]}, {XS}, s{sTo} offen offset:128")
    g.vm(f"buffer_load_ushort v{XR+2}, v{T[2]}, {XS}, s{sTo} offen offset:1152")
    tx = g.vm(f"buffer_load_ushort v{XR+3}, v{T[2]}, {XS}, s{sTo} offen offset:1280")
    g(f"""
    s_lshl_b32 s76, s{sH}, 8
    s_add_u32 s36, s10, s76
    s_addc_u32 s37, s11, 0
    s_sub_u32 s38, {576*8192}, s76
    s_mov_b32 s39, 0x20000
    s_mul_i32 s{sQo}, s{sR}, {72*8192}
    v_lshlrev_b32 v{vX}, 13, v{vG}
    v_lshl_add_u32 v{vX}, v{vJ}, 4, v{vX}
    """)
    tq = []
    for m in range(18):
        tq.append(g.vm(f"buffer_load_dwordx4 {q4(WQR[m])}, v{vX}, {W1}, s{sQo} offen {P['polq']}"))
        if m != 17:
            g(f"s_add_u32 s{sQo}, s{sQo}, 0x8000")
    setup_ws()
    g(f"""
    s_lshl_b32 s76, s{sC}, 10
    s_add_u32 s77, s76, {256<<10}
    s_add_u32 s{sTo}, s76, {512<<10}
    v_mov_b32 v{T[8]}, -1
    v_mov_b32 v{T[9]}, -1
    v_mov_b32 v{T[10]}, -1
    v_mov_b32 v{T[11]}, -1
    s_mov_b64 exec, 0xffffff
    """)
    g.vm(f"buffer_store_dwordx4 {q4(T[8])}, v{T[1]}, {WS}, s76 offen sc1")
    g("s_mov_b64 exec, -1")
    g.vm(f"buffer_store_dwordx4 {q4(T[8])}, v{T[1]}, {WS}, s77 offen sc1")
    tinit = g.vm(f"buffer_store_dwordx4 {q4(T[8])}, v{T[1]}, {WS}, s{sTo} offen sc1")
    if P['bar0']: g("s_barrier")
    for n in range(KA, K0):
        issue_kv('K', n, POOL[n])
    setup2('b')
    g.wait(tx)
    a, b_, t1, t2 = T[12], T[13], T[14], T[15]
    xs = [XA, XA + 1, XA + 2, XA + 3, XB_, XB_ + 1, XB_ + 2, XB_ + 3, XE]
    for k, r in enumerate(xs):
        g(f"v_dot2_f32_bf16 v{a}, v{r}, s{sONE}, {'0' if k == 0 else 'v%d' % a}")
        g(f"v_dot2_f32_bf16 v{b_}, v{r}, v{r}, {'0' if k == 0 else 'v%d' % b_}")
    allred("v_add_f32", [a, b_], [t1, t2], rows=2)
    ln_scalars(a, b_, t1)
    g(f"v_readlane_b32 s76, v{a}, 0"); g(f"v_readlane_b32 s77, v{a}, 32")
    g(f"v_readlane_b32 s88, v{b_}, 0"); g(f"v_readlane_b32 s89, v{b_}, 32")
    for k in range(4): g(f"v_lshlrev_b32 v{XR+k}, 16, v{XR+k}")
    for k in range(4): g(f"v_subrev_f32 v{XR+k}, s{76 + (k>>1)}, v{XR+k}")
    for k in range(4): bf16r(XR + k, XR + k)
    for k in range(4): g(f"v_mul_f32 v{XR+k}, s{88 + (k>>1)}, v{XR+k}")
    for k in range(4): g(f"v_cvt_pk_bf16_f32 v{XR+k}, v{XR+k}, v{XR+k}")
    for m in range(18):
        A = vA0 if m & 1 == 0 else vA1
        t = T[12 + (m & 1)]
        g(f"v_mov_b32_dpp v{t}, v{XR+(m>>4)} row_newbcast:{m&15} row_mask:0xf bank_mask:0x3")
        g(f"v_mov_b32_dpp v{t}, v{XR+2+(m>>4)} row_newbcast:{m&15} row_mask:0xf bank_mask:0xc")
        for r in range(4):
            g(f"v_and_b32 v{A+r}, v{t}, v{vM+r}")
        g.wait(tq[m])
        g(f"v_mfma_f32_16x16x32_bf16 {q4(vACC)}, {q4(A)}, {q4(WQR[m])}, {'0' if m == 0 else q4(vACC)}")
    g(f"""
    s_waitcnt lgkmcnt(0)
    s_add_u32 s{sE}, s{sE}, 1
    s_lshl_b32 s76, s{sH}, 4
    s_add_u32 s76, s76, s{sR}
    s_lshl_b32 s76, s76, 10
    s_add_u32 s76, s76, {QP}
    v_lshrrev_b32 v{T[2]}, 1, v{vG}
    v_lshlrev_b32 v{T[2]}, 13, v{T[2]}
    v_lshl_add_u32 v{T[2]}, v{vJ}, 5, v{T[2]}
    v_and_b32 v{T[3]}, 1, v{vG}
    v_lshl_add_u32 v{T[2]}, v{T[3]}, 4, v{T[2]}
    v_mov_b32 v{vA0+1}, s{sE}
    v_mov_b32 v{vA0+3}, s{sE}
    v_mov_b32 v{vA1+1}, s{sE}
    v_mov_b32 v{vA1+3}, s{sE}
    v_mov_b32 v{T[4]}, 1
    v_mov_b32 v{vA0}, v{vACC}
    v_mov_b32 v{vA0+2}, v{vACC+1}
    v_mov_b32 v{vA1}, v{vACC+2}
    v_mov_b32 v{vA1+2}, v{vACC+3}
    """)
    g.wait(tinit)
    g.vm(f"buffer_store_dwordx4 {q4(vA0)}, v{T[2]}, {WS}, s76 offen sc1")
    g.vm(f"buffer_store_dwordx4 {q4(vA1)}, v{T[2]}, {WS}, s76 offen offset:512 sc1")
    g("s_mov_b64 exec, 1")
    g.vm(f"global_atomic_add v{vZ}, v{T[4]}, s[24:25] sc1")
    g("s_mov_b64 exec, -1")
    stamp(1)
    QR = POOL[8:16]
    g(f"""
    s_lshl_b32 s76, s{sH}, 1
    s_add_u32 s76, s76, s{sB}
    s_lshl_b32 s76, s76, 13
    s_add_u32 s76, s76, {QP}
    s_add_u32 s77, s76, 4096
    s_mov_b32 s{sCNT}, 0
    v_and_b32 v{T[3]}, 31, v{vL}
    v_lshlrev_b32 v{T[3]}, 3, v{T[3]}
    v_lshrrev_b32 v{T[2]}, 5, v{vL}
    v_lshl_add_u32 v{T[3]}, v{T[2]}, 2, v{T[3]}
    """)
    if P['qsleep']: g(f"s_sleep {P['qsleep']}")
    g.label("L_qp")
    for n in range(8):
        g(f"buffer_load_dwordx4 {q4(QR[n])}, v{T[1]}, {WS}, s{76 + (n>>2)} offen offset:{(n&3)*1024} sc1")
    g.waitall()
    mn, mx = T[4], T[5]
    g(f"v_min_u32 v{mn}, v{QR[0]+1}, v{QR[0]+3}"); g(f"v_max_u32 v{mx}, v{QR[0]+1}, v{QR[0]+3}")
    for n in range(1, 8):
        g(f"v_min3_u32 v{mn}, v{mn}, v{QR[n]+1}, v{QR[n]+3}"); g(f"v_max3_u32 v{mx}, v{mx}, v{QR[n]+1}, v{QR[n]+3}")
    g(f"v_cmp_ne_u32 vcc, s{sE}, v{mn}")
    g(f"v_cmp_ne_u32 s[88:89], s{sE}, v{mx}")
    g(f"s_add_u32 s{sCNT}, s{sCNT}, 1")
    g("s_or_b64 vcc, vcc, s[88:89]")
    g("s_cbranch_scc0 L_qp_ok")
    g(f"s_cmp_lt_u32 s{sCNT}, {P['LIMIT']}"); g("s_cbranch_scc1 L_qp")
    g.label("L_qp_ok")
    for st in (1, 2, 4):
        for n in range(0, 8, 2 * st):
            g(f"v_add_f32 v{QR[n]}, v{QR[n]}, v{QR[n+st]}")
            g(f"v_add_f32 v{QR[n]+2}, v{QR[n]+2}, v{QR[n+st]+2}")
    g(f"v_cvt_pk_bf16_f32 v{QR[0]}, v{QR[0]}, v{QR[0]+2}")
    g(f"ds_write_b32 v{T[3]}, v{QR[0]} offset:{QS}")
    g.lgk(0)
    g("s_barrier")
    if P['prio']: g("s_setprio 0")
    g(f"s_cmp_eq_u32 s{sR}, 0"); g("s_cbranch_scc0 L_noep")
    g(f"s_lshl_b32 s76, s{sH}, 7"); g(f"s_add_u32 s76, s76, {EP}")
    g("s_mov_b64 exec, 1")
    g(f"buffer_store_dword v{vA0+1}, v{vZ}, {WS}, s76 offen sc1")
    g("s_mov_b64 exec, -1")
    g.label("L_noep")
    for n in range(K0, L0):
        issue_kv('K', n, POOL[n])
    stamp_flush()
    g("s_branch L_q2")
    w0_out = g.out

    g.out = pre_out + w0_out + main_out; g.hist = main_hist
    g.vm_issued, g.vm_done, it, bo, nst[0] = main_state
    items.clear(); items.update(it); bytes_of.clear(); bytes_of.update(bo)
    stamp_flush()
    g.flush()
    g.label("L_q2")
    pool[:] = POOL[L0:]
    g(f"v_lshlrev_b32 v{T[3]}, 4, v{vJ}")
    g(f"ds_read_b128 {q4(vQ)}, v{T[3]} offset:{QS}")
    g.lgk(0)
    stamp(2)

    queue = []
    aux = []
    def kv_item(kind, n):
        return (1, lambda: issue_kv(kind, n, pool.pop(0)))
    def pump(limit):
        while queue:
            nq, issue = queue[0]
            if len(pool) < nq or g.outstanding() >= min(limit, 60):
                break
            queue.pop(0)
            issue()
    def run_aux(force=False):
        while aux and (force or aux[0][0] < g.vm_done):
            tok, fn = aux.pop(0)
            g.wait(tok)
            fn()

    def ticket():
        g(f"s_cmp_lg_u32 s{sW}, {P['TW']}"); g("s_cbranch_scc1 L_notk")
        g(f"v_mov_b32 v{T[14]}, 0"); g(f"v_mov_b32 v{T[15]}, 1")
        g("s_mov_b64 exec, 1")
        untracked(f"global_atomic_add_x2 {q2(vTK)}, v{vZ}, {q2(T[14])}, s[24:25] sc0 sc1")
        g("s_mov_b64 exec, -1")
        g.label("L_notk")
    published = [False]
    def ml_load():
        assert published[0]
        g(f"s_and_b32 s76, s{sC}, 0xfc"); g("s_lshl_b32 s76, s76, 10")
        g(f"v_bfe_u32 v{vCNT}, v{vL}, 3, 2"); g(f"v_lshlrev_b32 v{vCNT}, 10, v{vCNT}")
        g(f"v_and_b32 v{vX}, 7, v{vL}"); g(f"v_lshl_add_u32 v{vCNT}, v{vX}, 3, v{vCNT}")
        g(f"v_add_u32 v{vCNT}, s76, v{vCNT}")
        tok = g.vm(f"buffer_load_dwordx2 {q2(vML)}, v{vCNT}, {WS}, 0 offen sc1")
        def fin():
            assert not queue
            if P['pf']:
                g(f"s_cmp_ge_u32 s{sW}, 4"); g("s_cbranch_scc1 L_nopf")
                g(f"""
                s_mov_b32 s36, s12
                s_mov_b32 s37, s13
                s_cmp_eq_u32 s{sW}, 1
                s_cselect_b32 s36, s16, s36
                s_cselect_b32 s37, s17, s37
                s_cmp_eq_u32 s{sW}, 2
                s_cselect_b32 s36, s18, s36
                s_cselect_b32 s37, s19, s37
                s_cmp_eq_u32 s{sW}, 3
                s_cselect_b32 s36, s20, s36
                s_cselect_b32 s37, s21, s37
                s_cmp_eq_u32 s{sW}, 0
                s_mov_b32 s76, 20736
                s_cselect_b32 s76, 18432, s76
                s_mul_i32 s77, s76, s2
                s_add_u32 s38, s77, s76
                s_mov_b32 s39, 0x20000
                v_lshlrev_b32 v{T[0]}, 4, v{vL}
                """)
                for n in range(21):
                    untracked(f"buffer_load_dwordx4 {q4(pool[n])}, v{T[0]}, {W1}, s77 offen offset:{(n&3)*1024} {P['polp']}")
                    if n & 3 == 3: g("s_add_u32 s77, s77, 4096")
                g.label("L_nopf")
            g(f"s_mov_b32 s{sCNT}, 0")
            g.label("L_ml_chk")
            g(f"v_max_u32 v{T[0]}, v{vML}, v{vML+1}")
            g(f"v_cmp_eq_u32 vcc, -1, v{T[0]}")
            g("s_cbranch_vccz L_ml_ok")
            g(f"s_sleep {P['mlsleep']}")
            untracked(f"buffer_load_dwordx2 {q2(vML)}, v{vCNT}, {WS}, 0 offen sc1")
            g("s_waitcnt vmcnt(0)")
            g(f"s_add_u32 s{sCNT}, s{sCNT}, 1")
            g(f"s_cmp_lt_u32 s{sCNT}, {P['LIMIT']}"); g("s_cbranch_scc1 L_ml_chk")
            g.label("L_ml_ok")
            g(f"v_mov_b32 v{T[0]}, v{vML}")
            allred("v_max_f32", [T[0]], [T[1]], rows=2)
            g(f"v_sub_f32 v{T[2]}, v{vML}, v{T[0]}")
            g(f"v_exp_f32 v{T[2]}, v{T[2]}")
            g(f"v_sub_f32 v{T[3]}, v{vMW}, v{T[0]}")
            g(f"v_mul_f32 v{T[2]}, v{T[2]}, v{vML+1}")
            g(f"v_exp_f32 v{T[3]}, v{T[3]}")
            allred("v_add_f32", [T[2]], [T[1]], rows=2)
            g(f"v_rcp_f32 v{T[2]}, v{T[2]}")
            g(f"v_mul_f32 v{vFAC}, v{T[2]}, v{T[3]}")
            stamp(4)
        aux.append((tok, fin))

    for n in range(L0, 64):
        queue.append(kv_item('K', n))
    for n in range(64):
        if n == P['TK']: queue.append((0, ticket))
        if n == P['XB'] and not P['exp'] & 4: queue.append((0, ml_load))
        queue.append(kv_item('V', n))

    for gk in range(16):
        rs = [items[('K', 4 * gk + u)] for u in range(4)]
        g.wait(rs[3][0])
        pstamp()
        t = T[0:4]
        for k in range(4):
            for u in range(4):
                g(f"v_dot2_f32_bf16 v{t[u]}, v{rs[u][1]+k}, v{vQ+k}, {'0' if k == 0 else 'v%d' % t[u]}")
        for u in range(4):
            pool.append(rs[u][1])
        pump(P['Dk'] if 4 * gk + 4 < L0 else P['D'])
        a, b2, c = T[4], T[5], T[6]
        g(f"v_add_f32_dpp v{a}, v{t[0]}, v{t[0]} row_ror:8 row_mask:0xf bank_mask:0x3")
        g(f"v_add_f32_dpp v{b2}, v{t[2]}, v{t[2]} row_ror:8 row_mask:0xf bank_mask:0x3")
        g(f"v_add_f32_dpp v{a}, v{t[1]}, v{t[1]} row_ror:8 row_mask:0xf bank_mask:0xc")
        g(f"v_add_f32_dpp v{b2}, v{t[3]}, v{t[3]} row_ror:8 row_mask:0xf bank_mask:0xc")
        g(f"v_add_f32_dpp v{c}, v{a}, v{a} row_half_mirror row_mask:0xf bank_mask:0x5")
        g(f"v_add_f32_dpp v{c}, v{b2}, v{b2} row_half_mirror row_mask:0xf bank_mask:0xa")
        g(f"v_add_f32_dpp v{c}, v{c}, v{c} quad_perm:[1,0,3,2] row_mask:0xf bank_mask:0xf")
        lam = gk & 3
        S = vS + (gk >> 2)
        if lam == 0:
            g(f"v_add_f32_dpp v{S}, v{c}, v{c} quad_perm:[2,3,0,1] row_mask:0xf bank_mask:0xf")
        else:
            g(f"v_add_f32_dpp v{c}, v{c}, v{c} quad_perm:[2,3,0,1] row_mask:0xf bank_mask:0xf")
            g(f"v_cndmask_b32 v{S}, v{S}, v{c}, {sMK[lam]}")
    stamp(3)
    for r in range(4): g(f"v_cvt_pk_bf16_f32 v{vS+r}, v{vS+r}, v{vS+r}")
    for r in range(4): g(f"v_and_b32 v{vS+r}, 0xffff0000, v{vS+r}")
    for r in range(4): g(f"v_mul_f32 v{vS+r}, 0x3db504f3, v{vS+r}")
    for r in range(4): g(f"v_cvt_pk_bf16_f32 v{vS+r}, v{vS+r}, v{vS+r}")
    for r in range(4): g(f"v_and_b32 v{vS+r}, 0xffff0000, v{vS+r}")
    g(f"v_max3_f32 v{vMW}, v{vS}, v{vS+1}, v{vS+2}")
    g(f"v_max_f32 v{vMW}, v{vMW}, v{vS+3}")
    allred("v_max_f32", [vMW], [T[0]])
    for r in range(4): g(f"v_sub_f32 v{vS+r}, v{vS+r}, v{vMW}")
    for r in range(4): g(f"v_mul_f32 v{vS+r}, 0x3fb8aa3b, v{vS+r}")
    for r in range(4): g(f"v_exp_f32 v{vS+r}, v{vS+r}")
    g(f"v_mul_f32 v{vMW}, 0x3fb8aa3b, v{vMW}")
    g(f"v_add_f32 v{vMW+1}, v{vS}, v{vS+1}")
    g(f"v_add_f32 v{T[1]}, v{vS+2}, v{vS+3}")
    g(f"v_add_f32 v{vMW+1}, v{vMW+1}, v{T[1]}")
    for r in range(4): g(f"v_cvt_pk_bf16_f32 v{vS+r}, v{vS+r}, v{vS+r}")
    allred("v_add_f32", [vMW + 1], [T[0]])
    g(f"s_lshl_b32 s76, s{sC}, 7"); g(f"s_add_u32 s76, s76, s{sW}"); g("s_lshl_b32 s76, s76, 3")
    g("s_mov_b64 exec, 1")
    if not P['exp'] & 4:
        g.vm(f"buffer_store_dwordx2 {q2(vMW)}, v{vZ}, {WS}, s76 offen sc1")
    else:
        g("s_mov_b64 exec, -1"); g(f"v_rcp_f32 v{vFAC}, v{vFAC}")
    g("s_mov_b64 exec, -1")
    published[0] = True

    beta = {0: 0, 1: 2, 2: 1, 3: 3}
    for n in range(64):
        if n % P['vg'] == 0: pump(P['Dv'])
        A = vA0 if n & 1 == 0 else vA1
        j = 4 * beta[n & 3] + ((n >> 2) & 3)
        for r in range(4):
            if P['exp'] & 2 and n > 1: continue
            g(f"v_and_b32_dpp v{A+r}, v{vS+(n>>4)}, v{vM+r} row_newbcast:{j} row_mask:0xf bank_mask:0xf")
        if n == 61:
            g(f"s_cmp_lg_u32 s{sW}, {P['TW']}"); g("s_cbranch_scc1 L_tk_done")
            g(f"s_mov_b32 s{sCNT}, 0")
            g.label("L_tk_chk")
            g(f"v_readfirstlane_b32 s76, v{vTK}")
            g("s_and_b32 s76, s76, 255"); g("s_cbranch_scc0 L_tk_ok")
            g("s_sleep 8")
            untracked(f"global_load_dword v{vTK}, v{vZ}, s[24:25] sc1")
            g("s_waitcnt vmcnt(0)")
            g(f"s_add_u32 s{sCNT}, s{sCNT}, 1")
            g(f"s_cmp_lt_u32 s{sCNT}, {P['LIMIT']}"); g("s_cbranch_scc1 L_tk_chk")
            g.label("L_tk_ok")
            g("s_mov_b64 exec, 1")
            g(f"ds_write_b32 v{vZ}, v{vTK+1} offset:{ROLE}")
            g("s_mov_b64 exec, -1")
            g.label("L_tk_done")
        if n == 62:
            g(f"""
            v_lshlrev_b32 v{T[8]}, 5, v{vJ}
            v_lshl_add_u32 v{T[8]}, v{vG}, 4, v{T[8]}
            s_lshl_b32 s76, s{sW}, 9
            v_add_u32 v{T[8]}, s76, v{T[8]}
            v_and_b32 v{T[9]}, 31, v{vL}
            v_lshrrev_b32 v{T[11]}, 5, v{vL}
            v_lshlrev_b32 v{T[10]}, 3, v{T[9]}
            v_lshl_add_u32 v{T[10]}, v{T[11]}, 2, v{T[10]}
            v_lshlrev_b32 v{T[9]}, 4, v{T[9]}
            v_lshl_add_u32 v{T[9]}, v{T[11]}, 11, v{T[9]}
            s_lshl_b32 s{sTo}, s{sC}, 10
            """)
        tok, r = items[('V', n)]
        g.wait(tok)
        if P['exp'] & 1 and n > 0:
            g(f"v_xor_b32 v{T[7]}, v{r}, v{A}")
        else:
            g(f"v_mfma_f32_16x16x32_bf16 {q4(vACC)}, {q4(A)}, {q4(r)}, {'0' if n == 0 else q4(vACC)}")
        pool.append(r)
        if n & 3 == 3: pstamp()
        if n < 63:
            run_aux()
    assert not queue and not aux
    stamp(5)
    vOBW, vOBR = T[8], T[9]
    g(f"v_pk_mul_f32 {q2(vACC)}, {q2(vACC)}, {q2(vFAC-1)} op_sel:[0,1] op_sel_hi:[1,1]")
    g(f"v_pk_mul_f32 {q2(vACC+2)}, {q2(vACC+2)}, {q2(vFAC-1)} op_sel:[0,1] op_sel_hi:[1,1]")
    g("s_mov_b32 exec_hi, 0")
    g(f"ds_write_b128 v{vOBW}, {q4(vACC)} offset:{OB}")
    g("s_mov_b32 exec_hi, -1")
    g(f"s_cmp_lg_u32 s{sW}, 0")
    g.lgk(0)
    g("s_barrier")
    g("s_cbranch_scc1 L_osum_done")
    def sum8(regs):
        g.lgk(2)
        g(f"v_pk_add_f32 {q2(regs[0])}, {q2(regs[0])}, {q2(regs[1])}")
        g(f"v_pk_add_f32 {q2(regs[0]+2)}, {q2(regs[0]+2)}, {q2(regs[1]+2)}")
        g.lgk(0)
        g(f"v_pk_add_f32 {q2(regs[2])}, {q2(regs[2])}, {q2(regs[3])}")
        g(f"v_pk_add_f32 {q2(regs[2]+2)}, {q2(regs[2]+2)}, {q2(regs[3]+2)}")
        g(f"v_pk_add_f32 {q2(regs[0])}, {q2(regs[0])}, {q2(regs[2])}")
        g(f"v_pk_add_f32 {q2(regs[0]+2)}, {q2(regs[0]+2)}, {q2(regs[2]+2)}")
        g(f"v_permlane32_swap_b32 v{regs[0]}, v{regs[0]+2}")
        g(f"v_permlane32_swap_b32 v{regs[0]+1}, v{regs[0]+3}")
        g(f"v_pk_add_f32 {q2(regs[0])}, {q2(regs[0])}, {q2(regs[0]+2)}")
    SR = [vA0, vA1, vQ, vS]
    for n in range(4):
        g(f"ds_read_b128 {q4(SR[n])}, v{vOBR} offset:{OB+512*n}")
    sum8(SR)
    g(f"v_cvt_pk_bf16_f32 v{vA0}, v{vA0}, v{vA0+1}")
    untracked(f"buffer_store_dword v{vA0}, v{T[10]}, {WS}, s{sTo} offen offset:128 sc1")
    g.label("L_osum_done")
    g(f"ds_read_b32 v{T[0]}, v{vZ} offset:{ROLE}")
    g.lgk(0)
    stamp(6); stamp_flush()
    g(f"v_readfirstlane_b32 s{sR}, v{T[0]}")
    g(f"s_and_b32 s{sR}, s{sR}, 255")
    if P['stamps']:
        g(f"s_add_u32 s76, s{sR}, 1"); g(f"v_writelane_b32 v{vST}, s76, 11")
    if P['order'] == 'BF':
        g(f"s_cmp_lt_u32 s{sR}, 36"); g("s_cbranch_scc1 L_stb")
        g(f"s_sub_u32 s{sR}, s{sR}, 36")
        g(f"s_cmp_lt_u32 s{sR}, 72"); g("s_cbranch_scc1 L_ffn")
        g(f"s_sub_u32 s{sR}, s{sR}, 72")
    else:
        g(f"s_cmp_lt_u32 s{sR}, 72"); g("s_cbranch_scc1 L_ffn")
        g(f"s_sub_u32 s{sR}, s{sR}, 72")
        g(f"s_cmp_lt_u32 s{sR}, 36"); g("s_cbranch_scc1 L_stb")
        g(f"s_sub_u32 s{sR}, s{sR}, 36")
    g(f"s_cmp_lt_u32 s{sR}, 72"); g("s_cbranch_scc0 L_fin")
    g(f"s_cmp_lg_u32 s{sW}, 0"); g("s_cbranch_scc1 L_fin")
    save_nst = nst[0]
    def role_begin(label):
        g.label(label)
        g.hist = []
        pool[:] = POOL
        g.vm_issued = 0; g.vm_done = 0
        nst[0] = save_nst
        aux.clear()

    def dense(store, key, vaddr, srd, sbase, base, rstride, pol):
        while g.outstanding() + 8 > 60 or len(pool) < 8:
            tok, fn = aux.pop(0); g.wait(tok); fn()
        rs = [pool.pop(0) for _ in range(4)]
        raw = []
        per = max(1, 4096 // rstride) if rstride * 3 < 4096 else 1
        per = 4 if per >= 3 else 1
        for e in range(8):
            if e % per == 0:
                g(f"s_add_u32 s{sTo}, s{sbase}, {base + e*rstride}")
            r = rs[e // 2] + 2 * (e & 1)
            raw.append(r)
            tok = g.vm(f"buffer_load_dwordx2 {q2(r)}, v{vaddr}, {srd}, s{sTo} offen offset:{(e%per)*rstride} {pol}")
        def fin():
            outs = [pool.pop(0) for _ in range(4)]
            for k in range(4):
                for d in range(2):
                    g(f"v_perm_b32 v{outs[2*d]+k}, v{raw[2*k+1]+d}, v{raw[2*k]+d}, s{sPL}")
                    g(f"v_perm_b32 v{outs[2*d+1]+k}, v{raw[2*k+1]+d}, v{raw[2*k]+d}, s{sPH}")
            pool.extend(rs)
            store[key] = outs
        aux.append((tok, fin))

    g(f"""
    s_mov_b32 s56, s4
    s_mov_b32 s57, s5
    s_mov_b32 s58, 2304
    s_mov_b32 s59, 0x20000
    s_mov_b32 s60, s22
    s_mov_b32 s61, s23
    s_mov_b32 s62, 2304
    s_mov_b32 s63, 0x20000
    s_lshr_b32 s76, s{sR}, 3
    s_lshl_b32 s76, s76, 6
    s_bfe_u32 s77, s{sR}, 0x20001
    s_add_u32 s76, s76, s77
    s_and_b32 s77, s{sR}, 1
    s_lshl_b32 s77, s77, 5
    s_add_u32 s76, s76, s77
    v_and_b32 v{T[0]}, 3, v{vL}
    v_lshrrev_b32 v{T[1]}, 1, v{vG}
    v_lshl_add_u32 v{T[1]}, v{T[0]}, 1, v{T[1]}
    v_lshl_add_u32 v{T[1]}, v{T[1]}, 2, s76
    v_and_b32 v{T[2]}, 1, v{vG}
    v_mul_u32_u24 v{T[2]}, 1152, v{T[2]}
    v_lshl_add_u32 v{T[3]}, v{T[1]}, 1, v{T[2]}
    v_lshrrev_b32 v{T[4]}, 3, v{T[1]}
    v_lshl_add_u32 v{T[4]}, v{T[4]}, 4, v{T[2]}
    v_and_b32 v{T[5]}, 3, v{T[1]}
    v_lshl_add_u32 v{T[4]}, v{T[5]}, 2, v{T[4]}
    v_bfe_u32 v{T[5]}, v{T[1]}, 2, 1
    v_mad_u32_u24 v{T[4]}, v{T[5]}, s58, v{T[4]}
    v_lshrrev_b32 v{T[5]}, 2, v{vJ}
    v_mul_u32_u24 v{T[5]}, 4608, v{T[5]}
    v_add_u32 v{T[4]}, v{T[4]}, v{T[5]}
    s_and_b32 s70, s{sR}, {R_-1}
    s_mul_i32 s70, s70, 18432
    s_add_u32 s70, s70, {YP}
    v_lshrrev_b32 v{T[5]}, 2, v{vL}
    v_mul_u32_u24 v{T[5]}, 4608, v{T[5]}
    v_lshl_add_u32 v{T[5]}, v{T[0]}, 4, v{T[5]}
    s_lshl_b32 s71, s{sR}, 6
    s_add_u32 s71, s71, {DB}
    s_mov_b32 s{sCNT}, 0
    """)
    g(f"buffer_load_ushort v{T[9]}, v{T[3]}, {XS}, 0 offen")
    g.label("L_r1")
    g(f"buffer_load_dword v{T[10]}, v{T[4]}, {WS}, s70 offen sc1")
    g("s_waitcnt vmcnt(0)")
    g(f"v_cmp_u_f32 vcc, v{T[10]}, v{T[10]}")
    g(f"s_add_u32 s{sCNT}, s{sCNT}, 1")
    g("s_cbranch_vccz L_r1_ok")
    g("s_sleep 4")
    g(f"s_cmp_lt_u32 s{sCNT}, {P['LIMIT']}"); g("s_cbranch_scc1 L_r1")
    g.label("L_r1_ok")
    stamp(8)
    YR = POOL[0:5]
    sMs = [f"s[{a}:{a+1}]" for a in (80, 82, 84, 48, 50)]
    for n in range(5):
        g(f"s_mov_b64 {sMs[n]}, -1")
        if n == 4: g("s_mov_b32 s51, 0")
        g(f"s_add_u32 s{28+n}, s71, {n*16*4608}")
    for r in range(4): g(f"v_mov_b32 v{YR[4]+r}, 0")
    g(f"v_add_f32_dpp v{T[10]}, v{T[10]}, v{T[10]} row_ror:4 row_mask:0xf bank_mask:0xf")
    g(f"v_add_f32_dpp v{T[10]}, v{T[10]}, v{T[10]} row_ror:8 row_mask:0xf bank_mask:0xf")
    bf16r(T[10], T[10])
    g(f"v_lshlrev_b32 v{T[9]}, 16, v{T[9]}")
    g(f"v_add_f32 v{T[10]}, v{T[10]}, v{T[9]}")
    bf16r(T[10], T[10])
    g(f"s_mov_b32 s{sCNT}, 0")
    g.label("L_r2")
    for n in range(5):
        g(f"s_mov_b64 exec, {sMs[n]}")
        g(f"s_cbranch_execz L_r2s{n}")
        g(f"buffer_load_dwordx4 {q4(YR[n])}, v{T[5]}, {WS}, s{28+n} offen sc1")
        g.label(f"L_r2s{n}")
    g("s_mov_b64 exec, -1")
    g("s_waitcnt vmcnt(0)")
    y, y2 = vA0, vA1
    g(f"v_pk_add_f32 {q2(y)}, {q2(YR[0])}, {q2(YR[1])}")
    g(f"v_pk_add_f32 {q2(y+2)}, {q2(YR[0]+2)}, {q2(YR[1]+2)}")
    g(f"v_pk_add_f32 {q2(y2)}, {q2(YR[2])}, {q2(YR[3])}")
    g(f"v_pk_add_f32 {q2(y2+2)}, {q2(YR[2]+2)}, {q2(YR[3]+2)}")
    g(f"v_pk_add_f32 {q2(y)}, {q2(y)}, {q2(YR[4])}")
    g(f"v_pk_add_f32 {q2(y+2)}, {q2(y+2)}, {q2(YR[4]+2)}")
    g(f"v_pk_add_f32 {q2(y)}, {q2(y)}, {q2(y2)}")
    g(f"v_pk_add_f32 {q2(y+2)}, {q2(y+2)}, {q2(y2+2)}")
    g(f"v_permlane16_swap_b32 v{y}, v{y+1}")
    g(f"v_permlane16_swap_b32 v{y+2}, v{y+3}")
    g(f"v_add_f32 v{y}, v{y}, v{y+1}")
    g(f"v_add_f32 v{y+2}, v{y+2}, v{y+3}")
    g(f"v_permlane32_swap_b32 v{y}, v{y+2}")
    g(f"v_add_f32 v{y}, v{y}, v{y+2}")
    g(f"v_add_f32_dpp v{y}, v{y}, v{y} row_ror:4 row_mask:0xf bank_mask:0xf")
    g(f"v_add_f32_dpp v{y}, v{y}, v{y} row_ror:8 row_mask:0xf bank_mask:0xf")
    g(f"s_add_u32 s{sCNT}, s{sCNT}, 1")
    g(f"v_cmp_u_f32 vcc, v{y}, v{y}")
    g("s_cbranch_vccz L_r2_ok")
    for n in range(5):
        g(f"v_cmp_u_f32 {sMs[n]}, v{YR[n]}, v{YR[n]+1}")
        g(f"v_cmp_u_f32 vcc, v{YR[n]+2}, v{YR[n]+3}")
        g(f"s_or_b64 {sMs[n]}, {sMs[n]}, vcc")
    if P['rsleep']: g(f"s_sleep {P['rsleep']}")
    g(f"s_cmp_lt_u32 s{sCNT}, {P['LIMIT']}"); g("s_cbranch_scc1 L_r2")
    g.label("L_r2_ok")
    stamp(9)
    bf16r(y, y)
    g(f"v_add_f32 v{y}, v{y}, v{T[10]}")
    g(f"v_cvt_pk_bf16_f32 v{y}, v{y}, v{y}")
    g("s_mov_b32 exec_lo, 0x000f000f"); g("s_mov_b32 exec_hi, 0x000f000f")
    g(f"buffer_store_short v{y}, v{T[3]}, {OUT}, 0 offen")
    g("s_mov_b64 exec, -1")
    if P['stamps']:
        g("s_waitcnt vmcnt(0)")
        stamp(10)
        stamp_flush()
    if P['padto']:
        g.label("L_pad")
        g("s_memrealtime s[96:97]"); g("s_waitcnt lgkmcnt(0)"); g("s_sub_u32 s96, s96, s98")
        g(f"s_cmp_lt_u32 s96, {P['padto']}"); g("s_cbranch_scc1 L_pad")
    g("s_branch L_fin" if P['stamps'] else "s_endpgm")

    role_begin("L_stb")
    g(f"""
    s_mul_i32 s76, s{sR}, 57
    s_lshr_b32 s76, s76, 9
    s_mul_i32 s77, s76, 9
    s_sub_u32 s77, s{sR}, s77
    s_mov_b32 s36, s12
    s_mov_b32 s37, s13
    s_mov_b32 s38, {4096*1152}
    s_mov_b32 s39, 0x20000
    s_lshl_b32 s70, s76, 3
    s_add_u32 s70, s70, s{sW}
    s_mul_i32 s71, s70, {128*1152}
    s_lshl_b32 s77, s77, 7
    s_add_u32 s71, s71, s77
    v_mul_u32_u24 v{vX}, 9216, v{vG}
    v_lshl_add_u32 v{vX}, v{vJ}, 3, v{vX}
    """)
    WOP = {}
    for t in range(4):
        dense(WOP, t, vX, W1, 71, t * 32 * 1152, 1152, P['pol'])
    g(f"""
    s_lshl_b32 s70, s70, 12
    v_bfe_u32 v{T[0]}, v{vJ}, 2, 1
    v_lshlrev_b32 v{T[0]}, 17, v{T[0]}
    v_and_b32 v{T[1]}, 3, v{vJ}
    v_lshl_add_u32 v{T[0]}, v{T[1]}, 10, v{T[0]}
    v_lshl_add_u32 v{T[0]}, v{vG}, 4, v{T[0]}
    s_mul_i32 s76, s76, 4608
    s_add_u32 s76, s76, s77
    s_mul_i32 s77, s{sW}, {18432 * (R_ // P['NRW'])}
    s_add_u32 s76, s76, s77
    s_add_u32 s72, s76, {YP}
    v_lshlrev_b32 v{T[1]}, 4, v{vL}
    s_lshl_b32 s77, s{sW}, 9
    v_add_u32 v{T[1]}, s77, v{T[1]}
    v_and_b32 v{T[2]}, 1, v{vG}
    v_mul_u32_u24 v{T[2]}, 1152, v{T[2]}
    v_and_b32 v{T[3]}, 1, v{vJ}
    v_mul_u32_u24 v{T[3]}, 2304, v{T[3]}
    v_add_u32 v{T[2]}, v{T[2]}, v{T[3]}
    v_lshrrev_b32 v{T[3]}, 1, v{vJ}
    v_lshl_add_u32 v{T[2]}, v{T[3]}, 4, v{T[2]}
    v_lshrrev_b32 v{T[3]}, 1, v{vG}
    v_lshl_add_u32 v{T[2]}, v{T[3]}, 3, v{T[2]}
    s_mov_b32 s{sCNT}, 0
    """)
    run_aux(True)
    stamp(7)
    AO = [pool.pop(0) for _ in range(4)]
    DD = [pool.pop(0) for _ in range(4)]
    g.label("L_bp")
    for t in range(4):
        g(f"buffer_load_dwordx4 {q4(AO[t])}, v{T[0]}, {WS}, s70 offen offset:{128+64*t} sc1")
    g("s_mov_b64 exec, -1")
    for t in range(4):
        g(f"s_waitcnt vmcnt({3-t})")
        if t == 0:
            g(f"v_max3_u32 v{T[4]}, v{AO[t]}, v{AO[t]+1}, v{AO[t]+2}")
            g(f"v_max_u32 v{T[4]}, v{T[4]}, v{AO[t]+3}")
        else:
            g(f"v_max3_u32 v{T[4]}, v{T[4]}, v{AO[t]}, v{AO[t]+1}")
            g(f"v_max3_u32 v{T[4]}, v{T[4]}, v{AO[t]+2}, v{AO[t]+3}")
    g(f"v_cmp_eq_u32 vcc, -1, v{T[4]}")
    g(f"s_add_u32 s{sCNT}, s{sCNT}, 1")
    g("s_cbranch_vccz L_bp_ok")
    if P['bsleep']: g(f"s_sleep {P['bsleep']}")
    g("s_mov_b64 exec, vcc")
    g(f"s_cmp_lt_u32 s{sCNT}, {P['LIMIT']}"); g("s_cbranch_scc1 L_bp")
    g("s_mov_b64 exec, -1")
    g.label("L_bp_ok")
    stamp(8)
    for t in range(4):
        for c in range(4):
            g(f"v_mfma_f32_16x16x32_bf16 {q4(DD[c])}, {q4(AO[t])}, {q4(WOP[t][c])}, {'0' if t == 0 else q4(DD[c])}")
    for c in range(4): g(f"v_pk_add_f32 {q2(DD[c])}, {q2(DD[c])}, {q2(DD[c]+2)}")
    for c in range(4): g(f"v_add_f32 v{vACC+c}, v{DD[c]}, v{DD[c]+1}")
    g("s_mov_b32 exec_hi, 0")
    g(f"ds_write_b128 v{T[1]}, {q4(vACC)} offset:{GUL}")
    g("s_mov_b32 exec_hi, -1")
    g(f"s_cmp_ge_u32 s{sW}, {P['NRW']}")
    g.lgk(0)
    stamp_flush()
    g("s_barrier")
    g("s_cbranch_scc1 L_fin")
    for n in range(4):
        g(f"ds_read_b128 {q4(SR[n])}, v{vOBR} offset:{GUL+512*n}")
    sum8(SR)
    for k in range(R_ // P['NRW']):
        g(f"buffer_store_dwordx2 {q2(vA0)}, v{T[2]}, {WS}, s72 offen sc1")
        if k < R_ // P['NRW'] - 1:
            g("s_add_u32 s72, s72, 18432")
    stamp(10); stamp_flush()
    g("s_branch L_fin")

    role_begin("L_ffn")
    g(f"""
    s_mov_b32 s36, s16
    s_mov_b32 s37, s17
    s_mov_b32 s38, {576*9216}
    s_mov_b32 s39, 0x20000
    s_mov_b32 s40, s18
    s_mov_b32 s41, s19
    s_mov_b32 s42, {576*9216}
    s_mov_b32 s43, 0x20000
    s_mov_b32 s44, s20
    s_mov_b32 s45, s21
    s_mov_b32 s46, {4608*1152}
    s_mov_b32 s47, 0x20000
    s_lshl_b32 s76, s{sR}, 7
    s_mul_i32 s70, s{sW}, {64*9216}
    s_add_u32 s70, s70, s76
    s_mul_i32 s71, s{sW}, {32*9216}
    s_add_u32 s71, s71, s76
    s_add_u32 s71, s71, {512*9216}
    s_mul_i32 s72, s{sR}, {64*1152}
    s_lshl_b32 s76, s{sW}, 7
    s_add_u32 s88, s72, 1024
    s_add_u32 s72, s72, s76
    v_mul_u32_u24 v{vX}, {8*9216}, v{vG}
    v_lshl_add_u32 v{vX}, v{vJ}, 3, v{vX}
    v_mul_u32_u24 v{vW}, 9216, v{vG}
    v_lshl_add_u32 v{vW}, v{vJ}, 3, v{vW}
    """)
    EX = {}
    g(f"s_cmp_gt_u32 s{sW}, 2"); g("s_cbranch_scc1 L_ex_done")
    g(f"s_cmp_eq_u32 s{sW}, 2"); g("s_cbranch_scc1 L_ex_d")
    dense(EX, 0, vX, W1, 71, 0, 9216, P['pol'])
    dense(EX, 1, vX, W2, 71, 0, 9216, P['pol'])
    g("s_branch L_ex_done")
    g.label("L_ex_d")
    pool[:] = POOL; g.vm_issued = 0; aux.clear()
    dense(EX, 0, vW, W3, 88, 0, 1152, P['pol'])
    dense(EX, 1, vW, W3, 88, 32 * 1152, 1152, P['pol'])
    g.label("L_ex_done")
    GU = {}
    for s in range(2):
        dense(GU, (0, s), vX, W1, 70, s * 32 * 9216, 9216, P['pol'])
        dense(GU, (1, s), vX, W2, 70, s * 32 * 9216, 9216, P['pol'])
    dense(GU, ('d', 0), vW, W3, 72, 0, 1152, P['pol'])
    vH, vE, vSTa, vRd, vRs, vSQ, vAW, vAR, vDS, vXa = T[0:10]
    g(f"""
    s_mov_b32 s56, s4
    s_mov_b32 s57, s5
    s_mov_b32 s58, 2304
    s_mov_b32 s59, 0x20000
    v_bfe_u32 v{T[10]}, v{vJ}, 1, 2
    v_lshl_add_u32 v{T[11]}, v{T[10]}, 2, v{vG}
    s_lshl_b32 s76, s{sW}, 3
    v_add_u32 v{T[12]}, s76, v{T[11]}
    s_lshl_b32 s76, s{sW}, 2
    s_add_u32 s76, s76, 64
    v_add_u32 v{T[13]}, s76, v{vG}
    v_cmp_eq_u32 vcc, 2, v{T[10]}
    v_cndmask_b32 v{T[12]}, v{T[12]}, v{T[13]}, vcc
    v_lshlrev_b32 v{T[12]}, 4, v{T[12]}
    v_and_b32 v{T[13]}, 1, v{vJ}
    v_mul_u32_u24 v{T[13]}, 1152, v{T[13]}
    v_add_u32 v{vXa}, v{T[12]}, v{T[13]}
    v_lshrrev_b32 v{T[13]}, 3, v{vJ}
    v_mul_u32_u24 v{T[13]}, 4608, v{T[13]}
    v_add_u32 v{vH}, v{vXa}, v{T[13]}
    s_cmp_lt_u32 s{sW}, 2
    s_cselect_b32 s76, 3, 2
    v_bfrev_b32 v{T[13]}, 1
    v_cmp_gt_u32 vcc, s76, v{T[10]}
    v_cndmask_b32 v{vH}, v{T[13]}, v{vH}, vcc
    v_cndmask_b32 v{vXa}, v{T[13]}, v{vXa}, vcc
    s_and_b32 s89, s{sR}, {R_-1}
    s_mul_i32 s89, s89, 18432
    s_add_u32 s89, s89, {YP}
    s_add_u32 s90, s89, 9216
    s_lshr_b32 s76, s{sW}, 2
    s_lshl_b32 s77, s76, 12
    s_lshl_b32 s76, s76, 10
    s_and_b32 s{sCNT}, s{sW}, 3
    s_lshl_b32 s{sCNT}, s{sCNT}, 2
    s_add_u32 s77, s77, s{sCNT}
    s_add_u32 s76, s76, s{sCNT}
    v_lshlrev_b32 v{vRd}, 4, v{vL}
    v_add_u32 v{vE}, s77, v{vRd}
    v_add_u32 v{vSTa}, s76, v{vRd}
    s_lshl_b32 s76, s{sW}, 10
    v_add_u32 v{vRd}, s76, v{vRd}
    s_mul_i32 s76, s{sW}, 528
    v_mov_b32 v{vSQ}, s76
    s_lshl_b32 s76, s{sW}, 4
    v_mov_b32 v{vRs}, s76
    v_lshlrev_b32 v{vAW}, 3, v{vJ}
    v_lshl_add_u32 v{vAW}, v{vG}, 1, v{vAW}
    s_lshl_b32 s76, s{sW}, 7
    v_add_u32 v{vAW}, s76, v{vAW}
    v_and_b32 v{vAR}, 1, v{vJ}
    v_lshlrev_b32 v{vAR}, 7, v{vAR}
    v_lshl_add_u32 v{vAR}, v{vG}, 4, v{vAR}
    v_lshlrev_b32 v{vDS}, 3, v{vL}
    s_mul_i32 s28, s{sR}, 4608
    s_add_u32 s28, s28, {DB}
    s_add_u32 s29, s28, 4096
    s_lshl_b32 s76, s{sW}, 9
    s_add_u32 s28, s28, s76
    """)
    XH = vQ
    g.vm(f"buffer_load_dwordx4 {q4(XH)}, v{vXa}, {XS}, 0 offen")
    AS = [vA0, vA1, vACC]
    for s in range(3):
        for r in range(4):
            g(f"v_mov_b32 v{AS[s]+r}, s{sONE}")
    dense(GU, ('d', 1), vW, W3, 72, 32 * 1152, 1152, P['pol'])
    run_aux(True)
    E = [[pool.pop(0) for _ in range(4)] for _ in range(2)]
    STq = pool.pop(0)
    XF = [pool.pop(0), pool.pop(0)]
    for r in range(4):
        g(f"v_lshlrev_b32 v{XF[r>>1]+2*(r&1)}, 16, v{XH+r}")
        g(f"v_and_b32 v{XF[r>>1]+2*(r&1)+1}, 0xffff0000, v{XH+r}")
    def gu_mfma(tag, stats, pre=None):
        def step(s, W):
            for m in range(2):
                for c in range(4):
                    g(f"v_mfma_f32_16x16x32_bf16 {q4(E[m][c])}, {q4(AS[s])}, {q4(W[m][c])}, {'0' if s == 0 else q4(E[m][c])}")
                    if pre and m == 0 and c == 0 and s < 2: pre(s + 1)
            if stats:
                g(f"v_mfma_f32_16x16x32_bf16 {q4(STq)}, {q4(AS[s])}, {q4(AS[s])}, {'0' if s == 0 else q4(STq)}")
        if pre: pre(0)
        step(0, [GU[(0, 0)], GU[(1, 0)]])
        step(1, [GU[(0, 1)], GU[(1, 1)]])
        g(f"s_cmp_ge_u32 s{sW}, 2"); g.emit(f"s_cbranch_scc1 L_gu2{tag}")
        step(2, [EX[0], EX[1]])
        g.flush()
        g.label(f"L_gu2{tag}")
        g("s_mov_b64 exec, 0xffff")
        for m in range(2):
            for c in range(4):
                g(f"ds_write2st64_b32 v{vE}, v{E[m][c]}, v{E[m][c]+1} offset0:{(GUL>>8) + 8*m + c} offset1:{(GUL>>8) + 8*m + 4 + c}")
        if stats:
            g("s_mov_b32 exec_lo, -1")
            g(f"ds_write2st64_b32 v{vSTa}, v{STq}, v{STq+1} offset0:{STB>>8} offset1:{(STB>>8)+2}")
        g("s_mov_b64 exec, -1")
        g(f"s_cmp_ge_u32 s{sW}, 2")
        g.lgk(0)
        g("s_barrier")
    G4, G5, U4, U5, SQ, SQ2, SM, SM2 = E[0] + E[1]
    CG, CU = T[10], T[11]
    def sum8b(r, r2, d):
        g(f"v_pk_add_f32 {q2(r)}, {q2(r)}, {q2(r2)}")
        g(f"v_pk_add_f32 {q2(r+2)}, {q2(r+2)}, {q2(r2+2)}")
        g(f"v_pk_add_f32 {q2(r)}, {q2(r)}, {q2(r+2)}")
        g(f"v_add_f32 v{d}, v{r}, v{r+1}")
    def rd_gu():
        g(f"ds_read_b128 {q4(G4)}, v{vRd} offset:{GUL}")
        g(f"ds_read_b128 {q4(G5)}, v{vRd} offset:{GUL+4096}")
        g(f"ds_read_b128 {q4(U4)}, v{vRd} offset:{GUL+2048}")
        g(f"ds_read_b128 {q4(U5)}, v{vRd} offset:{GUL+6144}")
    gu_mfma('c', False)
    g("s_cbranch_scc1 L_cs_done")
    rd_gu()
    g.lgk(0)
    sum8b(G4, G5, CG); sum8b(U4, U5, CU)
    g.flush()
    g.label("L_cs_done")
    g("s_barrier")
    stamp(7)
    HL = [pool.pop(0) for _ in range(4)]
    H0, H1 = pool.pop(0), pool.pop(0)
    H = vS
    g(f"s_mov_b32 s{sCNT}, 0")
    g.label("L_hp")
    g(f"buffer_load_dwordx4 {q4(HL[0])}, v{vH}, {WS}, s89 offen sc1")
    g(f"buffer_load_dwordx4 {q4(HL[1])}, v{vH}, {WS}, s90 offen sc1")
    g(f"buffer_load_dwordx4 {q4(HL[2])}, v{vH}, {WS}, s89 offen offset:2304 sc1")
    g(f"buffer_load_dwordx4 {q4(HL[3])}, v{vH}, {WS}, s90 offen offset:2304 sc1")
    g("s_mov_b64 exec, -1")
    g("s_waitcnt vmcnt(2)")
    g(f"v_pk_add_f32 {q2(H0)}, {q2(HL[0])}, {q2(HL[1])}")
    g(f"v_pk_add_f32 {q2(H0+2)}, {q2(HL[0]+2)}, {q2(HL[1]+2)}")
    g("s_waitcnt vmcnt(0)")
    g(f"v_pk_add_f32 {q2(H1)}, {q2(HL[2])}, {q2(HL[3])}")
    g(f"v_pk_add_f32 {q2(H1+2)}, {q2(HL[2]+2)}, {q2(HL[3]+2)}")
    g(f"v_pk_add_f32 {q2(T[12])}, {q2(H0)}, {q2(H0+2)}")
    g(f"v_pk_add_f32 {q2(T[14])}, {q2(H1)}, {q2(H1+2)}")
    for r in range(4): g(f"v_add_f32_dpp v{H0+r}, v{H0+r}, v{H0+r} row_ror:8 row_mask:0xf bank_mask:0xf")
    g(f"v_pk_add_f32 {q2(T[12])}, {q2(T[12])}, {q2(T[14])}")
    for r in range(4): g(f"v_add_f32_dpp v{H1+r}, v{H1+r}, v{H1+r} row_ror:8 row_mask:0xf bank_mask:0xf")
    g(f"v_cmp_u_f32 vcc, v{T[12]}, v{T[13]}")
    g(f"s_add_u32 s{sCNT}, s{sCNT}, 1")
    g("s_cbranch_vccz L_hp_ok")
    if P['hsleep']: g(f"s_sleep {P['hsleep']}")
    g("s_mov_b64 exec, vcc")
    g(f"s_cmp_lt_u32 s{sCNT}, {P['LIMIT']}"); g("s_cbranch_scc1 L_hp")
    g("s_mov_b64 exec, -1")
    g.label("L_hp_ok")
    stamp(8)
    HH = [H0, H1]
    for r in range(4): g(f"v_cvt_pk_bf16_f32 v{H+r}, v{HH[r>>1]+2*(r&1)}, v{HH[r>>1]+2*(r&1)+1}")
    for r in range(4):
        g(f"v_lshlrev_b32 v{HH[r>>1]+2*(r&1)}, 16, v{H+r}")
        g(f"v_and_b32 v{HH[r>>1]+2*(r&1)+1}, 0xffff0000, v{H+r}")
    for r in range(4): g(f"v_pk_add_f32 {q2(HH[r>>1]+2*(r&1))}, {q2(HH[r>>1]+2*(r&1))}, {q2(XF[r>>1]+2*(r&1))}")
    for r in range(4): g(f"v_cvt_pk_bf16_f32 v{H+r}, v{HH[r>>1]+2*(r&1)}, v{HH[r>>1]+2*(r&1)+1}")
    def amov(s):
        for r in range(4):
            ctl = "quad_perm:[0,1,2,3]" if s == 0 else f"row_shl:{2*s}"
            g(f"v_mov_b32_dpp v{AS[s]+r}, v{H+r} {ctl} row_mask:0xf bank_mask:0x1")
    gu_mfma('m', True, amov)
    g("s_cbranch_scc1 L_act_done")
    g(f"ds_read_b128 {q4(SQ)}, v{vSQ} offset:{STB}")
    g(f"ds_read_b128 {q4(SQ2)}, v{vSQ} offset:{STB+1024}")
    g(f"ds_read_b128 {q4(SM)}, v{vRs} offset:{STB+256}")
    g(f"ds_read_b128 {q4(SM2)}, v{vRs} offset:{STB+1024+256}")
    rd_gu()
    g.lgk(4)
    sum8b(SQ, SQ2, SQ); sum8b(SM, SM2, SM)
    ln_scalars(SM, SQ, SQ + 1)
    g.lgk(0)
    sum8b(G4, G5, G4); sum8b(U4, U5, U4)
    g(f"v_fma_f32 v{G4}, -v{SM}, v{CG}, v{G4}")
    g(f"v_fma_f32 v{U4}, -v{SM}, v{CU}, v{U4}")
    g(f"v_mul_f32 v{G4}, v{G4}, v{SQ}")
    g(f"v_mul_f32 v{U4}, v{U4}, v{SQ}")
    bf16r(G4, G4); bf16r(U4, U4)
    k1 = -2 * math.sqrt(2 / math.pi) * math.log2(math.e)
    k3 = k1 * 0.044715
    t = G5
    g(f"v_mul_f32 v{t}, v{G4}, v{G4}")
    g(f"v_mov_b32 v{t+1}, {f2h(k1)}")
    g(f"v_fmac_f32 v{t+1}, {f2h(k3)}, v{t}")
    g(f"v_mul_f32 v{t}, v{t+1}, v{G4}")
    g(f"v_exp_f32 v{t}, v{t}")
    g(f"v_add_f32 v{t}, 1.0, v{t}")
    g(f"v_rcp_f32 v{t}, v{t}")
    g(f"v_mul_f32 v{t}, v{t}, v{G4}")
    bf16r(t, t)
    g(f"v_mul_f32 v{t}, v{t}, v{U4}")
    g(f"v_cvt_pk_bf16_f32 v{t}, v{t}, v{t}")
    g(f"ds_write_b16 v{vAW}, v{t} offset:{ACT}")
    g.lgk(0)
    g.label("L_act_done")
    g("s_barrier")
    stamp(9)
    g(f"ds_read_b128 {q4(vA0)}, v{vAR} offset:{ACT}")
    g(f"ds_read_b128 {q4(vA1)}, v{vAR} offset:{ACT+64}")
    def down(F, W0_, W1_, so, first):
        for s, Wd in enumerate((W0_, W1_)):
            if first: g.lgk(1 - s)
            for c in range(4):
                g(f"v_mfma_f32_16x16x32_bf16 {q4(F[c])}, {q4(AS[s])}, {q4(Wd[c])}, {'0' if s == 0 else q4(F[c])}")
    def down_fin(F, so):
        for c in range(1, 4):
            for r in range(2):
                g(f"v_mov_b32_dpp v{F[0]+r}, v{F[c]+r} quad_perm:[0,1,2,3] row_mask:{1<<c:#x} bank_mask:0xf")
        g(f"buffer_store_dwordx2 {q2(F[0])}, v{vDS}, {WS}, s{so} offen sc1")
    g(f"s_cmp_eq_u32 s{sW}, 2"); g("s_cbranch_scc1 L_dn2")
    down(E[0], GU[('d', 0)], GU[('d', 1)], 28, True)
    down_fin(E[0], 28)
    sv = nst[0]
    stamp(10); stamp_flush()
    g("s_branch L_fin")
    g.label("L_dn2")
    nst[0] = sv
    down(E[0], GU[('d', 0)], GU[('d', 1)], 28, True)
    down(E[1], EX[0], EX[1], 29, False)
    down_fin(E[0], 28)
    down_fin(E[1], 29)
    stamp(10); stamp_flush()
    g.label("L_fin")
    stamp_end()
    g("s_endpgm")
    g.label("L_end")
    g("s_endpgm")

    tail = ['.section .rodata,"a"', ".p2align 6", f".amdhsa_kernel {KN}",
            "  .amdhsa_next_free_vgpr 256", "  .amdhsa_next_free_sgpr 102", "  .amdhsa_accum_offset 256",
            "  .amdhsa_group_segment_fixed_size 0", "  .amdhsa_kernarg_size 96", "  .amdhsa_user_sgpr_count 2",
            "  .amdhsa_user_sgpr_kernarg_segment_ptr 1", "  .amdhsa_system_sgpr_workgroup_id_x 1", ".end_amdhsa_kernel"]
    if P['stamps']:
        hdr.insert(1, "; PROG " + ",".join(str(v) for v in prog))
        hdr.insert(1, "; ORDER " + P['order'])
    return "\n".join(hdr) + "\n" + g.text() + "\n".join(tail) + "\n"


if __name__ == "__main__":
    out = sys.argv[1]
    kw = {}
    for a in sys.argv[2:]:
        k, v = a.split('=')
        try:
            v = int(v)
        except ValueError:
            try:
                v = float(v)
            except ValueError:
                pass
        kw[k] = v
    open(out, 'w').write(gen(**kw))
```

```python
import sys, os, struct, math
sys.path.insert(0, os.path.dirname(os.path.abspath(__file__)))
from asmlib import Gen

KN = "sequential_preLN__mha_block_cached__glu_gated_geglu__decode_kernel"

EPW = 0
RK = 16384
RKS = 4352
RK1 = RK + 2048
LSX = 8192
ORW = 64 << 10
YP = 128 << 10
DB = 448 << 10
QP = 1152 << 10
WSN = 2 << 20
QS = 0
MLS = 256
FAC = 320
ISS = 352
CNT = 356
ROLE = 360
PCT = 364
THR = 368
WF = 372
OB = 512
GUL = 4608
STB = 13824
ACT = 14336
WL = 16384
WD = WL + 72 * 1024
LDS_BYTES = WD + 36 * 1024

DEF = dict(rot=5, L0=28, D=3, frac=0, fr8=16, I0=0, I1=0, bud=40, FX=60, trig=127, trigb=127, tcnt=8, Dw1=32, Dw2=60, pre3=0, preb=0, pref=0, Dp=2,
           stamps=0, prog=0, pol="nt", polq="nt", warm=1, LIMIT=20000, qsleep=20, prio=1, exp=0, dbl=0, r1sleep=8, ps1=0, ps2=0, ps3=0,
           ctl=0, cth=3, csl=32, NRW=8, rsel=1, padto=0, asl=40, isl=8, tw=0, twb=0, tlb=0, polg=None, pst='sc1', sdel=0, S0=116, NQ=24, qd=0, qg=4, prot=0, B1=16, NREP=8, C1=0, R1=60, kw=51, kn=26, dead=20, XW=1, csl1=8, dyn=1, bfirst=0, slowf=1, rsl=8,
           pd1=1, pd2=1, pd3=2, pg=10, se=0, Dse=8, coop=0, Dc=60, polc='nt', tk=0, S1=90, wk=1, NW1=1, bp=1, bN=12, mp=0, polm='def', lw=0, lx=1, r2d=0, fo=0, fN=16, yh=1, fE=1, lk=0, lw2=0, LS=30, LA=0, lc=4, lb=0, lm=12, wx=0, wx2=0, eb=0, ex=0, sp=0, spa=0, sd=0, sds=128, sdo=0, mpp=0, mpo=384, wso=0)


def q4(b): return f"v[{b}:{b+3}]"
def q2(b): return f"v[{b}:{b+1}]"
f2h = lambda f: "0x%08x" % struct.unpack('<I', struct.pack('<f', f))[0]


def gen(**kw):
    P = dict(DEF); P.update(kw)
    g = Gen()
    YH = P['yh']
    if YH: P['NREP'] = YH
    YR_ = 18432 if YH else 36864
    L0 = P['L0']; D = P['D']; LIM = P['LIMIT']
    SENT = '; ' if P['exp'] & 16 else ''
    P['pst'] = P['pst'].replace('+', ' ')
    POLG = P['pol'] if P['polg'] is None else ('' if P['polg'] == 'def' else P['polg'])
    hdr = []
    hdr.append(f"; @launch grid=(256,1,1) block=(576,1,1) lds={163840 if P['qd'] or P.get('bigl') else LDS_BYTES}")
    hdr.append('.amdgcn_target "amdgcn-amd-amdhsa--gfx950"')
    hdr += [".text", f".globl {KN}", ".p2align 8", f".type {KN},@function", f"{KN}:"]

    vL, vG, vJ, vK, vZ, vM, vST, vCNT = 1, 2, 3, 4, 5, 6, 10, 11
    vQ, vS, vACC, vA0, vA1 = 12, 16, 20, 24, 28
    T = list(range(32, 44))
    vMW, vFAC = T[8], T[10]
    POOL = list(range(44, 168, 4))
    pool = list(POOL)
    KS, VS, W1, W2, W3, _u, WS, XS, OUT = [f"s[{a}:{a+3}]" for a in range(28, 64, 4)]
    sW, sC, sB, sH, sI, sX = 64, 65, 66, 67, 68, 69
    sKo, sN, sQo, sTo, sR, sE = 70, 71, 72, 73, 74, 75
    sSt, sK = 78, 79
    sMK = {1: "s[80:81]", 2: "s[82:83]", 3: "s[84:85]"}
    sONE, sCNT = 86, 87
    sINV = 91
    sRo, sU, sXb = 100, 101, 90
    sTG, sFF = 75, 74

    nst = [0]
    def stamp(k):
        if not P['stamps']:
            return
        g.lgk(0)
        if nst[0]:
            g(f"v_writelane_b32 v{vST}, s92, {nst[0]-1}")
        g("s_memrealtime s[92:93]")
        nst[0] = k + 1
    def stamp_flush():
        if P['stamps'] and nst[0]:
            g.lgk(0)
            g(f"v_writelane_b32 v{vST}, s92, {nst[0]-1}")
            nst[0] = 0
    def stamp_end():
        if not P['stamps']:
            return
        stamp(15)
        stamp_flush()
        g(f"s_add_u32 s96, s{sRo}, 1"); g(f"v_writelane_b32 v{vST}, s96, 14")
        g(f"s_sub_u32 s94, s26, {P['wso']<<20}"); g("s_subb_u32 s95, s27, 0"); g(f"s_add_u32 s94, s94, {260<<20}"); g("s_addc_u32 s95, s95, 0")
        g(f"s_mul_i32 s96, s2, 9"); g(f"s_add_u32 s96, s96, s{sW}"); g("s_lshl_b32 s96, s96, 8")
        g(f"v_lshlrev_b32 v{T[0]}, 2, v{vL}"); g(f"v_add_u32 v{T[0]}, s96, v{T[0]}")
        g(f"global_store_dword v{T[0]}, v{vST}, s[94:95]")

    def bf16r(d, s):
        g(f"v_cvt_pk_bf16_f32 v{d}, v{s}, v{s}")
        g(f"v_and_b32 v{d}, 0xffff0000, v{d}")

    def allred(op, regs, tmps, rows=4):
        for sh in (8, 4, 2, 1):
            for r in regs:
                g(f"{op}_dpp v{r}, v{r}, v{r} row_ror:{sh} row_mask:0xf bank_mask:0xf")
        for sw in (("16", "32") if rows == 4 else ("16",)):
            for r, t in zip(regs, tmps):
                g(f"v_mov_b32 v{t}, v{r}")
            for r, t in zip(regs, tmps):
                g(f"v_permlane{sw}_swap_b32 v{r}, v{t}")
            for r, t in zip(regs, tmps):
                g(f"{op} v{r}, v{r}, v{t}")

    def ln_ops(sm, sq, t):
        r = lambda d: [f"v_cvt_pk_bf16_f32 v{d}, v{d}, v{d}", f"v_and_b32 v{d}, 0xffff0000, v{d}"]
        return ([f"v_mul_f32 v{sm}, s{sINV}, v{sm}", f"v_mul_f32 v{t}, v{sm}, v{sm}", f"v_fma_f32 v{sq}, v{sq}, s{sINV}, -v{t}",
                 f"v_max_f32 v{sq}, 0, v{sq}"] + r(sq) + [f"v_add_f32 v{sq}, 0x3727c5ac, v{sq}"] + r(sq) + [f"v_sqrt_f32 v{sq}, v{sq}"] + r(sm) + r(sq)
                + [f"v_rcp_f32 v{sq}, v{sq}"])

    def untracked(text):
        g.emit(text); g.vm_issued -= 1

    def srd(base, lo, hi, n):
        g(f"s_mov_b32 s{base}, s{lo}"); g(f"s_mov_b32 s{base+1}, s{hi}"); g(f"s_mov_b32 s{base+2}, {n}"); g(f"s_mov_b32 s{base+3}, 0x20000")

    def spin_tail(lab, n, sl=0):
        if sl: g(f"s_sleep {sl}")
        g(f"s_add_u32 s{sCNT}, s{sCNT}, 1")
        g(f"s_cmp_lt_u32 s{sCNT}, {n}"); g(f"s_cbranch_scc1 {lab}")

    def lds_inc(off, val=1):
        g(f"v_mov_b32 v{vCNT}, {val}")
        g("s_mov_b64 exec, 1")
        g(f"ds_add_u32 v{vZ}, v{vCNT} offset:{off}")
        g("s_mov_b64 exec, -1")

    def new_path(label):
        g.flush()
        g.label(label)
        g.hist = []
        g.vm_issued = 0; g.vm_done = 0

    g("s_cmp_ge_u32 s2, 256"); g("s_cbranch_scc1 L_end")
    g("s_load_dwordx16 s[4:19], s[0:1], 0")
    g("s_load_dwordx8 s[20:27], s[0:1], 64")
    if P['padto']:
        g("s_memrealtime s[94:95]")
    if P['stamps']:
        g("s_memrealtime s[92:93]"); nst[0] = 1
        g(f"v_mov_b32 v{vST}, 0"); g(f"s_mov_b32 s{sRo}, 300")
    g(f"""
    v_lshrrev_b32 v{T[0]}, 6, v0
    v_and_b32 v{vL}, 63, v0
    s_and_b32 s{sX}, s2, 7
    v_readfirstlane_b32 s{sW}, v{T[0]}
    s_lshr_b32 s{sI}, s2, 3
    s_lshr_b32 s{sB}, s{sI}, 4
    s_and_b32 s76, s{sI}, 15
    s_lshl_b32 s77, s{sX}, 4
    s_add_u32 s76, s76, s77
    s_lshr_b32 s{sH}, s76, 2
    s_lshl_b32 s{sC}, s{sB}, 7
    s_add_u32 s{sC}, s{sC}, s76
    v_lshlrev_b32 v{T[1]}, 4, v{vL}
    v_lshl_add_u32 v{vK}, v{T[0]}, 12, v{T[1]}
    v_lshrrev_b32 v{vG}, 4, v{vL}
    v_and_b32 v{vJ}, 15, v{vL}
    s_cmp_eq_u32 s{sW}, 8
    s_cbranch_scc1 L_help
    s_mul_i32 s{sKo}, s{sC}, {P['rot']}
    s_and_b32 s{sKo}, s{sKo}, 15
    s_lshl_b32 s{sKo}, s{sKo}, 15
    s_lshl_b32 s76, s{sC}, 19
    s_mov_b32 s30, 0x80000
    s_mov_b32 s31, 0x20000
    s_waitcnt lgkmcnt(0)
    s_add_u32 s28, s6, s76
    s_addc_u32 s29, s7, 0
    """)
    pro_nst = nst[0]

    items = {}
    def issue_kv(n, r):
        tok = g.vm(f"buffer_load_dwordx4 {q4(r)}, v{vK}, {KS if n < 64 else VS}, s{sKo} offen offset:{(n&3)*1024} nt")
        if n & 3 == 3 and n != 127:
            g(f"s_add_u32 s{sKo}, s{sKo}, 0x8000"); g(f"s_and_b32 s{sKo}, s{sKo}, 0x7ffff")
        items[n] = (tok, r)
    def win(n):
        if n < P['I1']: return P['I0']
        if n >= 128 - P['eb']: return D + P['ex']
        return D + (1 if (n % P['fr8']) < P['frac'] else 0)

    def masks():
        g(f"""
        v_and_b32 v{T[5]}, 1, v{vL}
        v_lshlrev_b32 v{T[5]}, 4, v{T[5]}
        v_mov_b32 v{T[7]}, 0xffff
        v_lshlrev_b32 v{T[5]}, v{T[5]}, v{T[7]}
        v_bfe_u32 v{T[7]}, v{vL}, 1, 2
        """)
        for r in range(4):
            g(f"v_cmp_eq_u32 vcc, {r}, v{T[7]}")
            g(f"v_cndmask_b32 v{vM+r}, 0, v{T[5]}, vcc")
        g(f"""
        s_mov_b32 s{sONE}, 0x3f803f80
        s_mov_b32 s{sINV}, {f2h(1.0/576)}
        v_mov_b32 v{vZ}, 0
        """)

    nxt = 0
    for _ in range(win(0) if P['I1'] else D):
        issue_kv(nxt, POOL[nxt]); nxt += 1
    g(f"""
    s_add_u32 s32, s8, s76
    s_addc_u32 s33, s9, 0
    s_mov_b32 s34, 0x80000
    s_mov_b32 s35, 0x20000
    s_mov_b32 s80, 0x22222222
    s_mov_b32 s81, 0x22222222
    s_mov_b32 s82, 0x44444444
    s_mov_b32 s83, 0x44444444
    s_mov_b32 s84, 0x88888888
    s_mov_b32 s85, 0x88888888
    """)
    if P['wso']:
        g(f"s_add_u32 s26, s26, {P['wso']<<20}"); g("s_addc_u32 s27, s27, 0")
    srd(52, 26, 27, WSN)
    masks()
    if P['warm']:
        g(f"""
        s_and_b32 s76, s{sI}, 7
        s_lshl_b32 s76, s76, 3
        s_add_u32 s76, s76, s{sW}
        s_lshl_b32 s76, s76, 10
        v_and_b32 v{T[0]}, 7, v{vL}
        v_lshl_add_u32 v{T[0]}, v{T[0]}, 7, s76
        v_min_u32 v{T[0]}, L_end-{KN}-64, v{T[0]}
        s_getpc_b64 s[76:77]
        """)
        g.label("L_warm")
        g(f"s_sub_u32 s76, s76, L_warm-{KN}"); g("s_subb_u32 s77, s77, 0")
        g.vm(f"global_load_dword v{T[0]}, v{T[0]}, s[76:77]")
    g("s_barrier")
    CT = 0
    C1, R1, XW = P['C1'], P['R1'], P['XW']
    LW = P['lw']
    if LW: R1 = P['S1'] + 4; P['kn'] = 1 if P['LA'] else 0
    if C1 or LW: g("s_mov_b32 s90, -1")
    def xwin(n): return XW if (C1 or LW) and n >= R1 else 0
    def gate_issue(n, m, r):
        if xwin(n):
            cnt = lambda k: g.vm_issued - 1 - items[k][0]
            g(f"s_cmp_gt_i32 s90, {n}")
            g.raw(f"  s_cbranch_scc1 L_bo{m}")
            if m - D > n: g.raw(f"  s_waitcnt vmcnt({cnt(m - D)})")
            if P['kn']:
                g(f"s_cmp_ge_i32 s90, {-n}")
                g.raw(f"  s_cbranch_scc1 L_bo{m}")
                g.raw(f"  s_waitcnt vmcnt({cnt(m - D + 1)})")
            g.label(f"L_bo{m}")
        issue_kv(m, r)
    def ctl_step(n):
        if n == P['S0']: lds_inc(PCT, 0x10000)
        if n == P['S1']: lds_inc(PCT, 0x100)
        if C1:
            if n == C1: lds_inc(PCT, 1)
            if n == R1 - 4: lds_inc(PCT, 0x100)
        if C1 or LW:
            if n >= R1 - 2 and n < (R1 + 10 if LW else P.get('R1e', 100)):
                if n % 4 == (R1 - 2) % 4: g(f"ds_read_b32 v{T[11]}, v{vZ} offset:{THR}")
                if n % 4 == (R1 - 1) % 4:
                    g.lgk(0); g(f"v_readfirstlane_b32 s90, v{T[11]}")
    for k in range(max(P['wx'], P['wx2'])):
        g(f"s_cmp_ge_u32 s{sW}, {4 if k < P['wx'] else 6}")
        g.raw(f"  s_cbranch_scc1 L_wx{k}")
        g.raw(f"  s_waitcnt vmcnt({g.vm_issued - 1 - items[nxt - D][0]})")
        g.label(f"L_wx{k}")
        issue_kv(nxt, POOL[nxt]); nxt += 1
    step = 0
    while nxt < L0:
        g.wait(items[step][0])
        while nxt < L0 and nxt - (step + 1) < win(step) + CT:
            gate_issue(step, nxt, POOL[nxt]); nxt += 1
        ctl_step(step)
        step += 1
    merge_step = step
    pool[:] = POOL[L0:]
    g(f"v_lshlrev_b32 v{T[3]}, 4, v{vJ}")
    g(f"s_mov_b32 s{sCNT}, 0")
    g.label("L_qr")
    g(f"ds_read_b128 {q4(vQ)}, v{T[3]} offset:{QS}")
    g.lgk(0)
    g(f"v_max3_u32 v{T[4]}, v{vQ}, v{vQ+1}, v{vQ+2}")
    g(f"v_max_u32 v{T[4]}, v{T[4]}, v{vQ+3}")
    g(f"v_cmp_eq_u32 s[76:77], -1, v{T[4]}")
    g("s_cmp_eq_u64 s[76:77], 0")
    g("s_cbranch_scc1 L_qr_ok")
    spin_tail("L_qr", 20 * LIM, 2)
    g.label("L_qr_ok")
    stamp(2)

    work = []
    def kgroup(gk):
        rs = [items[4 * gk + u] for u in range(4)]
        t = T[0:4]
        for k in range(4):
            for u in range(4):
                g(f"v_dot2_f32_bf16 v{t[u]}, v{rs[u][1]+k}, v{vQ+k}, {'0' if k == 0 else 'v%d' % t[u]}")
        for u in range(4):
            pool.append(rs[u][1])
        a, b2, c = T[4], T[5], T[6]
        g(f"v_add_f32_dpp v{a}, v{t[0]}, v{t[0]} row_ror:8 row_mask:0xf bank_mask:0x3")
        g(f"v_add_f32_dpp v{b2}, v{t[2]}, v{t[2]} row_ror:8 row_mask:0xf bank_mask:0x3")
        g(f"v_add_f32_dpp v{a}, v{t[1]}, v{t[1]} row_ror:8 row_mask:0xf bank_mask:0xc")
        g(f"v_add_f32_dpp v{b2}, v{t[3]}, v{t[3]} row_ror:8 row_mask:0xf bank_mask:0xc")
        g(f"v_add_f32_dpp v{c}, v{a}, v{a} row_half_mirror row_mask:0xf bank_mask:0x5")
        g(f"v_add_f32_dpp v{c}, v{b2}, v{b2} row_half_mirror row_mask:0xf bank_mask:0xa")
        g(f"v_add_f32_dpp v{c}, v{c}, v{c} quad_perm:[1,0,3,2] row_mask:0xf bank_mask:0xf")
        lam = gk & 3
        S = vS + (gk >> 2)
        if lam == 0:
            g(f"v_add_f32_dpp v{S}, v{c}, v{c} quad_perm:[2,3,0,1] row_mask:0xf bank_mask:0xf")
        else:
            g(f"v_add_f32_dpp v{c}, v{c}, v{c} quad_perm:[2,3,0,1] row_mask:0xf bank_mask:0xf")
            g(f"v_cndmask_b32 v{S}, v{S}, v{c}, {sMK[lam]}")
        if gk == 15: stamp(3)
    def soft1():
        for r in range(4): g(f"v_cvt_pk_bf16_f32 v{vS+r}, v{vS+r}, v{vS+r}")
        for r in range(4): g(f"v_and_b32 v{vS+r}, 0xffff0000, v{vS+r}")
        for r in range(4): g(f"v_mul_f32 v{vS+r}, 0x3db504f3, v{vS+r}")
        for r in range(4): g(f"v_cvt_pk_bf16_f32 v{vS+r}, v{vS+r}, v{vS+r}")
        for r in range(4): g(f"v_and_b32 v{vS+r}, 0xffff0000, v{vS+r}")
        g(f"v_max3_f32 v{vMW}, v{vS}, v{vS+1}, v{vS+2}")
        g(f"v_max_f32 v{vMW}, v{vMW}, v{vS+3}")
        allred("v_max_f32", [vMW], [T[0]])
    def soft2():
        for r in range(4): g(f"v_sub_f32 v{vS+r}, v{vS+r}, v{vMW}")
        for r in range(4): g(f"v_mul_f32 v{vS+r}, 0x3fb8aa3b, v{vS+r}")
        for r in range(4): g(f"v_exp_f32 v{vS+r}, v{vS+r}")
        g(f"v_mul_f32 v{vMW}, 0x3fb8aa3b, v{vMW}")
        g(f"v_add_f32 v{vMW+1}, v{vS}, v{vS+1}")
        g(f"v_add_f32 v{T[1]}, v{vS+2}, v{vS+3}")
        g(f"v_add_f32 v{vMW+1}, v{vMW+1}, v{T[1]}")
        for r in range(4): g(f"v_cvt_pk_bf16_f32 v{vS+r}, v{vS+r}, v{vS+r}")
        allred("v_add_f32", [vMW + 1], [T[0]])
        g(f"s_lshl_b32 s76, s{sW}, 3"); g(f"v_mov_b32 v{T[1]}, s76")
        g("s_mov_b64 exec, 1")
        g(f"ds_write_b64 v{T[1]}, {q2(vMW)} offset:{MLS}")
        g("s_mov_b64 exec, -1")
    beta = {0: 0, 1: 2, 2: 1, 3: 3}
    def vprep(n):
        A = vA0 if n & 1 == 0 else vA1
        j = 4 * beta[n & 3] + ((n >> 2) & 3)
        for r in range(4):
            g(f"v_and_b32_dpp v{A+r}, v{vS+(n>>4)}, v{vM+r} row_newbcast:{j} row_mask:0xf bank_mask:0xf")
    def vitem(n):
        A = vA0 if n & 1 == 0 else vA1
        r = items[64 + n][1]
        g(f"v_mfma_f32_16x16x32_bf16 {q4(vACC)}, {q4(A)}, {q4(r)}, {'0' if n == 0 else q4(vACC)}")
        pool.append(r)
        if n < 63: vprep(n + 1)
    vOBW, vOBR, vOST, vFA = T[4], T[5], T[6], T[7]
    sFV = "s[48:49]"
    def addrs():
        g(f"""
        v_lshlrev_b32 v{vOBW}, 5, v{vJ}
        v_lshl_add_u32 v{vOBW}, v{vG}, 4, v{vOBW}
        s_lshl_b32 s76, s{sW}, 9
        v_add_u32 v{vOBW}, s76, v{vOBW}
        v_and_b32 v{vOBR}, 31, v{vL}
        v_lshrrev_b32 v{T[0]}, 5, v{vL}
        v_lshlrev_b32 v{vOST}, 3, v{vOBR}
        v_lshl_add_u32 v{vOST}, v{T[0]}, 2, v{vOST}
        v_lshlrev_b32 v{vOBR}, 4, v{vOBR}
        v_lshl_add_u32 v{vOBR}, v{T[0]}, 11, v{vOBR}
        s_lshl_b32 s{sTo}, s{sC}, 8
        s_add_u32 s{sTo}, s{sTo}, {ORW}
        s_lshl_b32 s76, s{sW}, 2
        v_mov_b32 v{vFA}, s76
        """)
    def rdfac():
        g(f"ds_read_b32 v{vFAC}, v{vFA} offset:{FAC}")
        g.lgk(0)
        g(f"v_cmp_u_f32 {sFV}, v{vFAC}, v{vFAC}")
    for gk in range(16): work.append((4 * gk + 3, 30, (lambda k: lambda: kgroup(k))(gk)))
    work.append((63, 36, soft1)); work.append((63, 36, soft2)); work.append((63, 4, lambda: vprep(0)))
    for n in range(64): work.append((64 + n, 8, (lambda k: lambda: vitem(k))(n)))
    for n in range(merge_step, 128):
        g.wait(items[n][0])
        fl = []
        while nxt < 128 and nxt - (n + 1) < win(n) + xwin(n) and pool:
            gate_issue(n, nxt, pool.pop(0))
            if nxt == P['trig']: fl.append(1)
            if nxt == P['trigb'] and P['trigb'] != P['trig']: fl.append(256)
            nxt += 1
        assert nxt > n + 1 or n == 127
        used = 0
        while work and work[0][0] <= n and (used + work[0][1] <= P['bud'] or used == 0 or n >= 120):
            w = work.pop(0); used += w[1]; w[2]()
        for v in fl: lds_inc(ISS, v if P['trigb'] != P['trig'] else 257)
        if n == 104: addrs()
        if n == 64 + P['FX']: rdfac()
        if n == 126: g(f"v_mov_b32 v{vCNT}, 1")
        if n < 126: ctl_step(n)
    assert not work
    stamp(5)
    def sum8(regs):
        g.lgk(2)
        g(f"v_pk_add_f32 {q2(regs[0])}, {q2(regs[0])}, {q2(regs[1])}")
        g(f"v_pk_add_f32 {q2(regs[0]+2)}, {q2(regs[0]+2)}, {q2(regs[1]+2)}")
        g.lgk(0)
        g(f"v_pk_add_f32 {q2(regs[2])}, {q2(regs[2])}, {q2(regs[3])}")
        g(f"v_pk_add_f32 {q2(regs[2]+2)}, {q2(regs[2]+2)}, {q2(regs[3]+2)}")
        g(f"v_pk_add_f32 {q2(regs[0])}, {q2(regs[0])}, {q2(regs[2])}")
        g(f"v_pk_add_f32 {q2(regs[0]+2)}, {q2(regs[0]+2)}, {q2(regs[2]+2)}")
        g(f"v_permlane32_swap_b32 v{regs[0]}, v{regs[0]+2}")
        g(f"v_permlane32_swap_b32 v{regs[0]+1}, v{regs[0]+3}")
        g(f"v_pk_add_f32 {q2(regs[0])}, {q2(regs[0])}, {q2(regs[0]+2)}")
    SR = POOL[0:4] if items[127][1] not in POOL[0:4] else POOL[4:8]
    g(f"s_cmp_lg_u64 {sFV}, 0")
    g.raw("  s_cbranch_scc1 L_refac")
    g.label("L_fac_ok")
    g(f"v_pk_mul_f32 {q2(vACC)}, {q2(vACC)}, {q2(vFAC)} op_sel:[0,0] op_sel_hi:[1,0]")
    g(f"v_pk_mul_f32 {q2(vACC+2)}, {q2(vACC+2)}, {q2(vFAC)} op_sel:[0,0] op_sel_hi:[1,0]")
    g("s_mov_b32 exec_hi, 0")
    g(f"ds_write_b128 v{vOBW}, {q4(vACC)} offset:{OB}")
    g("s_mov_b32 exec_lo, 1")
    g(f"ds_add_rtn_u32 v{vCNT}, v{vZ}, v{vCNT} offset:{CNT}")
    g("s_mov_b64 exec, -1")
    for n in range(4):
        g(f"ds_read_b128 {q4(SR[n])}, v{vOBR} offset:{OB+512*n}")
    g.lgk(4)
    g(f"v_readfirstlane_b32 s76, v{vCNT}")
    stamp_flush()
    g("s_cmp_lg_u32 s76, 6"); g("s_cbranch_scc1 L_osum_done")
    sum8(SR)
    g(f"v_cvt_pk_bf16_f32 v{SR[0]}, v{SR[0]}, v{SR[0]+1}")
    untracked(f"buffer_store_dword v{SR[0]}, v{vOST}, {WS}, s{sTo} offen sc1")
    lds_inc(CNT)
    stamp(6); stamp_flush()
    g.label("L_osum_done")
    if P['exp'] & 8: g("s_branch L_fin")
    g(f"s_mov_b32 s{sCNT}, 0")
    g.label("L_ro")
    g(f"ds_read_b32 v{T[9]}, v{vZ} offset:{ROLE}")
    g.lgk(0)
    g(f"v_readfirstlane_b32 s{sRo}, v{T[9]}")
    g(f"s_movk_i32 s{sFF}, 0xff")
    g(f"s_lshr_b32 s{sTG}, s{sRo}, 16"); g(f"s_and_b32 s{sRo}, s{sRo}, 0xffff")
    g(f"s_cmp_lt_u32 s{sRo}, 144"); g("s_cbranch_scc1 L_ffn")
    g(f"s_cmp_lt_u32 s{sRo}, 216"); g("s_cbranch_scc1 L_stb")
    g(f"s_cmp_lt_u32 s{sRo}, 256"); g("s_cbranch_scc1 L_fin")
    spin_tail("L_ro", 20 * LIM, 2)
    g("s_branch L_fin")
    g.label("L_stb")
    g(f"s_sub_u32 s{sU}, s{sRo}, 144"); g(f"s_and_b32 s{sXb}, s{sU}, 7")

    g.lgk(0)
    g.hist = []; g.vm_issued = 0; g.vm_done = 0
    vTB = T[0:4]
    vYS, vOP, vYW = T[6], T[7], T[8]
    g(f"""
    v_lshrrev_b32 v{T[9]}, 2, v{vJ}
    v_lshl_add_u32 v{T[10]}, v{vG}, 3, v{T[9]}
    v_lshlrev_b32 v{T[10]}, 7, v{T[10]}
    v_and_b32 v{T[11]}, 3, v{vJ}
    v_lshl_add_u32 v{T[10]}, v{T[11]}, 3, v{T[10]}
    s_lshl_b32 s76, s{sW}, 13
    s_add_u32 s76, s76, {WL}
    v_add_u32 v{T[10]}, s76, v{T[10]}
    v_lshrrev_b32 v{T[9]}, 1, v{T[9]}
    v_and_b32 v{vOBW}, 1, v{vG}
    v_lshl_add_u32 v{T[9]}, v{vOBW}, 1, v{T[9]}
    """)
    for c in range(4):
        g(f"v_xor_b32 v{vTB[c]}, {c}, v{T[9]}")
    for c in range(4):
        g(f"v_lshl_add_u32 v{vTB[c]}, v{vTB[c]}, 5, v{T[10]}")
    g(f"""
    v_bfe_u32 v{vOP}, v{vJ}, 2, 1
    v_lshlrev_b32 v{vOP}, 15, v{vOP}
    v_lshl_add_u32 v{vOP}, v{T[11]}, 8, v{vOP}
    v_lshl_add_u32 v{vOP}, v{vG}, 4, v{vOP}
    s_lshl_b32 s70, s{sXb}, 2
    s_lshr_b32 s76, s{sW}, 1
    s_add_u32 s70, s70, s76
    s_lshl_b32 s70, s70, 10
    s_and_b32 s76, s{sW}, 1
    s_lshl_b32 s76, s76, 7
    s_add_u32 s70, s70, s76
    s_add_u32 s70, s70, {ORW}
    v_lshlrev_b32 v{vYW}, 8, v{vOBW}
    v_lshrrev_b32 v{T[9]}, 1, v{vG}
    v_lshl_add_u32 v{vYW}, v{T[9]}, 7, v{vYW}
    v_lshl_add_u32 v{vYW}, v{vJ}, 2, v{vYW}
    s_lshl_b32 s76, s{sW}, 9
    s_add_u32 s76, s76, {GUL}
    v_add_u32 v{vYW}, s76, v{vYW}
    v_lshlrev_b32 v{vYS}, {0 if YH else 1}, v{vOST}
    s_lshl_b32 s76, s{sU}, {8 if YH else 9}
    s_mul_i32 s72, s{sW}, {YR_}
    s_add_u32 s72, s72, s76
    s_add_u32 s72, s72, {YP}
    s_mov_b32 s{sCNT}, 0
    """)
    WO = {(t, c): POOL[4 * t + c] for t in range(2) for c in range(4)}
    AO = POOL[8:10]; DD = POOL[10:14]
    def rd_wo():
        for t in range(2):
            for c in range(4):
                for hf in range(2):
                    g(f"ds_read_b64_tr_b16 {q2(WO[t, c] + 2 * hf)}, v{vTB[c]} offset:{t*4096 + hf*512}")
    if not P['bp']:
        g("s_barrier")
        rd_wo()
    else:
        g.label("L_bs")
        g(f"ds_read_b32 v{T[9]}, v{vZ} offset:{WF}")
        g.lgk(0)
        g(f"v_readfirstlane_b32 s71, v{T[9]}")
        g("s_cmp_lg_u32 s71, -1"); g("s_cbranch_scc1 L_bs_ok")
        spin_tail("L_bs", 20 * LIM, 1)
        g.label("L_bs_ok")
        g("s_mov_b32 s71, -1"); g(f"s_mov_b32 s{sCNT}, 0")
    stamp(7)
    for _ in range(P['pd1'] - 1):
        for t in range(2):
            g(f"buffer_load_dwordx4 {q4(AO[t])}, v{vOP}, {WS}, s70 offen offset:{64*t} sc1")
        g(f"s_sleep {P['pg'] * 2 // P['pd1']}")
    g.label("L_bp")
    for t in range(2):
        g(f"buffer_load_dwordx4 {q4(AO[t])}, v{vOP}, {WS}, s70 offen offset:{64*t} sc1")
    g("s_mov_b64 exec, -1")
    if P['bp']:
        g("s_cmp_ge_i32 s71, 0"); g("s_cbranch_scc1 L_bp2")
        g(f"ds_read_b32 v{T[9]}, v{vZ} offset:{WF}")
        g.lgk(0)
        g(f"v_readfirstlane_b32 s71, v{T[9]}")
        g("s_cmp_lt_i32 s71, 0"); g("s_cbranch_scc1 L_bp2")
        rd_wo()
        g.label("L_bp2")
    g(f"s_waitcnt vmcnt({2 * (P['pd1'] - 1)})")
    g(f"v_max3_u32 v{T[9]}, v{AO[0]}, v{AO[0]+1}, v{AO[0]+2}")
    g(f"v_max3_u32 v{T[10]}, v{AO[1]}, v{AO[1]+1}, v{AO[1]+2}")
    g(f"v_max3_u32 v{T[9]}, v{T[9]}, v{AO[0]+3}, v{AO[1]+3}")
    g(f"v_max_u32 v{T[9]}, v{T[9]}, v{T[10]}")
    g(f"v_cmp_eq_u32 vcc, -1, v{T[9]}")
    g.lgk(0)
    g("s_cbranch_vccz L_bp_ok")
    g("s_mov_b64 exec, vcc")
    spin_tail("L_bp", 3 * LIM, P['ps1'])
    g("s_mov_b64 exec, -1")
    g.label("L_bp_ok")
    if P['bp']:
        stamp(9); stamp_flush()
        g("s_cmp_ge_i32 s71, 0"); g("s_cbranch_scc1 L_bw_ok")
        g(f"s_mov_b32 s{sCNT}, 0")
        g.label("L_bw")
        g(f"ds_read_b32 v{T[9]}, v{vZ} offset:{WF}")
        g.lgk(0)
        g(f"v_readfirstlane_b32 s71, v{T[9]}")
        g("s_cmp_ge_i32 s71, 0"); g("s_cbranch_scc1 L_bw1")
        spin_tail("L_bw", 20 * LIM, 1)
        g.label("L_bw1")
        rd_wo()
        g.lgk(0)
        g.label("L_bw_ok")
    stamp(8)
    for t in range(2):
        for c in range(4):
            g(f"v_mfma_f32_16x16x32_bf16 {q4(DD[c])}, {q4(AO[t])}, {q4(WO[t, c])}, {'0' if t == 0 else q4(DD[c])}")
    for c in range(4): g(f"v_pk_add_f32 {q2(DD[c])}, {q2(DD[c])}, {q2(DD[c]+2)}")
    for c in range(4):
        g(f"v_add_f32_dpp v{vACC+(c&1)}, v{DD[c]}, v{DD[c]+1} quad_perm:[0,1,2,3] row_mask:{0x3 if c < 2 else 0xc:#x} bank_mask:0xf")
    g(f"ds_write2_b32 v{vYW}, v{vACC}, v{vACC+1} offset0:0 offset1:16")
    g(f"s_cmp_ge_u32 s{sW}, {P['NREP']}")
    g(f"v_mov_b32 v{T[9]}, s{sTG}")
    g.lgk(0)
    stamp_flush()
    g("s_barrier")
    if P['NREP'] < 8: g("s_cbranch_scc1 L_fin")
    SR = [vA0, vA1, vQ, vS]
    for n in range(4):
        g(f"ds_read_b128 {q4(SR[n])}, v{vOBR} offset:{GUL+512*n}")
    sum8(SR)
    if YH:
        g(f"v_cvt_pk_f16_f32 v{vA0}, v{vA0}, v{vA0+1}")
        g(f"buffer_store_dword v{vA0}, v{vYS}, {WS}, s72 offen sc1")
    else:
        for r in range(2): g(f"v_bfi_b32 v{vA0+r}, s{sFF}, v{T[9]}, v{vA0+r}")
        g(f"buffer_store_dwordx2 {q2(vA0)}, v{vYS}, {WS}, s72 offen sc1")
    stamp(10); stamp_flush()
    g("s_branch L_fin" if P['stamps'] else "s_endpgm")

    new_path("L_ffn")
    vTG = T[0:2]
    vTD, vH, vE, vSTa, vDS, vAR, vXa = T[2:9]
    vRd, vRs, vAW = vM, vM + 1, vM + 2
    XH = T[10]
    sRep = f"s{sX}" if P['rsel'] else f"s{sI}"
    srd(56, 4, 5, 2304)
    g(f"""
    v_and_b32 v{T[9]}, 3, v{vJ}
    v_lshrrev_b32 v{T[11]}, 1, v{T[9]}
    v_lshlrev_b32 v{vXa}, 6, v{T[11]}
    v_lshl_add_u32 v{vXa}, v{vG}, 4, v{vXa}
    v_and_b32 v{T[11]}, 1, v{vJ}
    v_lshl_add_u32 v{vXa}, v{T[11]}, 3, v{vXa}
    v_lshlrev_b32 v{vH}, {0 if YH else 1}, v{vXa}
    v_lshrrev_b32 v{T[11]}, 2, v{vJ}
    v_lshl_add_u32 v{vH}, v{T[11]}, {7 if YH else 8}, v{vH}
    v_and_b32 v{vAR}, 1, v{T[11]}
    v_mul_u32_u24 v{vE}, 1152, v{vAR}
    v_add_u32 v{vXa}, v{vXa}, v{vE}
    s_lshl_b32 s76, s{sW}, 7
    """)
    txh = g.vm(f"buffer_load_dwordx2 {q2(XH)}, v{vXa}, {XS}, s76 offen")
    g(f"""
    v_lshlrev_b32 v{vAR}, 6, v{vAR}
    v_lshl_add_u32 v{vAR}, v{vG}, 4, v{vAR}
    v_lshrrev_b32 v{vE}, 2, v{vJ}
    v_lshl_add_u32 v{vTD}, v{vG}, 3, v{vE}
    v_mul_u32_u24 v{vTD}, 1152, v{vTD}
    v_lshl_add_u32 v{vTD}, v{T[9]}, 3, v{vTD}
    s_add_u32 s76, s76, {WD}
    v_add_u32 v{vTD}, s76, v{vTD}
    v_lshlrev_b32 v{vE}, 6, v{vE}
    v_lshl_add_u32 v{vE}, v{T[9]}, 3, v{vE}
    v_lshrrev_b32 v{T[9]}, 1, v{vG}
    v_lshl_add_u32 v{vE}, v{T[9]}, 11, v{vE}
    v_and_b32 v{T[9]}, 1, v{vG}
    v_mul_u32_u24 v{T[9]}, 544, v{T[9]}
    v_add_u32 v{vE}, v{vE}, v{T[9]}
    s_lshl_b32 s76, s{sW}, 13
    s_add_u32 s76, s76, {WL}
    v_add_u32 v{vTG[0]}, s76, v{vE}
    v_xor_b32 v{vTG[1]}, 32, v{vTG[0]}
    v_lshlrev_b32 v{vE}, 8, v{vG}
    v_lshl_add_u32 v{vE}, v{vJ}, 3, v{vE}
    s_lshl_b32 s76, s{sW}, 10
    s_add_u32 s76, s76, {GUL}
    v_add_u32 v{vE}, s76, v{vE}
    s_lshl_b32 s76, s{sW}, 3
    s_add_u32 s76, s76, {STB}
    v_mov_b32 v{vSTa}, {STB+256}
    v_writelane_b32 v{vSTa}, s76, 8
    s_add_u32 s77, s76, 4
    v_writelane_b32 v{vSTa}, s77, 0
    s_add_u32 s76, s76, 128
    v_writelane_b32 v{vSTa}, s76, 24
    s_add_u32 s77, s76, 4
    v_writelane_b32 v{vSTa}, s77, 20
    v_lshlrev_b32 v{vRd}, 3, v{vL}
    v_and_b32 v{vM+3}, 0xf8, v{vRd}
    v_lshrrev_b32 v{vRs}, 5, v{vL}
    v_lshlrev_b32 v{vRs}, 7, v{vRs}
    v_lshlrev_b32 v{vAW}, 1, v{vL}
    s_and_b32 s76, {sRep}, {P['NREP']-1}
    s_mul_i32 s70, s76, {YR_}
    s_lshl_b32 s76, s{sW}, {11 if YH else 12}
    s_add_u32 s70, s70, s76
    s_add_u32 s70, s70, {YP}
    s_mov_b32 s76, s{sRo}
    """)
    if P['dbl'] == 0:
        g(f"""
        v_lshlrev_b32 v{vDS}, 3, v{vL}
        s_mul_i32 s72, s76, 4608
        s_lshl_b32 s76, s{sW}, 9
        """)
    else:
        g(f"""
        v_lshrrev_b32 v{vDS}, 3, v{vL}
        v_mul_u32_u24 v{vDS}, 9216, v{vDS}
        v_and_b32 v{T[9]}, 7, v{vL}
        v_lshl_add_u32 v{vDS}, v{T[9]}, 3, v{vDS}
        s_lshl_b32 s72, s76, 6
        s_mul_i32 s76, s{sW}, 73728
        """)
    g(f"""
    s_add_u32 s72, s72, s76
    s_add_u32 s72, s72, {DB}
    s_mov_b32 s{sCNT}, 0
    """)
    if P['sp'] or P['spa'] or P['sd']:
        g(f"s_cmp_eq_u32 s{sW}, 8"); g("s_cbranch_scc1 L_sp_done")
        def pf_dn():
            if not P['sd']: return
            g(f"s_mul_i32 s98, s{sRo}, 36864"); g(f"s_mul_i32 s99, s{sW}, {P['sds']}"); g("s_add_u32 s98, s98, s99"); g(f"s_mov_b32 s99, {P['sd']}")
            g.label("L_sd")
            g.raw("  s_load_dword s97, s[20:21], s98")
            g(f"s_add_u32 s98, s98, {8 * P['sds']}"); g("s_sub_u32 s99, s99, 1"); g("s_cmp_lg_u32 s99, 0"); g("s_cbranch_scc1 L_sd")
        if P['sdo'] == 0: pf_dn()
        g(f"s_bfe_u32 s76, s{sRo}, 0x30001"); g("s_cmp_eq_u32 s76, 3"); g(f"s_cselect_b32 s99, {P['sp']}, {P['spa']}")
        g("s_cmp_eq_u32 s99, 0"); g("s_cbranch_scc1 L_sp_d2")
        g(f"s_sub_u32 s98, 575, s{sW}"); g("s_mul_i32 s98, s98, 9216"); g(f"s_lshl_b32 s76, s{sRo}, 6"); g("s_add_u32 s98, s98, s76")
        g.label("L_sp")
        g.raw("  s_load_dword s97, s[16:17], s98"); g.raw("  s_load_dword s97, s[18:19], s98")
        g(f"s_sub_u32 s98, s98, {8*9216}"); g("s_sub_u32 s99, s99, 1"); g("s_cmp_lg_u32 s99, 0"); g("s_cbranch_scc1 L_sp")
        g.label("L_sp_d2")
        if P['sdo'] == 1: pf_dn()
        g("s_waitcnt lgkmcnt(0)")
        stamp(11); stamp_flush()
        g.label("L_sp_done")
    GU = {(m, c, t): POOL[4 * m + 2 * c + t] for m in range(2) for c in range(2) for t in range(2)}
    WDr = POOL[8:12]; HL = POOL[26:30]; DD = POOL[16:21]
    AH = [vA0, vA1]
    for t in range(2):
        for r in range(4): g(f"v_mov_b32 v{AH[t]+r}, s{sONE}")
    sMh = [f"s[{a}:{a+1}]" for a in (80, 82, 84, 48)]
    for n in range(4): g(f"s_mov_b64 {sMh[n]}, -1")
    FO = P['fo']
    XF = vQ
    H0, H1 = vACC, vS
    ZL = POOL[21:25]; OR = POOL[25]
    vTC = POOL[30]
    def rd_gu():
        for m in range(2):
            for t in range(2):
                for c in range(2):
                    for hf in range(2):
                        g(f"ds_read_b64_tr_b16 {q2(GU[m, c, t] + 2 * hf)}, v{vTG[c]} offset:{t*4096 + m*1024 + hf*256}")
    def rd_dn():
        for c in range(4):
            for hf in range(2):
                if FO == 1: g(f"ds_read_b64_tr_b16 {q2(WDr[c] + 2 * hf)}, v{vTC+c} offset:{hf*512}")
                else: g(f"ds_read_b64_tr_b16 {q2(WDr[c] + 2 * hf)}, v{vTD} offset:{hf*4608 + 32*c}")
    def xcv():
        for r in range(2):
            g(f"v_lshlrev_b32 v{XF+2*r}, 16, v{XH+r}")
            g(f"v_and_b32 v{XF+2*r+1}, 0xffff0000, v{XH+r}")
    def hpoll(masked=True):
        for n in range(4):
            if masked: g(f"s_or_b64 exec, {sMh[n]}, 1")
            if YH: g(f"buffer_load_dwordx2 {q2(HL[n])}, v{vH}, {WS}, s70 offen offset:{512*n} sc1")
            else: g(f"buffer_load_dwordx4 {q4(HL[n])}, v{vH}, {WS}, s70 offen offset:{1024*n} sc1")
        if masked: g("s_mov_b64 exec, -1")
    def hcheck(extra, mid=None):
        if not YH: return hcheck32(extra, mid)
        for h, H in enumerate((H0, H1)):
            a, b = HL[2 * h], HL[2 * h + 1]
            g(f"s_waitcnt vmcnt({2 - 2*h + extra})")
            for r in range(4):
                e = r & 1
                g(f"v_fma_mix_f32 v{H+r}, v{a+(r>>1)}, 1.0, v{b+(r>>1)} op_sel:[{e},0,{e}] op_sel_hi:[1,0,1]")
            if h == 0:
                g(f"v_max_u32 v{OR}, v{a}, v{a+1}"); g(f"v_max_u32 v{OR+1}, v{b}, v{b+1}")
        g(f"v_pk_add_f32 {q2(H0)}, {q2(H0)}, {q2(H1)}")
        g(f"v_pk_add_f32 {q2(H0+2)}, {q2(H0+2)}, {q2(H1+2)}")
        g(f"v_max_u32 v{OR+2}, v{HL[2]}, v{HL[2]+1}"); g(f"v_max_u32 v{OR+3}, v{HL[3]}, v{HL[3]+1}")
        for r in range(2):
            g(f"v_add_f32_dpp v{H0+r}, v{H0+r}, v{H0+r} row_ror:8 row_mask:0xf bank_mask:0xf")
        g(f"v_max3_u32 v{T[9]}, v{OR}, v{OR+1}, v{OR+2}")
        for r in range(2, 4):
            g(f"v_add_f32_dpp v{H0+r}, v{H0+r}, v{H0+r} row_ror:8 row_mask:0xf bank_mask:0xf")
        g(f"v_max_u32 v{T[9]}, v{T[9]}, v{OR+3}")
        g(f"v_cvt_pk_bf16_f32 v{H1+2}, v{H0}, v{H0+1}")
        g(f"v_cmp_eq_u32 vcc, -1, v{T[9]}")
        g(f"v_cvt_pk_bf16_f32 v{H1+3}, v{H0+2}, v{H0+3}")
        g(f"v_lshlrev_b32 v{H0}, 16, v{H1+2}")
        g(f"v_and_b32 v{H0+1}, 0xffff0000, v{H1+2}")
        g(f"v_lshlrev_b32 v{H0+2}, 16, v{H1+3}")
        g(f"v_and_b32 v{H0+3}, 0xffff0000, v{H1+3}")
        if mid: mid()
        g.lgk(0)
        g("s_cbranch_vccz L_hp_ok")
        for n in range(4):
            g(f"v_cmp_eq_u32 {sMh[n]}, -1, v{OR+n}")
    def hcheck32(extra, mid=None):
        for n in range(4):
            g(f"s_waitcnt vmcnt({3-n + extra})")
            for r in range(4): g(f"v_xor_b32 v{ZL[n]+r}, s{sTG}, v{HL[n]+r}")
            g(f"v_or3_b32 v{OR+n}, v{ZL[n]}, v{ZL[n]+1}, v{ZL[n]+2}")
            if n == 1:
                g(f"v_pk_add_f32 {q2(H0)}, {q2(ZL[0])}, {q2(ZL[1])}")
                g(f"v_pk_add_f32 {q2(H0+2)}, {q2(ZL[0]+2)}, {q2(ZL[1]+2)}")
            if n == 3:
                g(f"v_pk_add_f32 {q2(H1)}, {q2(ZL[2])}, {q2(ZL[3])}")
                g(f"v_pk_add_f32 {q2(H1+2)}, {q2(ZL[2]+2)}, {q2(ZL[3]+2)}")
            g(f"v_or_b32 v{OR+n}, v{OR+n}, v{ZL[n]+3}")
            if n == 2: g(f"v_or3_b32 v{T[9]}, v{OR}, v{OR+1}, v{OR+2}")
        g(f"v_pk_add_f32 {q2(H0)}, {q2(H0)}, {q2(H1)}")
        g(f"v_pk_add_f32 {q2(H0+2)}, {q2(H0+2)}, {q2(H1+2)}")
        g(f"v_or_b32 v{T[9]}, v{T[9]}, v{OR+3}")
        for r in range(2):
            g(f"v_add_f32_dpp v{H0+r}, v{H0+r}, v{H0+r} row_ror:8 row_mask:0xf bank_mask:0xf")
        g(f"v_cmp_ne_u32_sdwa vcc, v{T[9]}, v{vZ} src0_sel:BYTE_0 src1_sel:DWORD")
        for r in range(2, 4):
            g(f"v_add_f32_dpp v{H0+r}, v{H0+r}, v{H0+r} row_ror:8 row_mask:0xf bank_mask:0xf")
        g(f"v_cvt_pk_bf16_f32 v{H1+2}, v{H0}, v{H0+1}")
        g(f"v_cvt_pk_bf16_f32 v{H1+3}, v{H0+2}, v{H0+3}")
        g(f"v_lshlrev_b32 v{H0}, 16, v{H1+2}")
        g(f"v_and_b32 v{H0+1}, 0xffff0000, v{H1+2}")
        g(f"v_lshlrev_b32 v{H0+2}, 16, v{H1+3}")
        g(f"v_and_b32 v{H0+3}, 0xffff0000, v{H1+3}")
        if mid: mid()
        g.lgk(0)
        g("s_cbranch_vccz L_hp_ok")
        for n in range(4):
            g(f"v_cmp_ne_u32_sdwa {sMh[n]}, v{OR+n}, v{vZ} src0_sel:BYTE_0 src1_sel:DWORD")
    if FO == 2:
        g("s_mov_b32 s71, 0")
        g("s_waitcnt vmcnt(37)")
        stamp(4); stamp_flush()
        g("s_barrier")
        rd_gu()
        if P.get('fS', 0): g(f"s_sleep {P['fS']}")
        hpoll(False)
        g("s_waitcnt vmcnt(4)")
        g(f"s_cmp_lg_u32 s{sW}, 8")
        xcv()
        g("s_cbranch_scc1 L_hp2")
        g(f"ds_write_b32 v{vZ}, v{vZ} offset:{WF}")
        rd_dn()
        g("s_mov_b32 s71, 1")
        stamp(7); stamp_flush()
        g("s_branch L_hp2")
        g.label("L_hp")
        hpoll()
        g("s_cmp_lg_u32 s71, 0"); g("s_cbranch_scc1 L_hp2")
        g(f"ds_read_b32 v{T[9]}, v{vZ} offset:{WF}")
        g.lgk(0)
        g(f"v_readfirstlane_b32 s76, v{T[9]}")
        g("s_cmp_lt_i32 s76, 0"); g("s_cbranch_scc1 L_hp2")
        rd_dn()
        g("s_mov_b32 s71, 1")
        g.label("L_hp2")
        hcheck(0)
    elif FO:
        vW0, vW1, t2, t3 = POOL[12], POOL[12] + 1, POOL[12] + 2, POOL[12] + 3
        srd(44, 20, 21, 4608 * 1152)
        g(f"""
        v_lshrrev_b32 v{t2}, 3, v{vL}
        v_mul_u32_u24 v{t2}, 1152, v{t2}
        v_and_b32 v{t3}, 1, v{vG}
        v_lshlrev_b32 v{vW1}, 1, v{t3}
        v_and_b32 v{vW0}, 7, v{vL}
        v_xor_b32 v{vW0}, v{vW0}, v{vW1}
        v_lshl_add_u32 v{vW0}, v{vW0}, 4, v{t2}
        v_lshrrev_b32 v{t2}, 3, v{vJ}
        v_add_u32 v{t3}, v{t2}, v{vW1}
        v_xor_b32 v{vW1}, 64, v{vW0}
        v_lshrrev_b32 v{t2}, 2, v{vJ}
        v_lshl_add_u32 v{t2}, v{vG}, 3, v{t2}
        v_lshlrev_b32 v{t2}, 7, v{t2}
        v_and_b32 v{vTD}, 3, v{vJ}
        v_lshl_add_u32 v{t2}, v{vTD}, 3, v{t2}
        s_lshl_b32 s76, s{sW}, 12
        s_add_u32 s76, s76, {WD}
        v_add_u32 v{t2}, s76, v{t2}
        s_mov_b32 m0, s76
        s_mul_i32 s73, s{sRo}, 36864
        s_lshl_b32 s76, s{sW}, 7
        s_add_u32 s73, s73, s76
        s_mov_b32 s71, 0
        """)
        for c in range(4): g(f"v_xor_b32 v{vTC+c}, {c}, v{t3}")
        for c in range(4): g(f"v_lshl_add_u32 v{vTC+c}, v{vTC+c}, 5, v{t2}")
        g(f"s_waitcnt vmcnt({P['fN'] + 1})")
        g("s_barrier")
        hpoll(False)
        if P.get('fS', 0): g(f"s_sleep {P['fS']}")
        fE = P['fE']
        def dn_issue(lo, hi):
            for e in range(lo, hi):
                g(f"buffer_load_dwordx4 v{vW1 if e & 1 else vW0}, {W3}, s73 offen {P['pol']} lds")
                if e < 3:
                    g("s_add_u32 m0, m0, 1024"); g("s_add_u32 s73, s73, 9216")
        g("s_waitcnt vmcnt(4)")
        stamp(4)
        xcv()
        stamp_flush()
        g("s_barrier")
        rd_gu()
        dn_issue(0, fE)
        hcheck(fE, lambda: dn_issue(fE, 4))
        hpoll()
        g("s_waitcnt vmcnt(4)")
        stamp(7); stamp_flush()
        rd_dn()
        g("s_mov_b32 s71, 1")
        g("s_branch L_hp2")
        g.label("L_hp")
        hpoll()
        g.label("L_hp2")
        hcheck(0)
    else:
        g("s_waitcnt vmcnt(37)")
        stamp(4)
        g("s_barrier")
        rd_gu()
        g("s_waitcnt vmcnt(1)")
        g("s_barrier")
        rd_dn()
        g.waitall()
        xcv()
        stamp(7)
        for _ in range(P['pd2'] - 1):
            hpoll(False)
            g(f"s_sleep {P['pg'] * 2 // P['pd2']}")
        g.label("L_hp")
        hpoll()
        hcheck(4 * (P['pd2'] - 1))
    spin_tail("L_hp", 3 * LIM, P['ps2'])
    g.label("L_hp_ok")
    stamp(8)
    g(f"v_pk_add_f32 {q2(H0)}, {q2(H0)}, {q2(XF)}")
    g(f"v_pk_add_f32 {q2(H0+2)}, {q2(H0+2)}, {q2(XF+2)}")
    g(f"v_cvt_pk_bf16_f32 v{H1}, v{H0}, v{H0+1}")
    g(f"v_cvt_pk_bf16_f32 v{H1+1}, v{H0+2}, v{H0+3}")
    def amov(t, r):
        q = 2 * t + (r >> 1)
        return f"v_mov_b32_dpp v{AH[t]+r}, v{H1+(r&1)} quad_perm:[{q},{q},{q},{q}] row_mask:0xf bank_mask:0x3"
    for r in (0, 2, 1, 3): g(amov(0, r))
    late = [amov(1, r) for r in (0, 2, 1, 3)]
    g(late.pop(0)); g(late.pop(0))
    order = [(0, 0), (1, 0), (0, 1), (1, 1)]
    for t in range(2):
        g(f"v_mfma_f32_16x16x32_bf16 {q4(DD[4])}, {q4(AH[t])}, {q4(AH[t])}, {'0' if t == 0 else q4(DD[4])}")
        if late: g(late.pop(0))
        for k, (m, c) in enumerate(order):
            g(f"v_mfma_f32_16x16x32_bf16 {q4(DD[k])}, {q4(AH[t])}, {q4(GU[m, c, t])}, {'0' if t == 0 else q4(DD[k])}")
            if late: g(late.pop(0))
    g("s_mov_b64 exec, 0x1100101")
    g(f"ds_write_b32 v{vSTa}, v{DD[4]}")
    g("s_mov_b64 exec, -1")
    g(f"ds_write2_b32 v{vE}, v{DD[0]}, v{DD[1]} offset0:0 offset1:1")
    g(f"ds_write2_b32 v{vE}, v{DD[2]}, v{DD[3]} offset0:32 offset1:33")
    g(f"s_cmp_lg_u32 s{sW}, {P.get('aw', 0)}")
    g.lgk(0)
    g("s_barrier")
    g("s_cbranch_scc1 L_act_done" if not FO else "s_cbranch_scc1 L_nact")
    RS = POOL[0:5]; RG = POOL[5:8] + POOL[12:14]; RC = POOL[14:19]
    for k in range(4): g(f"ds_read_b128 {q4(RS[k])}, v{vRs} offset:{STB+16*k}")
    g(f"ds_read_b64 {q2(RS[4])}, v{vRs} offset:{STB+64}")
    pr = lambda R, w: R[w >> 1] + 2 * (w & 1)
    for w in range(9): g(f"ds_read_b64 {q2(pr(RG, w))}, v{vRd} offset:{GUL+1024*w}")
    g.lgk(9)
    for w in range(6): g(f"ds_read_b64 {q2(pr(RC, w))}, v{vM+3} offset:{GUL+512+1024*w}")
    def tree(R):
        p = lambda a, b: f"v_pk_add_f32 {q2(pr(R, a))}, {q2(pr(R, a))}, {q2(pr(R, b))}"
        return [p(0, 1), p(2, 3), p(4, 5), p(6, 7), p(0, 2), p(4, 6), p(0, 8), p(0, 4)]
    for x in tree(RS): g(x)
    g.lgk(6)
    for w in range(6, 9): g(f"ds_read_b64 {q2(pr(RC, w))}, v{vM+3} offset:{GUL+512+1024*w}")
    SM, SQ = RS[0], RS[0] + 1
    lo = ln_ops(SM, SQ, RS[1]); tg = tree(RG); tc = tree(RC)
    k = 0
    while lo or tg or tc:
        if lo: g(lo.pop(0))
        if tg: g(tg.pop(0))
        elif tc:
            if len(tc) == 8: g.lgk(0)
            g(tc.pop(0))
    G4 = RG[0]; U4 = G4 + 1
    g(f"v_pk_fma_f32 {q2(G4)}, {q2(RC[0])}, {q2(SM)}, {q2(G4)} op_sel:[0,0,0] op_sel_hi:[1,0,1] neg_lo:[0,1,0] neg_hi:[0,1,0]")
    g(f"v_pk_mul_f32 {q2(G4)}, {q2(G4)}, {q2(SM)} op_sel:[0,1] op_sel_hi:[1,1]")
    k1 = -2 * math.sqrt(2 / math.pi) * math.log2(math.e)
    k3 = k1 * 0.044715
    t = RG[1]
    g(f"v_mov_b32 v{t+1}, {f2h(k1)}")
    g(f"v_cvt_pk_bf16_f32 v{U4}, v{G4}, v{U4}")
    g(f"v_lshlrev_b32 v{G4}, 16, v{U4}")
    g(f"v_mul_f32 v{t}, v{G4}, v{G4}")
    g(f"v_fmac_f32 v{t+1}, {f2h(k3)}, v{t}")
    g(f"v_mul_f32 v{t}, v{t+1}, v{G4}")
    g(f"v_exp_f32 v{t}, v{t}")
    g(f"v_and_b32 v{U4}, 0xffff0000, v{U4}")
    g(f"v_add_f32 v{t}, 1.0, v{t}")
    g(f"v_rcp_f32 v{t}, v{t}")
    g(f"v_mul_f32 v{t}, v{t}, v{G4}")
    bf16r(t, t)
    g(f"v_mul_f32 v{t}, v{t}, v{U4}")
    g(f"v_cvt_pk_bf16_f32 v{t}, v{t}, v{t}")
    g(f"ds_write_b16 v{vAW}, v{t} offset:{ACT}")
    g.lgk(0)
    g.label("L_act_done")
    if FO: g("s_cmp_eq_u32 s71, 0")
    g("s_barrier")
    stamp(9)
    g(f"ds_read_b128 {q4(vA0)}, v{vAR} offset:{ACT}")
    if FO: g("s_cbranch_scc1 L_ldn"); g.label("L_ldn_ok")
    g(f"v_mov_b32 v{T[9]}, s{sTG}")
    g.lgk(0)
    for c in (1, 2, 3, 0):
        g(f"v_mfma_f32_16x16x32_bf16 {q4(WDr[c])}, {q4(vA0)}, {q4(WDr[c])}, 0")
    X = WDr[1]
    g(f"v_mov_b32_dpp v{X}, v{WDr[2]} quad_perm:[0,1,2,3] row_mask:0xc bank_mask:0xf")
    g(f"v_mov_b32_dpp v{X+1}, v{WDr[3]} quad_perm:[0,1,2,3] row_mask:0xc bank_mask:0xf")
    g(f"v_mov_b32_dpp v{X}, v{WDr[0]} quad_perm:[0,1,2,3] row_mask:0x3 bank_mask:0xf")
    g(f"v_bfi_b32 v{X+1}, s{sFF}, v{T[9]}, v{X+1}")
    g(f"v_bfi_b32 v{X}, s{sFF}, v{T[9]}, v{X}")
    g(f"buffer_store_dwordx2 {q2(X)}, v{vDS}, {WS}, s72 offen sc1")
    stamp(10); stamp_flush()
    g("s_branch L_fin" if P['stamps'] else "s_endpgm")

    if FO:
        new_path("L_nact")
        g("s_cmp_lg_u32 s71, 0"); g("s_cbranch_scc1 L_act_done")
        g("s_waitcnt vmcnt(0)")
        rd_dn()
        if P['stamps'] and FO == 1:
            g.lgk(0); g("s_memrealtime s[96:97]"); g.lgk(0); g(f"v_writelane_b32 v{vST}, s96, 7")
        g("s_mov_b32 s71, 1")
        g("s_branch L_act_done")
        new_path("L_ldn")
        g("s_waitcnt vmcnt(0)")
        rd_dn()
        g("s_branch L_ldn_ok")
    new_path("L_refac")
    g(f"s_mov_b32 s{sCNT}, 0")
    g.label("L_refac1")
    rdfac()
    g(f"s_cmp_eq_u64 {sFV}, 0"); g("s_cbranch_scc1 L_fac_ok")
    spin_tail("L_refac1", 20 * LIM, 2)
    g("s_branch L_fac_ok")

    new_path("L_help")
    nst[0] = pro_nst
    if P['prio']: g("s_setprio 3")
    QG = P['qg']
    WSO = f"s_add_u32 s26, s26, {P['wso']<<20}\n s_addc_u32 s27, s27, 0" if P['wso'] else ''
    if QG:
        XA, XB_, XE = POOL[26], POOL[27], vQ
        XR = POOL[28]
        NEG = POOL[25]
        vX = vK
        NM = 144 // QG
        NQ = min(NM, P['NQ']); RQ = POOL[0:NQ]
        for r in range(4): g(f"v_mov_b32 v{NEG+r}, -1")
        g(f"""
        s_mov_b64 exec, 0xffffff
        ds_write_b128 v{T[1]}, {q4(NEG)}
        s_mov_b64 exec, -1
        v_lshrrev_b32 v{T[2]}, 5, v{vL}
        v_mul_u32_u24 v{T[2]}, 1152, v{T[2]}
        v_and_b32 v{T[3]}, 31, v{vL}
        v_lshl_add_u32 v{T[4]}, v{T[3]}, 4, v{T[2]}
        v_lshl_add_u32 v{T[3]}, v{T[3]}, 2, v{T[2]}
        s_and_b32 s76, s{sC}, 3
        s_lshl_b32 s{sR}, s76, 1
        s_add_u32 s{sR}, s{sR}, s{sB}
        s_mul_i32 s{sTo}, s{sR}, 144
        v_lshlrev_b32 v{T[2]}, 3, v{vJ}
        v_lshl_add_u32 v{T[2]}, v{vG}, 1, v{T[2]}
        s_lshl_b32 s76, s{sH}, 8
        s_sub_u32 s38, {576*8192}, s76
        s_mov_b32 s39, 0x20000
        s_mul_i32 s{sQo}, s{sR}, {72*8192}
        v_lshlrev_b32 v{vX}, 13, v{vG}
        v_lshl_add_u32 v{vX}, v{vJ}, 4, v{vX}
        s_mov_b32 s58, 2304
        s_mov_b32 s59, 0x20000
        s_waitcnt lgkmcnt(0)
        s_mov_b32 s56, s4
        s_mov_b32 s57, s5
        s_add_u32 s36, s10, s76
        s_addc_u32 s37, s11, 0
        {WSO}
        s_load_dword s{sE}, s[26:27], {EPW}
        """)
        g.vm(f"buffer_load_dwordx4 {q4(XA)}, v{T[4]}, {XS}, 0 offen")
        g.vm(f"buffer_load_dwordx4 {q4(XB_)}, v{T[4]}, {XS}, 0 offen offset:512")
        g.vm(f"buffer_load_dword v{XE}, v{T[3]}, {XS}, 0 offen offset:1024")
        if QG == 8:
            g(f"s_add_u32 s77, s{sTo}, 1152")
        else:
            g(f"s_mul_i32 s76, s{sB}, 1152"); g(f"s_xor_b32 s77, s{sR}, 1"); g(f"s_mul_i32 s89, s77, {72*8192}"); g("s_mul_i32 s77, s77, 144")
            g(f"s_add_u32 s{sTo}, s{sTo}, s76"); g("s_add_u32 s77, s77, s76")
        g.vm(f"buffer_load_ushort v{XR}, v{T[2]}, {XS}, s{sTo} offen")
        g.vm(f"buffer_load_ushort v{XR+1}, v{T[2]}, {XS}, s{sTo} offen offset:128")
        g.vm(f"buffer_load_ushort v{XR+2}, v{T[2]}, {XS}, s77 offen")
        tx = g.vm(f"buffer_load_ushort v{XR+3}, v{T[2]}, {XS}, s77 offen offset:128")
        tq = []
        def ldq(m):
            tq.append(g.vm(f"buffer_load_dwordx4 {q4(RQ[m % NQ])}, v{vX}, {W1}, s{sQo} offen {P['polq']}"))
            if m == 17: g(f"s_mov_b32 s{sQo}, s89")
            else: g(f"s_add_u32 s{sQo}, s{sQo}, 0x8000")
        for m in range(NQ): ldq(m)
        g("s_barrier")
        srd(52, 26, 27, WSN)
        masks()
        g.wait(tx)
        a, b_, t1, t2 = T[8], T[9], T[10], T[11]
        xs = [XA, XA + 1, XA + 2, XA + 3, XB_, XB_ + 1, XB_ + 2, XB_ + 3, XE]
        for k, r in enumerate(xs):
            g(f"v_dot2_f32_bf16 v{a}, v{r}, s{sONE}, {'0' if k == 0 else 'v%d' % a}")
            g(f"v_dot2_f32_bf16 v{b_}, v{r}, v{r}, {'0' if k == 0 else 'v%d' % b_}")
        allred("v_add_f32", [a, b_], [t1, t2], rows=2)
        for x in ln_ops(a, b_, t1): g(x)
        if QG == 8:
            g(f"v_readlane_b32 s76, v{a}, 0"); g(f"v_readlane_b32 s77, v{a}, 32")
            g(f"v_readlane_b32 s96, v{b_}, 0"); g(f"v_readlane_b32 s97, v{b_}, 32")
        else:
            g(f"s_lshl_b32 s88, s{sB}, 5")
            g(f"v_readlane_b32 s76, v{a}, s88"); g(f"v_readlane_b32 s77, v{a}, s88")
            g(f"v_readlane_b32 s96, v{b_}, s88"); g(f"v_readlane_b32 s97, v{b_}, s88")
        for k in range(4): g(f"v_lshlrev_b32 v{XR+k}, 16, v{XR+k}")
        for k in range(4): g(f"v_subrev_f32 v{XR+k}, s{76 + (k>>1)}, v{XR+k}")
        for k in range(4): bf16r(XR + k, XR + k)
        for k in range(4): g(f"v_mul_f32 v{XR+k}, s{96 + (k>>1)}, v{XR+k}")
        for k in range(4): g(f"v_cvt_pk_bf16_f32 v{XR+k}, v{XR+k}, v{XR+k}")
        for m in range(NM):
            A = vA0 if m & 1 == 0 else vA1
            t = T[8 + (m & 1)]
            if QG == 8:
                g(f"v_mov_b32_dpp v{t}, v{XR+(m>>4)} row_newbcast:{m&15} row_mask:0xf bank_mask:0x3")
                g(f"v_mov_b32_dpp v{t}, v{XR+2+(m>>4)} row_newbcast:{m&15} row_mask:0xf bank_mask:0xc")
                for r in range(4):
                    g(f"v_and_b32 v{A+r}, v{t}, v{vM+r}")
            else:
                mm = m % 18
                for r in range(4):
                    g(f"v_and_b32_dpp v{A+r}, v{XR+2*(m//18)+(mm>>4)}, v{vM+r} row_newbcast:{mm&15} row_mask:0xf bank_mask:0xf")
            g.wait(tq[m])
            g(f"v_mfma_f32_16x16x32_bf16 {q4(vACC)}, {q4(A)}, {q4(RQ[m % NQ])}, {'0' if m == 0 else q4(vACC)}")
            if m + NQ < NM: ldq(m + NQ)
        g(f"""
        s_waitcnt lgkmcnt(0)
        s_add_u32 s{sE}, s{sE}, 1
        s_and_b32 s88, s{sE}, 255
        s_movk_i32 s89, 0xff
        v_mov_b32 v{vA0+1}, s{sE}
        s_lshl_b32 s77, s{sH}, 1
        s_add_u32 s77, s77, s{sB}
        s_lshl_b32 s77, s77, 12
        s_add_u32 s77, s77, {QP}
        v_lshlrev_b32 v{T[2]}, 5, v{vJ}
        v_and_b32 v{T[3]}, 1, v{vG}
        v_lshl_add_u32 v{T[2]}, v{T[3]}, 4, v{T[2]}
        """)
        if QG == 8:
            g(f"""
            s_lshl_b32 s76, s{sH}, 4
            s_add_u32 s76, s76, s{sR}
            s_lshl_b32 s76, s76, 9
            s_add_u32 s76, s76, {QP}
            v_lshrrev_b32 v{T[3]}, 1, v{vG}
            v_lshl_add_u32 v{T[2]}, v{T[3]}, 12, v{T[2]}
            """)
        else:
            g(f"s_lshr_b32 s76, s{sR}, 1"); g("s_lshl_b32 s76, s76, 9"); g("s_add_u32 s76, s76, s77")
        for r in range(4): g(f"v_add_u32 v{vACC+r}, 0x80, v{vACC+r}")
        for r in range(4): g(f"v_bfi_b32 v{vACC+r}, s89, v{vA0+1}, v{vACC+r}")
        if QG == 4: g("s_mov_b32 exec_hi, 0")
        if not P['exp'] & 32: g.vm(f"buffer_store_dwordx4 {q4(vACC)}, v{T[2]}, {WS}, s76 offen sc1")
        if QG == 4: g("s_mov_b32 exec_hi, -1")
        stamp(1)
        QR = POOL[0:QG // 2]
        g(f"""
        s_mov_b32 s{sCNT}, 0
        v_and_b32 v{T[3]}, 31, v{vL}
        v_lshlrev_b32 v{T[3]}, 3, v{T[3]}
        v_lshrrev_b32 v{T[2]}, 5, v{vL}
        v_lshl_add_u32 v{T[3]}, v{T[2]}, 2, v{T[3]}
        """)
        if P['exp'] & (32 | 128): g("s_branch L_qp_ok")
        g.label("L_qp")
        if P['qsleep']: g(f"s_sleep {P['qsleep']}")
        for n in range(QG // 2):
            g(f"buffer_load_dwordx4 {q4(QR[n])}, v{T[1]}, {WS}, s77 offen offset:{n*1024} sc1")
        g.waitall()
        for n in range(QG // 2):
            for r in range(4): g(f"v_xor_b32 v{QR[n]+r}, s88, v{QR[n]+r}")
        g(f"v_or_b32 v{T[4]}, v{QR[0]}, v{QR[0]+1}")
        for k in range(2, 2 * QG, 2): g(f"v_or3_b32 v{T[4]}, v{T[4]}, v{QR[0]+k}, v{QR[0]+k+1}")
        g(f"v_cmp_ne_u32_sdwa vcc, v{T[4]}, v{vZ} src0_sel:BYTE_0 src1_sel:DWORD")
        g("s_cbranch_vccz L_qp_ok")
        spin_tail("L_qp", LIM)
        g.label("L_qp_ok")
        for st in ((1, 2) if QG == 8 else (1,)):
            for n in range(0, QG // 2, 2 * st):
                for hh in (0, 2): g(f"v_pk_add_f32 {q2(QR[n]+hh)}, {q2(QR[n]+hh)}, {q2(QR[n+st]+hh)}")
        g(f"v_permlane32_swap_b32 v{QR[0]}, v{QR[0]+2}")
        g(f"v_permlane32_swap_b32 v{QR[0]+1}, v{QR[0]+3}")
        g(f"v_pk_add_f32 {q2(QR[0])}, {q2(QR[0])}, {q2(QR[0]+2)}")
        g(f"v_cvt_pk_bf16_f32 v{QR[0]}, v{QR[0]}, v{QR[0]+1}")
        g(f"ds_write_b32 v{T[3]}, v{QR[0]} offset:{QS}")
    else:
        XA, XB_, XE = POOL[26], POOL[27], vQ
        XR = POOL[28]
        NQ = P['NQ']; RQ = POOL[0:NQ]
        NEG = POOL[25]
        vX = vK
        sBk = sTo
        for r in range(4): g(f"v_mov_b32 v{NEG+r}, -1")
        g(f"""
        s_mov_b64 exec, 0xffffff
        ds_write_b128 v{T[1]}, {q4(NEG)}
        s_mov_b64 exec, -1
        v_lshrrev_b32 v{T[2]}, 5, v{vL}
        v_mul_u32_u24 v{T[2]}, 1152, v{T[2]}
        v_and_b32 v{T[3]}, 31, v{vL}
        v_lshl_add_u32 v{T[4]}, v{T[3]}, 4, v{T[2]}
        v_lshl_add_u32 v{T[3]}, v{T[3]}, 2, v{T[2]}
        s_and_b32 s76, s{sC}, 3
        s_lshl_b32 s77, s{sB}, 2
        s_add_u32 s{sR}, s76, s77
        v_lshlrev_b32 v{T[2]}, 3, v{vJ}
        v_lshl_add_u32 v{T[2]}, v{vG}, 1, v{T[2]}
        s_mul_i32 s77, s{sB}, 1152
        v_add_u32 v{T[2]}, s77, v{T[2]}
        s_lshl_b32 s76, s{sH}, 8
        s_sub_u32 s38, {576*8192}, s76
        s_mov_b32 s39, 0x20000
        s_lshl_b32 s{sQo}, s{sR}, 19
        s_lshl_b32 s{sBk}, s{sR}, 7
        v_lshlrev_b32 v{vX}, 13, v{vG}
        v_lshl_add_u32 v{vX}, v{vJ}, 4, v{vX}
        s_mov_b32 s58, 2304
        s_mov_b32 s59, 0x20000
        s_waitcnt lgkmcnt(0)
        s_mov_b32 s56, s4
        s_mov_b32 s57, s5
        s_add_u32 s36, s10, s76
        s_addc_u32 s37, s11, 0
        {WSO}
        s_load_dword s{sE}, s[26:27], {EPW}
        """)
        g(f"buffer_load_dwordx4 {q4(XA)}, v{T[4]}, {XS}, 0 offen")
        g(f"buffer_load_dwordx4 {q4(XB_)}, v{T[4]}, {XS}, 0 offen offset:512")
        g(f"buffer_load_dword v{XE}, v{T[3]}, {XS}, 0 offen offset:1024")
        for k in range(9):
            g(f"buffer_load_ushort v{XR+k}, v{T[2]}, {XS}, s{sBk} offen")
            if k < 8:
                g(f"s_add_u32 s{sBk}, s{sBk}, 128"); g(f"s_cmp_eq_u32 s{sBk}, 1152"); g(f"s_cselect_b32 s{sBk}, 0, s{sBk}")
        PQ = '' if P['polq'] == 'def' else P['polq']
        QD = P['qd']
        if QD:
            NQ = QD
            g(f"s_mov_b32 m0, {WL}"); g(f"v_add_u32 v{T[0]}, {WL}, v{T[1]}")
        def ldq(m):
            if QD:
                g(f"buffer_load_dwordx4 v{vX}, {W1}, s{sQo} offen {PQ} lds")
                g("s_add_u32 m0, m0, 1024")
            else:
                g(f"buffer_load_dwordx4 {q4(RQ[m % NQ])}, v{vX}, {W1}, s{sQo} offen {PQ}")
            g(f"s_add_u32 s{sQo}, s{sQo}, 0x8000")
            if m % 16 == 15:
                g(f"s_cmp_eq_u32 s{sQo}, {576*8192}"); g(f"s_cselect_b32 s{sQo}, 0, s{sQo}")
        Q0 = P.get('Q0', NQ)
        for m in range(Q0): ldq(m)
        g("s_barrier")
        srd(52, 26, 27, WSN)
        masks()
        g(f"s_waitcnt vmcnt({Q0})")
        a, b_, t1, t2 = T[8], T[9], T[10], T[11]
        xs = [XA, XA + 1, XA + 2, XA + 3, XB_, XB_ + 1, XB_ + 2, XB_ + 3, XE]
        for k, r in enumerate(xs):
            g(f"v_dot2_f32_bf16 v{a}, v{r}, s{sONE}, {'0' if k == 0 else 'v%d' % a}")
            g(f"v_dot2_f32_bf16 v{b_}, v{r}, v{r}, {'0' if k == 0 else 'v%d' % b_}")
        allred("v_add_f32", [a, b_], [t1, t2], rows=2)
        for x in ln_ops(a, b_, t1): g(x)
        g(f"s_lshl_b32 s77, s{sB}, 5")
        g(f"v_readlane_b32 s76, v{a}, s77"); g(f"v_readlane_b32 s88, v{b_}, s77")
        for k in range(9): g(f"v_lshlrev_b32 v{XR+k}, 16, v{XR+k}")
        for k in range(9): g(f"v_subrev_f32 v{XR+k}, s76, v{XR+k}")
        for k in range(9): g(f"v_cvt_pk_bf16_f32 v{XR+k}, v{XR+k}, v{XR+k}")
        for k in range(9): g(f"v_and_b32 v{XR+k}, 0xffff0000, v{XR+k}")
        for k in range(9): g(f"v_mul_f32 v{XR+k}, s88, v{XR+k}")
        for k in range(9): g(f"v_cvt_pk_bf16_f32 v{XR+k}, v{XR+k}, v{XR+k}")
        for r in range(4): g(f"v_mov_b32 v{vACC+r}, 0")
        if Q0 < NQ:
            g(f"s_waitcnt vmcnt({Q0-1})")
            for m in range(Q0, NQ): ldq(m)
        Bd = 16 * NQ // math.gcd(16, NQ); NIT = 144 // Bd
        if QD:
            assert QD % 16 == 0
            Bd = 16; NIT = 9
        assert NIT * Bd == 144
        g(f"s_mov_b32 s{sCNT}, {NIT}")
        g.flush()
        g.label("L_q")
        if QD:
            g(f"s_cmp_le_u32 s{sCNT}, {QD//16}"); g(f"s_cselect_b32 s38, 0, s38")
            for h in range(4):
                g(f"s_waitcnt vmcnt({QD-4})")
                for m in range(4 * h, 4 * h + 4):
                    g(f"ds_read_b128 {q4(RQ[m])}, v{T[0]} offset:{1024*m}")
                for m in range(4 * h, 4 * h + 4): ldq(m)
                for m in range(4 * h - 4, 4 * h) if h else []:
                    A = vA0 if m & 1 == 0 else vA1
                    for r in range(4):
                        g(f"v_and_b32_dpp v{A+r}, v{XR}, v{vM+r} row_newbcast:{m&15} row_mask:0xf bank_mask:0xf")
                    if m % 4 == 0: g.lgk(4)
                    g(f"v_mfma_f32_16x16x32_bf16 {q4(vACC)}, {q4(A)}, {q4(RQ[m])}, {q4(vACC)}")
            for m in range(12, 16):
                A = vA0 if m & 1 == 0 else vA1
                for r in range(4):
                    g(f"v_and_b32_dpp v{A+r}, v{XR}, v{vM+r} row_newbcast:{m&15} row_mask:0xf bank_mask:0xf")
                if m % 4 == 0: g.lgk(0)
                g(f"v_mfma_f32_16x16x32_bf16 {q4(vACC)}, {q4(A)}, {q4(RQ[m])}, {q4(vACC)}")
            g(f"v_add_u32 v{T[0]}, 0x4000, v{T[0]}")
        for m in range(Bd if not QD else 0):
            A = vA0 if m & 1 == 0 else vA1
            for r in range(4):
                g(f"v_and_b32_dpp v{A+r}, v{XR+(m>>4)}, v{vM+r} row_newbcast:{m&15} row_mask:0xf bank_mask:0xf")
            if m == Bd - NQ:
                g(f"s_cmp_eq_u32 s{sCNT}, 1"); g(f"s_cselect_b32 s38, 0, s38")
            g(f"s_waitcnt vmcnt({NQ-1})")
            g(f"v_mfma_f32_16x16x32_bf16 {q4(vACC)}, {q4(A)}, {q4(RQ[m % NQ])}, {q4(vACC)}")
            ldq(m + NQ)
        for k in range(9 - Bd // 16): g(f"v_mov_b32 v{XR+k}, v{XR+k+Bd//16}")
        g(f"s_sub_u32 s{sCNT}, s{sCNT}, 1")
        g(f"s_cmp_lg_u32 s{sCNT}, 0"); g("s_cbranch_scc1 L_q")
        g(f"""
        v_lshlrev_b32 v{T[3]}, 4, v{vJ}
        v_lshl_add_u32 v{T[3]}, v{vG}, 3, v{T[3]}
        v_cvt_pk_bf16_f32 v{vACC}, v{vACC}, v{vACC+1}
        v_cvt_pk_bf16_f32 v{vACC+1}, v{vACC+2}, v{vACC+3}
        s_mov_b32 exec_hi, 0
        ds_write_b64 v{T[3]}, {q2(vACC)} offset:{QS}
        s_mov_b32 exec_hi, -1
        s_waitcnt lgkmcnt(0)
        s_add_u32 s{sE}, s{sE}, 1
        v_mov_b32 v{vA0+1}, s{sE}
        """)
    stamp(2)
    if P['prio']: g("s_setprio 0")
    def mallpf():
        if not P['mp']: return
        a_, b_ = POOL[22], POOL[22] + 1
        srd(36, 16, 17, 576 * 9216); srd(40, 18, 19, 576 * 9216)
        pm = P['polm'].replace('+', ' ').replace('def', '')
        if P['mp'] == 1:
            g(f"""
            v_lshrrev_b32 v{a_}, 1, v{vL}
            v_lshlrev_b32 v{a_}, 10, v{a_}
            v_and_b32 v{b_}, 1, v{vL}
            v_lshl_add_u32 v{a_}, v{b_}, 6, v{a_}
            s_mul_i32 s76, s2, {21*1024}
            v_add_u32 v{a_}, s76, v{a_}
            s_mov_b32 exec_hi, 0x3ff
            """)
        else:
            g(f"""
            v_lshlrev_b32 v{a_}, 10, v{vL}
            s_mul_i32 s76, s2, {21*1024}
            v_add_u32 v{a_}, s76, v{a_}
            s_mov_b64 exec, 0x1fffff
            """)
        g(f"""
        buffer_load_dword v{b_}, v{a_}, {W1}, 0 offen offset:{P['mpo']} {pm}
        buffer_load_dword v{b_}, v{a_}, {W2}, 0 offen offset:{P['mpo']} {pm}
        s_mov_b64 exec, -1
        s_waitcnt vmcnt(0)
        """)
    vD0, vD1 = T[6], T[7]
    for _ in range(P['sdel']): g("s_sleep 64")
    g(f"""
    s_lshl_b32 s76, s{sC}, 8
    s_add_u32 s76, s76, {ORW}
    s_mov_b64 exec, 0xffff
    {SENT}buffer_store_dwordx4 {q4(NEG)}, v{T[1]}, {WS}, s76 offen {P['pst']}
    """)
    if YH:
        g(f"s_cmp_ge_u32 s{sC}, {72*YH}"); g("s_cbranch_scc1 L_nys")
        g(f"s_add_u32 s76, s76, {YP-ORW}")
        g(f"buffer_store_dwordx4 {q4(NEG)}, v{T[1]}, {WS}, s76 offen sc1")
        g.label("L_nys")
    g("s_mov_b64 exec, -1")
    g("s_waitcnt vmcnt(0)")
    if P['mpp'] == 1: mallpf()
    def pair(w):
        g(f"""
        s_waitcnt vmcnt({w})
        buffer_load_dwordx4 v{vD0}, {W1}, s{sQo} offen {POLG} lds
        s_add_u32 m0, m0, 1024
        s_add_u32 s{sQo}, s{sQo}, s{sSt}
        s_waitcnt vmcnt({w})
        buffer_load_dwordx4 v{vD1}, {W2}, s{sTo} offen {POLG} lds
        s_add_u32 m0, m0, 1024
        s_add_u32 s{sTo}, s{sTo}, s{sSt}
        s_add_u32 s{sK}, s{sK}, 1
        """)
        if P['prot']:
            g(f"""
            s_cmp_eq_u32 m0, {WD}
            s_cselect_b32 m0, {WL}, m0
            s_cselect_b32 s{sQo}, s50, s{sQo}
            s_cselect_b32 s{sTo}, s50, s{sTo}
            """)
    m, l, t0, t1 = T[0], T[1], T[2], T[3]
    vL16 = POOL[21]
    g(f"v_mov_b32 v{vL16}, v{T[1]}")
    g(f"v_and_b32 v{T[4]}, 7, v{vL}"); g(f"v_lshlrev_b32 v{T[4]}, 3, v{T[4]}")
    def wait_pct(lab, thr, clk=False):
        g(f"s_mov_b32 s{sCNT}, 0")
        g.label(lab)
        g(f"ds_read_b32 v{t0}, v{vZ} offset:{PCT}")
        if clk: g("s_memrealtime s[98:99]")
        g.lgk(0)
        g(f"v_readfirstlane_b32 s76, v{t0}")
        g(f"s_cmp_ge_i32 s76, {thr}"); g(f"s_cbranch_scc1 {lab}_ok")
        spin_tail(lab, 20 * LIM, P['isl'])
        g.label(f"{lab}_ok")
    vRK = POOL[21] + 1
    def publish(lab, base):
        g(f"""
        s_lshr_b32 s76, s{sI}, 2
        s_lshl_b32 s50, s{sX}, 3
        s_add_u32 s50, s50, s76
        s_lshl_b32 s98, s98, 6
        s_add_u32 s98, s98, s50
        v_mov_b32 v{vA0}, s98
        s_mul_i32 s77, s{sX}, {RKS}
        s_lshl_b32 s76, s76, 3
        s_add_u32 s76, s76, s77
        s_add_u32 s76, s76, {base}
        s_and_b32 s51, s{sI}, 3
        s_cbranch_scc1 {lab}
        s_mov_b64 exec, 1
        buffer_store_dwordx2 {q2(vA0)}, v{vZ}, {WS}, s76 offen sc1
        s_mov_b64 exec, -1
        """)
        g.label(lab)
    def read_table(lab, base, lim):
        g(f"s_mov_b32 s{sCNT}, 0")
        g(f"s_mov_b32 s76, {base}")
        g.label(lab)
        g(f"buffer_load_dwordx2 {q2(t0)}, v{vRK}, {WS}, s76 offen sc1")
        g("s_waitcnt vmcnt(0)")
        g(f"v_cmp_ne_u32 vcc, s{sE}, v{t1}")
        g(f"s_cbranch_vccz {lab}_ok")
        spin_tail(lab, lim, P['asl'])
    g(f"""
    v_lshrrev_b32 v{vRK}, 3, v{vL}
    v_mul_u32_u24 v{vRK}, {RKS}, v{vRK}
    v_add_u32 v{vRK}, v{T[4]}, v{vRK}
    """)
    if C1:
        wait_pct("L_c1", 7, True)
        publish("L_np1", RK1)
        wait_pct("L_r1w", 0xff)
        stamp(5)
        read_table("L_t1", RK1, P.get('t1n', 3))
        g("s_branch L_t1_skip")
        g.label("L_t1_ok")
        g(f"""
        v_readlane_b32 s96, v{t0}, s50
        v_sub_u32 v{t0}, s96, v{t0}
        v_ashrrev_i32 v{t0}, 6, v{t0}
        """)
        allred("v_add_u32", [t0], [t1])
        g(f"""
        v_readfirstlane_b32 s96, v{t0}
        s_ashr_i32 s96, s96, 6
        s_mul_i32 s76, s96, {P['kw']}
        s_ashr_i32 s76, s76, 8
        s_add_i32 s76, s76, {R1}
        s_mul_i32 s77, s96, {P['kn']}
        s_ashr_i32 s77, s77, 8
        s_sub_i32 s77, s77, {R1}
        s_cmp_gt_i32 s96, 0
        s_cselect_b32 s76, s76, s77
        s_abs_i32 s96, s96
        s_cmp_gt_i32 s96, {P['dead']}
        s_cselect_b32 s76, s76, -1
        v_mov_b32 v{t0}, s76
        ds_write_b32 v{vZ}, v{t0} offset:{THR}
        """)
        g.label("L_t1_skip")
        stamp(6)
    g(f"s_mov_b32 s{sCNT}, 0")
    g.label("L_ml")
    g(f"ds_read_b64 {q2(m)}, v{T[4]} offset:{MLS}")
    g("s_memrealtime s[98:99]")
    g.lgk(0)
    g(f"v_cmp_u_f32 vcc, v{l}, v{l}")
    g("s_cbranch_vccz L_ml_ok")
    spin_tail("L_ml", 4 * LIM, P['csl1'])
    g.label("L_ml_ok")
    g(f"v_max_f32_dpp v{t0}, v{m}, v{m} row_ror:4 row_mask:0xf bank_mask:0xf")
    g(f"v_max_f32_dpp v{t0}, v{t0}, v{t0} row_ror:2 row_mask:0xf bank_mask:0xf")
    g(f"v_max_f32_dpp v{t0}, v{t0}, v{t0} row_ror:1 row_mask:0xf bank_mask:0xf")
    g(f"v_sub_f32 v{t1}, v{m}, v{t0}")
    g(f"v_exp_f32 v{t1}, v{t1}")
    g(f"v_mul_f32 v{l}, v{t1}, v{l}")
    for sh in (4, 2, 1):
        g(f"v_add_f32_dpp v{l}, v{l}, v{l} row_ror:{sh} row_mask:0xf bank_mask:0xf")
    g(f"v_log_f32 v{l}, v{l}")
    g(f"""
    s_lshr_b32 s50, s{sC}, 2
    s_lshl_b32 s50, s50, 7
    s_add_u32 s50, s50, {LSX}
    s_and_b32 s77, s{sC}, 3
    s_lshl_b32 s77, s77, 3
    s_add_u32 s77, s77, s50
    v_add_f32 v{vA0}, v{l}, v{t0}
    v_and_b32 v{T[5]}, 24, v{T[4]}
    s_mov_b64 exec, 1
    buffer_store_dwordx2 {q2(vA0)}, v{vZ}, {WS}, s77 offen sc1
    s_mov_b64 exec, -1
    s_mov_b32 s{sCNT}, 0
    """)
    if P['lk']:
        g(f"""
        s_lshl_b32 s49, s98, 8
        s_add_u32 s49, s49, s2
        v_mov_b32 v{vA1}, s49
        v_mov_b32 v{vA1+1}, s{sE}
        s_mul_i32 s76, s{sX}, {RKS}
        s_lshl_b32 s77, s{sI}, 3
        s_add_u32 s76, s76, s77
        s_add_u32 s76, s76, {RK1}
        s_mov_b64 exec, 1
        buffer_store_dwordx2 {q2(vA1)}, v{vZ}, {WS}, s76 offen sc1
        s_mov_b64 exec, -1
        """)
    def mkfac():
        g(f"v_max_f32_dpp v{t1}, v{t0}, v{t0} quad_perm:[1,0,3,2] row_mask:0xf bank_mask:0xf")
        g(f"v_max_f32_dpp v{t1}, v{t1}, v{t1} quad_perm:[2,3,0,1] row_mask:0xf bank_mask:0xf")
        g(f"v_sub_f32 v{t0}, v{t0}, v{t1}")
        g(f"v_exp_f32 v{t0}, v{t0}")
        g(f"v_sub_f32 v{m}, v{m}, v{t1}")
        g(f"v_exp_f32 v{m}, v{m}")
        g(f"v_add_f32_dpp v{t0}, v{t0}, v{t0} quad_perm:[1,0,3,2] row_mask:0xf bank_mask:0xf")
        g(f"v_add_f32_dpp v{t0}, v{t0}, v{t0} quad_perm:[2,3,0,1] row_mask:0xf bank_mask:0xf")
        g(f"v_rcp_f32 v{t0}, v{t0}")
        g(f"v_lshrrev_b32 v{T[4]}, 1, v{T[4]}")
        g(f"v_mul_f32 v{m}, v{m}, v{t0}")
        g("s_mov_b64 exec, 0xff")
        g(f"ds_write_b32 v{T[4]}, v{m} offset:{FAC}")
        g("s_mov_b64 exec, -1")
    if P['lx']:
        g("s_mov_b32 s89, s50")
    else:
        if P['exp'] & 64:
            g(f"v_mov_b32 v{t0}, v{vA0}"); g("s_branch L_lx_ok")
        g.label("L_lx")
        g(f"s_sleep {P['csl']}")
        g(f"buffer_load_dwordx2 {q2(t0)}, v{T[5]}, {WS}, s50 offen sc1")
        g("s_waitcnt vmcnt(0)")
        g(f"v_cmp_ne_u32 vcc, s{sE}, v{t1}")
        g("s_cbranch_vccz L_lx_ok")
        spin_tail("L_lx", LIM)
        g.label("L_lx_ok")
        mkfac()
    stamp(3)
    if P['mpp'] == 2: mallpf()
    vTK = T[10]
    if P['wk']:
        KT = [POOL[0], POOL[0] + 2, POOL[1], POOL[1] + 2, POOL[2]]
        vRO = POOL[21] + 2
        g(f"""
        v_and_b32 v{vRO}, 31, v{vL}
        v_lshlrev_b32 v{vRO}, 3, v{vRO}
        v_lshrrev_b32 v{vRK}, 5, v{vL}
        v_mul_u32_u24 v{vRK}, {RKS}, v{vRK}
        v_add_u32 v{vRK}, v{vRO}, v{vRK}
        s_mul_i32 s50, s{sX}, {RKS}
        s_add_u32 s50, s50, {RK}
        s_lshl_b32 s51, s{sI}, 3
        s_add_u32 s51, s51, s50
        """)
        wait_pct("L_pm", 0x100 * P['NW1'] - 1, True)
        g(f"""
        s_lshl_b32 s98, s98, 8
        s_add_u32 s98, s98, s2
        v_mov_b32 v{vA0}, s98
        s_mov_b64 exec, 1
        buffer_store_dwordx2 {q2(vA0)}, v{vZ}, {WS}, s51 offen sc1
        s_mov_b64 exec, -1
        """)
        stamp(5)
        if LW and P['lk']:
            for n in range(4): g(f"s_mov_b32 s{80+n}, {RK1 + 2*n*RKS}")
            for n in range(4): g(f"buffer_load_dwordx2 {q2(KT[n])}, v{vRK}, {WS}, s{80+n} offen sc1")
            g("s_waitcnt vmcnt(0)"); g("s_mov_b32 s77, 0")
            for n in range(4):
                g(f"v_cmp_eq_u32 s[96:97], s{sE}, v{KT[n]+1}")
                g(f"v_cmp_gt_u32 vcc, s49, v{KT[n]}"); g("s_and_b64 vcc, vcc, s[96:97]")
                g("s_bcnt1_i32_b64 s76, vcc"); g("s_add_u32 s77, s77, s76")
            if P['lw2']:
                g(f"s_sub_u32 s76, s77, {LW}"); g(f"s_mul_i32 s76, s76, {P['lw2']}"); g("s_ashr_i32 s76, s76, 4"); g(f"s_add_u32 s76, s76, {R1}")
                g(f"s_cmp_ge_u32 s77, {LW}"); g("s_cselect_b32 s76, s76, -1")
            else:
                g(f"s_cmp_ge_u32 s77, {LW}"); g("s_cselect_b32 s76, 200, -1")
            if P['LA']:
                g(f"s_sub_u32 s96, {P['LA']}, s77"); g(f"s_mul_i32 s96, s96, {P['lc']}"); g("s_ashr_i32 s96, s96, 4")
                g(f"s_min_i32 s96, s96, {P['lm']}"); g(f"s_sub_i32 s96, {-R1}, s96")
                g(f"s_cmp_lt_u32 s77, {P['LA']}"); g("s_cselect_b32 s76, s96, s76")
                g(f"s_cmp_lt_u32 s77, {P['LS']}"); g(f"s_cselect_b32 s76, {200 if P['lb'] else -1}, s76")
            g(f"v_mov_b32 v{t0}, s76")
            g(f"ds_write_b32 v{vZ}, v{t0} offset:{THR}")
        elif LW:
            for n in range(4): g(f"s_mov_b32 s{80+n}, {RK + 2*n*RKS + 4}")
            for n in range(4): g(f"buffer_load_dword v{KT[n]}, v{vRK}, {WS}, s{80+n} offen sc1")
            g("s_waitcnt vmcnt(0)"); g("s_mov_b32 s77, 0")
            for n in range(4):
                g(f"v_cmp_eq_u32 vcc, s{sE}, v{KT[n]}"); g("s_bcnt1_i32_b64 s76, vcc"); g("s_add_u32 s77, s77, s76")
            g(f"s_cmp_ge_u32 s77, {LW}"); g("s_cselect_b32 s76, 200, -1")
            g(f"v_mov_b32 v{t0}, s76")
            g(f"ds_write_b32 v{vZ}, v{t0} offset:{THR}")
        if P['mpp'] == 0: mallpf()
        wait_pct("L_pc", 0xffff)
        stamp(11)
        g(f"s_mov_b32 s{sCNT}, 0")
        for n in range(4): g(f"s_mov_b32 s{80+n}, {RK + 2*n*RKS}")
        g.label("L_al")
        for n in range(4): g(f"buffer_load_dwordx2 {q2(KT[n])}, v{vRK}, {WS}, s{80+n} offen sc1")
        g(f"buffer_load_dwordx2 {q2(KT[4])}, v{vRO}, {WS}, s50 offen sc1")
        if P['lx']: g(f"buffer_load_dwordx2 {q2(t0)}, v{T[5]}, {WS}, s89 offen sc1")
        g("s_waitcnt vmcnt(0)")
        for n in range(5): g(f"v_xor_b32 v{KT[n]+1}, s{sE}, v{KT[n]+1}")
        if P['lx']:
            g(f"v_xor_b32 v{t1}, s{sE}, v{t1}"); g(f"v_or_b32 v{KT[0]+1}, v{KT[0]+1}, v{t1}")
        g(f"v_or3_b32 v{t1}, v{KT[0]+1}, v{KT[1]+1}, v{KT[2]+1}")
        g(f"v_or3_b32 v{t1}, v{t1}, v{KT[3]+1}, v{KT[4]+1}")
        g(f"v_cmp_ne_u32 vcc, 0, v{t1}")
        g("s_cbranch_vccz L_al_ok")
        spin_tail("L_al", LIM, P['asl'])
    else:
        publish("L_np2", RK)
        if P['S1']:
            wait_pct("L_pm", 0xff)
            stamp(5)
        wait_pct("L_pc", 0xffff)
        stamp(11)
        if P['tk']:
            g(f"v_mov_b32 v{vTK}, 1")
            g("s_mov_b64 exec, 1")
            g(f"global_atomic_add v{vTK}, v{vZ}, v{vTK}, s[24:25] sc0 sc1")
            g("s_mov_b64 exec, -1")
        read_table("L_al", RK, LIM)
    g.label("L_al_ok")
    if P['lx']: mkfac()
    g("s_cmp_lg_u32 s2, 0"); g("s_cbranch_scc1 L_noep")
    g("s_mov_b64 exec, 1")
    g(f"buffer_store_dword v{vA0+1}, v{vZ}, {WS}, 0 offen offset:{EPW} sc1")
    g("s_mov_b64 exec, -1")
    g.label("L_noep")
    if P['wk']:
        g(f"""
        v_cmp_gt_u32 vcc, s98, v{KT[4]}
        s_bcnt1_i32_b32 s51, vcc_lo
        v_cmp_lt_u32 vcc, s98, v{KT[4]}
        v_cndmask_b32 v{t0}, -1, v{KT[4]}, vcc
        """)
        allred("v_min_u32", [t0], [t1], rows=2)
        g(f"""
        v_readfirstlane_b32 s76, v{t0}
        s_and_b32 s96, s51, 1
        s_cselect_b32 s76, s98, s76
        """)
        for n in range(4):
            g(f"v_cmp_gt_u32 s[{80+2*(n&1)}:{81+2*(n&1)}], s76, v{KT[n]}")
            if n & 1:
                for k in range(4):
                    g(f"s_bcnt1_i32_b32 s77, s{80+k}"); g("s_andn2_b32 s77, s77, 1"); g("s_add_u32 s96, s96, s77")
    if P['tk'] or P['wk']:
        if P['tk']: g(f"v_readfirstlane_b32 s96, v{vTK}")
        g(f"""
        s_and_b32 s96, s96, 255
        s_sub_u32 s76, s96, 18
        s_mul_i32 s77, s76, 147
        s_lshr_b32 s77, s77, 11
        s_mul_i32 s97, s77, 14
        s_sub_u32 s76, s76, s97
        s_cmp_ge_u32 s76, 6
        s_cselect_b32 s97, 2, 0
        s_add_u32 s76, s76, s97
        s_lshl_b32 s77, s77, 4
        s_add_u32 s76, s76, s77
        s_lshr_b32 s77, s96, 1
        s_lshl_b32 s77, s77, 4
        s_and_b32 s97, s96, 1
        s_add_u32 s77, s77, s97
        s_add_u32 s77, s77, 6
        s_cmp_lt_u32 s96, 18
        s_cselect_b32 s76, s77, s76
        s_cmp_lt_u32 s96, 144
        s_cselect_b32 s{sRo}, s76, s96
        """)
    elif P['dyn']:
        g(f"""
        v_readlane_b32 s96, v{t0}, s50
        v_cmp_gt_u32 vcc, s96, v{t0}
        s_bcnt1_i32_b64 s96, vcc
        """)
        if P['bfirst']:
            g(f"""
            s_add_u32 s97, s96, 36
            s_sub_u32 s76, s96, 18
            s_cmp_lt_u32 s96, 18
            s_cselect_b32 s97, s97, s76
            s_cmp_lt_u32 s96, 54
            s_cselect_b32 s96, s97, s96
            """)
        if P['slowf']:
            g(f"""
            s_sub_u32 s76, s96, 9
            s_mul_i32 s77, s76, 43
            s_lshr_b32 s77, s77, 7
            s_mul_i32 s97, s77, 3
            s_sub_u32 s76, s76, s97
            s_cmp_ge_u32 s76, 1
            s_addc_u32 s76, s76, 0
            s_lshl_b32 s77, s77, 2
            s_add_u32 s76, s76, s77
            s_lshl_b32 s77, s96, 2
            s_add_u32 s77, s77, 1
            s_cmp_lt_u32 s96, 9
            s_cselect_b32 s76, s77, s76
            s_cmp_lt_u32 s96, 36
            s_cselect_b32 s96, s76, s96
            """)
        g(f"s_lshl_b32 s{sRo}, s96, 2"); g(f"s_add_u32 s{sRo}, s{sRo}, s51")
        if P.get('bx', 1):
            g(f"""
            s_sub_u32 s76, s{sRo}, 144
            s_mul_i32 s77, s76, 57
            s_lshr_b32 s77, s77, 9
            s_mul_i32 s97, s77, 9
            s_sub_u32 s97, s76, s97
            s_lshl_b32 s97, s97, 3
            s_add_u32 s97, s97, s77
            s_add_u32 s97, s97, 144
            s_cmp_lt_u32 s76, 72
            s_cselect_b32 s{sRo}, s97, s{sRo}
            """)
    else:
        g(f"""
        s_mul_i32 s{sRo}, s{sX}, 18
        s_add_u32 s{sRo}, s{sRo}, s{sI}
        s_cmp_lt_u32 s{sI}, 18
        s_cselect_b32 s{sRo}, s{sRo}, s2
        """)
    g(f"s_and_b32 s{sTG}, s{sE}, 255"); g(f"s_movk_i32 s{sFF}, 0xff")
    g(f"s_lshl_b32 s76, s{sTG}, 16"); g(f"s_or_b32 s76, s76, s{sRo}")
    g(f"v_mov_b32 v{t0}, s76")
    g(f"ds_write_b32 v{vZ}, v{t0} offset:{ROLE}")
    stamp(12); stamp_flush()
    g(f"s_cmp_lt_u32 s{sRo}, 216"); g("s_cbranch_scc0 L_fin")
    srd(44, 20, 21, 4608 * 1152)
    g(f"""
    s_mov_b32 m0, {WL}
    s_mov_b32 s{sK}, 0
    s_mov_b32 s{sCNT}, 0
    """)
    g(f"s_cmp_lt_u32 s{sRo}, 144"); g("s_cbranch_scc1 L_hf2")
    srd(36, 12, 13, 4096 * 1152); srd(40, 12, 13, 4096 * 1152)
    g(f"""
    s_sub_u32 s{sU}, s{sRo}, 144
    s_and_b32 s{sXb}, s{sU}, 7
    s_lshr_b32 s77, s{sU}, 3
    s_mul_i32 s{sQo}, s{sXb}, {512*1152}
    s_lshl_b32 s77, s77, 7
    s_add_u32 s{sQo}, s{sQo}, s77
    s_add_u32 s{sTo}, s{sQo}, {8*1152}
    s_mov_b32 s{sSt}, {16*1152}
    s_mov_b32 s{sN}, 32
    s_mov_b32 s88, 0xff00
    s_mov_b32 s89, {P['tcnt']<<8}
    v_lshrrev_b32 v{T[2]}, 3, v{vL}
    v_mul_u32_u24 v{T[2]}, 1152, v{T[2]}
    v_and_b32 v{T[3]}, 1, v{vG}
    v_lshlrev_b32 v{T[3]}, 1, v{T[3]}
    v_and_b32 v{T[4]}, 7, v{vL}
    v_xor_b32 v{T[3]}, v{T[3]}, v{T[4]}
    v_lshl_add_u32 v{vD0}, v{T[3]}, 4, v{T[2]}
    v_xor_b32 v{T[3]}, 4, v{T[3]}
    v_lshl_add_u32 v{vD1}, v{T[3]}, 4, v{T[2]}
    s_branch L_is
    """)
    g.label("L_hf2")
    srd(36, 16, 17, 576 * 9216); srd(40, 18, 19, 576 * 9216)
    g(f"""
    s_lshl_b32 s{sQo}, s{sRo}, 6
    s_mov_b32 s50, s{sQo}
    s_and_b32 s76, s{sRo}, {P['prot']}
    s_mul_i32 s77, s76, {18*16*9216}
    s_add_u32 s{sQo}, s{sQo}, s77
    s_mul_i32 s77, s76, {18*2048}
    s_add_u32 m0, m0, s77
    s_mov_b32 s{sTo}, s{sQo}
    s_mov_b32 s{sSt}, {16*9216}
    s_mov_b32 s{sN}, 36
    s_mov_b32 s88, 255
    s_mov_b32 s89, {P['tcnt']}
    s_mul_i32 s{sKo}, s{sRo}, 36864
    v_lshrrev_b32 v{T[2]}, 2, v{vL}
    v_mul_u32_u24 v{T[2]}, 9216, v{T[2]}
    v_lshrrev_b32 v{T[3]}, 5, v{vL}
    v_lshlrev_b32 v{T[3]}, 1, v{T[3]}
    v_and_b32 v{T[4]}, 3, v{vL}
    v_xor_b32 v{T[3]}, v{T[3]}, v{T[4]}
    v_lshl_add_u32 v{vD0}, v{T[3]}, 4, v{T[2]}
    v_mov_b32 v{vD1}, v{vD0}
    """)
    vC0, vC1 = T[8], T[9]
    if P['coop']:
        g(f"""
        s_and_b32 s76, s{sRo}, 1
        v_bfe_u32 v{T[2]}, v{vL}, 2, 3
        v_mul_u32_u24 v{T[2]}, 9216, v{T[2]}
        v_lshrrev_b32 v{T[3]}, 5, v{vL}
        v_xor_b32 v{T[3]}, s76, v{T[3]}
        v_lshl_add_u32 v{T[2]}, v{T[3]}, 6, v{T[2]}
        v_lshl_add_u32 v{vC0}, v{T[4]}, 4, v{T[2]}
        v_xor_b32 v{vC1}, 32, v{vC0}
        v_add_u32 v{vC1}, {8*9216}, v{vC1}
        s_mul_i32 s77, s76, {288*9216}
        s_andn2_b32 s50, s{sQo}, 64
        s_add_u32 s50, s50, s77
        s_mul_i32 s77, s76, {18*2048}
        s_add_u32 m0, m0, s77
        s_xor_b32 s76, s76, 1
        s_mul_i32 s51, s76, {18*2048}
        s_add_u32 s51, s51, {WL}
        s_mul_i32 s77, s76, {288*9216}
        s_add_u32 s{sQo}, s{sQo}, s77
        s_mov_b32 s{sTo}, s{sQo}
        """)
    if P['se']:
        g(f"s_bfe_u32 s76, s{sRo}, 0x30001"); g("s_cmp_lg_u32 s76, 3"); g("s_cbranch_scc1 L_is")
        g.label("L_se")
        g(f"ds_read_b32 v{t0}, v{vZ} offset:{ISS}")
        pair(P['Dse'] - 1)
        g.lgk(0)
        g(f"v_readfirstlane_b32 s76, v{t0}")
        g("s_add_u32 s76, s76, 1"); g("s_and_b32 s76, s76, s88"); g("s_cmp_ge_u32 s76, s89"); g("s_cbranch_scc1 L_is_ok")
        g(f"s_cmp_lt_u32 s{sK}, {P['se']}"); g("s_cbranch_scc1 L_se")
    g.flush()
    g.label("L_is")
    g(f"ds_read_b32 v{t0}, v{vZ} offset:{ISS}")
    g.lgk(0)
    g(f"v_readfirstlane_b32 s76, v{t0}")
    g("s_add_u32 s76, s76, 1")
    g("s_and_b32 s76, s76, s88")
    g("s_cmp_gt_u32 s76, s89") if False else g("s_cmp_ge_u32 s76, s89")
    g("s_cbranch_scc1 L_is_ok")
    spin_tail("L_is", 20 * LIM, P['isl'])
    g.label("L_is_ok")
    stamp(13); stamp_flush()
    if P['exp'] & 8: g("s_branch L_fin")
    if P['coop']:
        g(f"s_cmp_lt_u32 s{sRo}, 144"); g("s_cbranch_scc0 L_nc")
        g.label("L_co")
        for sr in (W1, W2):
            for v in (vC0, vC1):
                g(f"s_waitcnt vmcnt({P['Dc']})")
                g(f"buffer_load_dwordx4 v{v}, {sr}, s50 offen {P['polc'].replace('+', ' ').replace('def', '')} lds")
                g("s_add_u32 m0, m0, 512")
        g(f"s_add_u32 s50, s50, s{sSt}")
        g(f"s_add_u32 s{sK}, s{sK}, 1")
        g(f"s_cmp_lt_u32 s{sK}, 18"); g("s_cbranch_scc1 L_co")
        g("s_mov_b32 m0, s51")
        g.label("L_nc")
    if P['B1']:
        g(f"s_cmp_ge_u32 s{sK}, {P['B1']}"); g("s_cbranch_scc1 L_d1")
        g.label("L_d0")
        pair(60)
        g(f"s_cmp_lt_u32 s{sK}, {P['B1']}"); g("s_cbranch_scc1 L_d0")
    g.label("L_d1")
    g(f"s_cmp_ge_u32 s{sK}, s{sN}"); g("s_cbranch_scc1 L_d3")
    g(f"ds_read_b32 v{t0}, v{vZ} offset:{CNT}")
    pair(P['Dw1'] - 1)
    g.lgk(0)
    g(f"v_readfirstlane_b32 s76, v{t0}")
    g("s_cmp_lt_i32 s76, 8"); g("s_cbranch_scc1 L_d1")
    g.label("L_d2")
    g(f"s_cmp_ge_u32 s{sK}, s{sN}"); g("s_cbranch_scc1 L_d3")
    pair(P['Dw2'])
    g("s_branch L_d2")
    g.label("L_d3")
    g(f"s_mov_b32 m0, {WD}")
    g(f"s_cmp_lt_u32 s{sRo}, 144"); g("s_cbranch_scc0 L_red")
    for e in range(36 if FO != 1 else 0):
        if e >= 2: g(f"s_waitcnt vmcnt({P['Dw2']})")
        g(f"buffer_load_dwordx4 v{vL16}, {W3}, s{sKo} offen offset:{(e&3)*1024} {P['pol']} lds")
        if e & 3 == 3 and e < 35:
            g(f"s_add_u32 m0, m0, 4096"); g(f"s_add_u32 s{sKo}, s{sKo}, 4096")
    g("s_branch L_ffn")

    new_path("L_red")
    if P['bp']:
        g(f"v_mov_b32 v{T[0]}, -2")
        g(f"s_waitcnt vmcnt({P['bN']})")
        g(f"ds_write_b32 v{vZ}, v{T[0]} offset:{WF}")
    g("s_waitcnt vmcnt(0)")
    if P['bp']: g(f"ds_write_b32 v{vZ}, v{vZ} offset:{WF}")
    stamp(7); stamp_flush()
    if not P['bp']: g("s_barrier")
    srd(60, 22, 23, 2304)
    g(f"""
    s_lshr_b32 s77, s{sU}, 3
    s_lshr_b32 s76, s{sXb}, 2
    s_lshl_b32 s76, s76, 5
    s_and_b32 s70, s{sXb}, 1
    s_lshl_b32 s70, s70, 3
    s_add_u32 s76, s76, s70
    v_and_b32 v{T[0]}, 3, v{vL}
    v_lshl_add_u32 v{T[1]}, v{T[0]}, 1, s76
    v_lshrrev_b32 v{T[2]}, 1, v{vG}
    v_add_u32 v{T[1]}, v{T[1]}, v{T[2]}
    v_and_b32 v{T[2]}, 1, v{vG}
    v_lshl_add_u32 v{T[1]}, v{T[2]}, 4, v{T[1]}
    v_lshlrev_b32 v{T[3]}, 1, v{T[1]}
    v_lshrrev_b32 v{T[4]}, 2, v{vJ}
    v_lshlrev_b32 v{T[4]}, {8 if YH else 9}, v{T[4]}
    v_lshl_add_u32 v{T[4]}, v{T[1]}, {1 if YH else 2}, v{T[4]}
    s_bfe_u32 s76, s{sXb}, 0x10001
    s_mul_i32 s71, s76, 1152
    s_lshl_b32 s72, s77, 7
    s_add_u32 s71, s71, s72
    s_lshl_b32 s76, s76, {7 if YH else 8}
    s_and_b32 s70, s{sX}, {P['NREP']-1}
    s_mul_i32 s70, s70, {YR_}
    s_add_u32 s70, s70, s76
    s_lshl_b32 s76, s77, {11 if YH else 12}
    s_add_u32 s70, s70, s76
    s_add_u32 s70, s70, {YP}
    s_mov_b32 s76, s{sU}
    """)
    g(f"buffer_load_ushort v{T[9]}, v{T[3]}, {XS}, s71 offen")
    if P['dbl'] == 0:
        g(f"""
        v_lshrrev_b32 v{T[5]}, 2, v{vL}
        v_mul_u32_u24 v{T[5]}, 4608, v{T[5]}
        v_lshl_add_u32 v{T[5]}, v{T[0]}, 4, v{T[5]}
        s_lshl_b32 s76, s76, 6
        s_add_u32 s76, s76, {DB}
        """)
        for n in range(9): g(f"s_add_u32 s{28+n}, s76, {n*16*4608}")
        dsrc = lambda n: f"v{T[5]}, {WS}, s{28+n} offen"
    else:
        g(f"s_mul_i32 s76, s76, 9216"); g(f"s_add_u32 s76, s76, {DB}")
        for n in range(3): g(f"s_add_u32 s{28+n}, s76, {n*4096}")
        dsrc = lambda n: f"v{vL16}, {WS}, s{28+(n>>2)} offen offset:{(n&3)*1024}"
    YR = POOL[0:9]
    sMs = [f"s[{a}:{a+1}]" for a in (38, 40, 42, 44, 46, 48, 50, 80, 82)]
    for n in range(9): g(f"s_mov_b64 {sMs[n]}, -1")
    g(f"s_mov_b32 s{sCNT}, 0")
    g("s_barrier")
    g.label("L_r1")
    g(f"s_sleep {P['r1sleep']}")
    if YH:
        g(f"buffer_load_ushort v{T[10]}, v{T[4]}, {WS}, s70 offen sc1")
        g(f"buffer_load_ushort v{T[11]}, v{T[4]}, {WS}, s70 offen offset:1024 sc1")
        g("s_waitcnt vmcnt(0)")
        g(f"v_max_u32 v{T[8]}, v{T[10]}, v{T[11]}")
        g(f"v_cvt_f32_f16 v{T[10]}, v{T[10]}"); g(f"v_cvt_f32_f16 v{T[11]}, v{T[11]}")
        g(f"v_cmp_eq_u32 vcc, 0xffff, v{T[8]}")
    else:
        g(f"buffer_load_dword v{T[10]}, v{T[4]}, {WS}, s70 offen sc1")
        g(f"buffer_load_dword v{T[11]}, v{T[4]}, {WS}, s70 offen offset:2048 sc1")
        g("s_waitcnt vmcnt(0)")
        g(f"v_xor_b32 v{T[10]}, s{sTG}, v{T[10]}"); g(f"v_xor_b32 v{T[11]}, s{sTG}, v{T[11]}")
        g(f"v_or_b32 v{T[8]}, v{T[10]}, v{T[11]}")
        g(f"v_cmp_ne_u32_sdwa vcc, v{T[8]}, v{vZ} src0_sel:BYTE_0 src1_sel:DWORD")
    g("s_cbranch_vccz L_r1_ok")
    spin_tail("L_r1", LIM)
    g.label("L_r1_ok")
    stamp(8)
    g(f"v_add_f32_dpp v{T[10]}, v{T[10]}, v{T[10]} row_ror:8 row_mask:0xf bank_mask:0xf")
    g(f"v_add_f32_dpp v{T[11]}, v{T[11]}, v{T[11]} row_ror:8 row_mask:0xf bank_mask:0xf")
    g(f"v_add_f32 v{T[10]}, v{T[10]}, v{T[11]}")
    g(f"v_add_f32_dpp v{T[10]}, v{T[10]}, v{T[10]} row_ror:4 row_mask:0xf bank_mask:0xf")
    bf16r(T[10], T[10])
    g(f"v_lshlrev_b32 v{T[9]}, 16, v{T[9]}")
    g(f"v_add_f32 v{T[10]}, v{T[10]}, v{T[9]}")
    bf16r(T[10], T[10])
    g(f"s_mov_b32 s{sCNT}, 0")
    if P['r2d']: g(f"s_sleep {P['r2d']}")
    for _ in range(P['pd3'] - 1):
        for n in range(9):
            g(f"buffer_load_dwordx4 {q4(YR[n])}, {dsrc(n)} sc1")
        g(f"s_sleep {P['pg'] * 2 // P['pd3']}")
    g.label("L_r2")
    for n in range(9):
        g(f"s_or_b64 exec, {sMs[n]}, 1")
        g(f"buffer_load_dwordx4 {q4(YR[n])}, {dsrc(n)} sc1")
    g("s_mov_b64 exec, -1")
    ZR = POOL[9:18]; OR = POOL[18]
    y = vA0
    for n in range(9):
        g(f"s_waitcnt vmcnt({8-n + 9 * (P['pd3'] - 1)})")
        for r in range(4): g(f"v_xor_b32 v{ZR[n]+r}, s{sTG}, v{YR[n]+r}")
        g(f"v_or3_b32 v{OR+n}, v{ZR[n]}, v{ZR[n]+1}, v{ZR[n]+2}")
        if n == 1:
            for hh in (0, 2): g(f"v_pk_add_f32 {q2(y+hh)}, {q2(ZR[0]+hh)}, {q2(ZR[1]+hh)}")
        if n >= 2:
            for hh in (0, 2): g(f"v_pk_add_f32 {q2(y+hh)}, {q2(y+hh)}, {q2(ZR[n]+hh)}")
        g(f"v_or_b32 v{OR+n}, v{OR+n}, v{ZR[n]+3}")
        if n == 1: g(f"v_or_b32 v{T[8]}, v{OR}, v{OR+1}")
        if n >= 2: g(f"v_or_b32 v{T[8]}, v{T[8]}, v{OR+n}")
    g(f"v_cmp_ne_u32_sdwa vcc, v{T[8]}, v{vZ} src0_sel:BYTE_0 src1_sel:DWORD")
    g(f"v_permlane16_swap_b32 v{y}, v{y+1}")
    g(f"v_permlane16_swap_b32 v{y+2}, v{y+3}")
    g(f"v_add_f32 v{y}, v{y}, v{y+1}")
    g(f"v_add_f32 v{y+2}, v{y+2}, v{y+3}")
    g(f"v_permlane32_swap_b32 v{y}, v{y+2}")
    g(f"v_add_f32 v{y}, v{y}, v{y+2}")
    g(f"v_add_f32_dpp v{y}, v{y}, v{y} row_ror:4 row_mask:0xf bank_mask:0xf")
    g(f"v_add_f32_dpp v{y}, v{y}, v{y} row_ror:8 row_mask:0xf bank_mask:0xf")
    g(f"v_cvt_pk_bf16_f32 v{y}, v{y}, v{y}")
    g(f"v_and_b32 v{y}, 0xffff0000, v{y}")
    g(f"v_add_f32 v{y}, v{y}, v{T[10]}")
    g(f"v_cvt_pk_bf16_f32 v{y}, v{y}, v{y}")
    g("s_cbranch_vccz L_r2_ok")
    for n in range(9):
        g(f"v_cmp_ne_u32_sdwa {sMs[n]}, v{OR+n}, v{vZ} src0_sel:BYTE_0 src1_sel:DWORD")
    spin_tail("L_r2", 3 * LIM, P['ps3'])
    g.label("L_r2_ok")
    stamp(9)
    g("s_mov_b32 exec_lo, 0x000f000f"); g("s_mov_b32 exec_hi, 0x000f000f")
    g(f"buffer_store_short v{y}, v{T[3]}, {OUT}, s71 offen {P.get('pout', '').replace('+', ' ')}")
    g("s_mov_b64 exec, -1")
    if P['stamps']:
        g("s_waitcnt vmcnt(0)")
        stamp(10)
        stamp_flush()
    if P['padto']:
        g.label("L_pad")
        g("s_memrealtime s[96:97]"); g("s_waitcnt lgkmcnt(0)"); g("s_sub_u32 s96, s96, s94")
        g(f"s_cmp_lt_u32 s96, {P['padto']}"); g("s_cbranch_scc1 L_pad")
    g.flush()
    g.label("L_fin")
    g.hist = []
    nst[0] = 0
    stamp_end()
    g("s_endpgm")
    g.label("L_end")
    g("s_endpgm")

    tail = ['.section .rodata,"a"', ".p2align 6", f".amdhsa_kernel {KN}",
            "  .amdhsa_next_free_vgpr 168", "  .amdhsa_next_free_sgpr 102", "  .amdhsa_accum_offset 168",
            "  .amdhsa_group_segment_fixed_size 0", "  .amdhsa_kernarg_size 96", "  .amdhsa_user_sgpr_count 2",
            "  .amdhsa_user_sgpr_kernarg_segment_ptr 1", "  .amdhsa_system_sgpr_workgroup_id_x 1", ".end_amdhsa_kernel"]
    if P['stamps']:
        hdr.insert(1, "; ORDER S6")
    return "\n".join(hdr) + "\n" + g.text() + "\n".join(tail) + "\n"


if __name__ == "__main__":
    out = sys.argv[1]
    kw = {}
    for a in sys.argv[2:]:
        k, v = a.split('=')
        try:
            v = int(v)
        except ValueError:
            try:
                v = float(v)
            except ValueError:
                pass
        kw[k] = v
    open(out, 'w').write(gen(**kw))
```

```python
import sys, os, struct, math
sys.path.insert(0, os.path.dirname(os.path.abspath(__file__)))
from asmlib import Gen

KN = "sequential_preLN__mha_block_cached__glu_gated_geglu__decode_kernel"

EPW = 0
RK = 16384
RKS = 4352
RK1 = RK + 2048
LSX = 8192
ORW = 64 << 10
YP = 128 << 10
DB = 448 << 10
QP = 1152 << 10
WSN = 2 << 20
QS = 0
MLS = 256
FAC = 320
ISS = 352
CNT = 356
ROLE = 360
PCT = 364
THR = 368
WF = 372
OB = 512
GUL = 4608
STB = 13824
ACT = 14336
WL = 16384
WD = WL + 72 * 1024
LDS_BYTES = WD + 36 * 1024

DEF = dict(rot=5, L0=28, D=3, frac=0, fr8=16, I0=0, I1=0, bud=40, FX=60, trig=127, trigb=127, tcnt=8, Dw1=32, Dw2=60, pre3=0, preb=0, pref=0, Dp=2,
           stamps=0, prog=0, pol="nt", polq="nt", warm=1, LIMIT=20000, qsleep=20, prio=1, exp=0, dbl=0, r1sleep=8, ps1=0, ps2=0, ps3=0,
           ctl=0, cth=3, csl=32, NRW=8, rsel=1, padto=0, asl=40, isl=8, tw=0, twb=0, tlb=0, polg=None, pst='sc1', sdel=0, S0=116, NQ=24, qd=0, qg=4, prot=0, B1=16, NREP=8, C1=0, R1=60, kw=51, kn=26, dead=20, XW=1, csl1=8, dyn=1, bfirst=0, slowf=1, rsl=8,
           pd1=1, pd2=1, pd3=2, pg=10, se=0, Dse=8, coop=0, Dc=60, polc='nt', tk=0, S1=90, wk=1, NW1=1, bp=1, bN=12, mp=0, polm='def', lw=0, lx=1, r2d=0, fo=0, fN=16, yh=1, fE=1, lk=0, lw2=0, LS=30, LA=0, lc=4, lb=0, lm=12, wx=0, wx2=0, eb=0, ex=0, sp=0, spa=0, sd=0, sds=128, sdo=0, mpp=0, mpo=384, wso=0, sea=0, Dsf=4, seb=0, px=0, pxs=0, q4d=0, dprio=0, isl2=-1, rb=0, rb1=300, rb2=144, rbe=200, rbf=200)


def q4(b): return f"v[{b}:{b+3}]"
def q2(b): return f"v[{b}:{b+1}]"
f2h = lambda f: "0x%08x" % struct.unpack('<I', struct.pack('<f', f))[0]


def gen(**kw):
    P = dict(DEF); P.update(kw)
    g = Gen()
    YH = P['yh']
    if YH: P['NREP'] = YH
    YR_ = 18432 if YH else 36864
    L0 = P['L0']; D = P['D']; LIM = P['LIMIT']
    SENT = '; ' if P['exp'] & 16 else ''
    P['pst'] = P['pst'].replace('+', ' ')
    POLG = P['pol'] if P['polg'] is None else ('' if P['polg'] == 'def' else P['polg'])
    hdr = []
    hdr.append(f"; @launch grid=(256,1,1) block=(576,1,1) lds={163840 if P['qd'] or P.get('bigl') else LDS_BYTES}")
    hdr.append('.amdgcn_target "amdgcn-amd-amdhsa--gfx950"')
    hdr += [".text", f".globl {KN}", ".p2align 8", f".type {KN},@function", f"{KN}:"]

    vL, vG, vJ, vK, vZ, vM, vST, vCNT = 1, 2, 3, 4, 5, 6, 10, 11
    vQ, vS, vACC, vA0, vA1 = 12, 16, 20, 24, 28
    T = list(range(32, 44))
    vMW, vFAC = T[8], T[10]
    POOL = list(range(44, 168, 4))
    pool = list(POOL)
    KS, VS, W1, W2, W3, _u, WS, XS, OUT = [f"s[{a}:{a+3}]" for a in range(28, 64, 4)]
    sW, sC, sB, sH, sI, sX = 64, 65, 66, 67, 68, 69
    sKo, sN, sQo, sTo, sR, sE = 70, 71, 72, 73, 74, 75
    sSt, sK = 78, 79
    sMK = {1: "s[80:81]", 2: "s[82:83]", 3: "s[84:85]"}
    sONE, sCNT = 86, 87
    sINV = 91
    sRo, sU, sXb = 100, 101, 90
    sTG, sFF = 75, 74

    nst = [0]
    def stamp(k):
        if not P['stamps']:
            return
        g.lgk(0)
        if nst[0]:
            g(f"v_writelane_b32 v{vST}, s92, {nst[0]-1}")
        g("s_memrealtime s[92:93]")
        nst[0] = k + 1
    def stamp_flush():
        if P['stamps'] and nst[0]:
            g.lgk(0)
            g(f"v_writelane_b32 v{vST}, s92, {nst[0]-1}")
            nst[0] = 0
    def stamp_end():
        if not P['stamps']:
            return
        stamp(15)
        stamp_flush()
        g(f"s_add_u32 s96, s{sRo}, 1"); g(f"v_writelane_b32 v{vST}, s96, 14")
        g(f"s_sub_u32 s94, s26, {P['wso']<<20}"); g("s_subb_u32 s95, s27, 0"); g(f"s_add_u32 s94, s94, {260<<20}"); g("s_addc_u32 s95, s95, 0")
        g(f"s_mul_i32 s96, s2, 9"); g(f"s_add_u32 s96, s96, s{sW}"); g("s_lshl_b32 s96, s96, 8")
        g(f"v_lshlrev_b32 v{T[0]}, 2, v{vL}"); g(f"v_add_u32 v{T[0]}, s96, v{T[0]}")
        g(f"global_store_dword v{T[0]}, v{vST}, s[94:95]")

    def bf16r(d, s):
        g(f"v_cvt_pk_bf16_f32 v{d}, v{s}, v{s}")
        g(f"v_and_b32 v{d}, 0xffff0000, v{d}")

    def allred(op, regs, tmps, rows=4):
        for sh in (8, 4, 2, 1):
            for r in regs:
                g(f"{op}_dpp v{r}, v{r}, v{r} row_ror:{sh} row_mask:0xf bank_mask:0xf")
        for sw in (("16", "32") if rows == 4 else ("16",)):
            for r, t in zip(regs, tmps):
                g(f"v_mov_b32 v{t}, v{r}")
            for r, t in zip(regs, tmps):
                g(f"v_permlane{sw}_swap_b32 v{r}, v{t}")
            for r, t in zip(regs, tmps):
                g(f"{op} v{r}, v{r}, v{t}")

    def ln_ops(sm, sq, t):
        r = lambda d: [f"v_cvt_pk_bf16_f32 v{d}, v{d}, v{d}", f"v_and_b32 v{d}, 0xffff0000, v{d}"]
        return ([f"v_mul_f32 v{sm}, s{sINV}, v{sm}", f"v_mul_f32 v{t}, v{sm}, v{sm}", f"v_fma_f32 v{sq}, v{sq}, s{sINV}, -v{t}",
                 f"v_max_f32 v{sq}, 0, v{sq}"] + r(sq) + [f"v_add_f32 v{sq}, 0x3727c5ac, v{sq}"] + r(sq) + [f"v_sqrt_f32 v{sq}, v{sq}"] + r(sm) + r(sq)
                + [f"v_rcp_f32 v{sq}, v{sq}"])

    def untracked(text):
        g.emit(text); g.vm_issued -= 1

    def srd(base, lo, hi, n):
        g(f"s_mov_b32 s{base}, s{lo}"); g(f"s_mov_b32 s{base+1}, s{hi}"); g(f"s_mov_b32 s{base+2}, {n}"); g(f"s_mov_b32 s{base+3}, 0x20000")

    def spin_tail(lab, n, sl=0):
        if sl: g(f"s_sleep {sl}")
        g(f"s_add_u32 s{sCNT}, s{sCNT}, 1")
        g(f"s_cmp_lt_u32 s{sCNT}, {n}"); g(f"s_cbranch_scc1 {lab}")

    def lds_inc(off, val=1):
        g(f"v_mov_b32 v{vCNT}, {val}")
        g("s_mov_b64 exec, 1")
        g(f"ds_add_u32 v{vZ}, v{vCNT} offset:{off}")
        g("s_mov_b64 exec, -1")

    def new_path(label):
        g.flush()
        g.label(label)
        g.hist = []
        g.vm_issued = 0; g.vm_done = 0

    g("s_cmp_ge_u32 s2, 256"); g("s_cbranch_scc1 L_end")
    g("s_load_dwordx16 s[4:19], s[0:1], 0")
    g("s_load_dwordx8 s[20:27], s[0:1], 64")
    if P['padto']:
        g("s_memrealtime s[94:95]")
    if P['stamps']:
        g("s_memrealtime s[92:93]"); nst[0] = 1
        g(f"v_mov_b32 v{vST}, 0"); g(f"s_mov_b32 s{sRo}, 300")
    g(f"""
    v_lshrrev_b32 v{T[0]}, 6, v0
    v_and_b32 v{vL}, 63, v0
    s_and_b32 s{sX}, s2, 7
    v_readfirstlane_b32 s{sW}, v{T[0]}
    s_lshr_b32 s{sI}, s2, 3
    s_lshr_b32 s{sB}, s{sI}, 4
    s_and_b32 s76, s{sI}, 15
    s_lshl_b32 s77, s{sX}, 4
    s_add_u32 s76, s76, s77
    s_lshr_b32 s{sH}, s76, 2
    s_lshl_b32 s{sC}, s{sB}, 7
    s_add_u32 s{sC}, s{sC}, s76
    v_lshlrev_b32 v{T[1]}, 4, v{vL}
    v_lshl_add_u32 v{vK}, v{T[0]}, 12, v{T[1]}
    v_lshrrev_b32 v{vG}, 4, v{vL}
    v_and_b32 v{vJ}, 15, v{vL}
    s_cmp_eq_u32 s{sW}, 8
    s_cbranch_scc1 L_help
    s_mul_i32 s{sKo}, s{sC}, {P['rot']}
    s_and_b32 s{sKo}, s{sKo}, 15
    s_lshl_b32 s{sKo}, s{sKo}, 15
    s_lshl_b32 s76, s{sC}, 19
    s_mov_b32 s30, 0x80000
    s_mov_b32 s31, 0x20000
    s_waitcnt lgkmcnt(0)
    s_add_u32 s28, s6, s76
    s_addc_u32 s29, s7, 0
    """)
    pro_nst = nst[0]

    items = {}
    def issue_kv(n, r):
        tok = g.vm(f"buffer_load_dwordx4 {q4(r)}, v{vK}, {KS if n < 64 else VS}, s{sKo} offen offset:{(n&3)*1024} nt")
        if n & 3 == 3 and n != 127:
            g(f"s_add_u32 s{sKo}, s{sKo}, 0x8000"); g(f"s_and_b32 s{sKo}, s{sKo}, 0x7ffff")
        items[n] = (tok, r)
    def win(n):
        if n < P['I1']: return P['I0']
        if n >= 128 - P['eb']: return D + P['ex']
        return D + (1 if (n % P['fr8']) < P['frac'] else 0)

    def masks():
        g(f"""
        v_and_b32 v{T[5]}, 1, v{vL}
        v_lshlrev_b32 v{T[5]}, 4, v{T[5]}
        v_mov_b32 v{T[7]}, 0xffff
        v_lshlrev_b32 v{T[5]}, v{T[5]}, v{T[7]}
        v_bfe_u32 v{T[7]}, v{vL}, 1, 2
        """)
        for r in range(4):
            g(f"v_cmp_eq_u32 vcc, {r}, v{T[7]}")
            g(f"v_cndmask_b32 v{vM+r}, 0, v{T[5]}, vcc")
        g(f"""
        s_mov_b32 s{sONE}, 0x3f803f80
        s_mov_b32 s{sINV}, {f2h(1.0/576)}
        v_mov_b32 v{vZ}, 0
        """)

    nxt = 0
    for _ in range(win(0) if P['I1'] else D):
        issue_kv(nxt, POOL[nxt]); nxt += 1
    if P.get('st0'): stamp(1)
    g(f"""
    s_add_u32 s32, s8, s76
    s_addc_u32 s33, s9, 0
    s_mov_b32 s34, 0x80000
    s_mov_b32 s35, 0x20000
    s_mov_b32 s80, 0x22222222
    s_mov_b32 s81, 0x22222222
    s_mov_b32 s82, 0x44444444
    s_mov_b32 s83, 0x44444444
    s_mov_b32 s84, 0x88888888
    s_mov_b32 s85, 0x88888888
    """)
    if P['wso']:
        g(f"s_add_u32 s26, s26, {P['wso']<<20}"); g("s_addc_u32 s27, s27, 0")
    srd(52, 26, 27, WSN)
    masks()
    if P['warm']:
        g(f"""
        s_and_b32 s76, s{sI}, 7
        s_lshl_b32 s76, s76, 3
        s_add_u32 s76, s76, s{sW}
        s_lshl_b32 s76, s76, 10
        v_and_b32 v{T[0]}, 7, v{vL}
        v_lshl_add_u32 v{T[0]}, v{T[0]}, 7, s76
        v_min_u32 v{T[0]}, L_end-{KN}-64, v{T[0]}
        s_getpc_b64 s[76:77]
        """)
        g.label("L_warm")
        g(f"s_sub_u32 s76, s76, L_warm-{KN}"); g("s_subb_u32 s77, s77, 0")
        g.vm(f"global_load_dword v{T[0]}, v{T[0]}, s[76:77]")
    g("s_barrier")
    CT = 0
    C1, R1, XW = P['C1'], P['R1'], P['XW']
    LW = P['lw']
    if LW: R1 = P['S1'] + 4; P['kn'] = 1 if P['LA'] else 0
    RB = P['rb']
    if RB: R1 = P['S0'] + 4; P['kn'] = 0
    if C1 or LW or RB: g("s_mov_b32 s90, -1")
    def xwin(n): return XW if (C1 or LW or RB) and n >= R1 else 0
    def gate_issue(n, m, r):
        if xwin(n):
            cnt = lambda k: g.vm_issued - 1 - items[k][0]
            g(f"s_cmp_gt_i32 s90, {n}")
            g.raw(f"  s_cbranch_scc1 L_bo{m}")
            if m - D > n: g.raw(f"  s_waitcnt vmcnt({cnt(m - D)})")
            if P['kn']:
                g(f"s_cmp_ge_i32 s90, {-n}")
                g.raw(f"  s_cbranch_scc1 L_bo{m}")
                g.raw(f"  s_waitcnt vmcnt({cnt(m - D + 1)})")
            g.label(f"L_bo{m}")
        issue_kv(m, r)
    def ctl_step(n):
        if n == P['S0']: lds_inc(PCT, 0x10000)
        if n == P['S1']: lds_inc(PCT, 0x100)
        if C1:
            if n == C1: lds_inc(PCT, 1)
            if n == R1 - 4: lds_inc(PCT, 0x100)
        if C1 or LW or RB:
            if n >= R1 - 2 and n < (R1 + 10 if LW or RB else P.get('R1e', 100)):
                if n % 4 == (R1 - 2) % 4: g(f"ds_read_b32 v{T[11]}, v{vZ} offset:{THR}")
                if n % 4 == (R1 - 1) % 4:
                    g.lgk(0); g(f"v_readfirstlane_b32 s90, v{T[11]}")
    for k in range(max(P['wx'], P['wx2'])):
        g(f"s_cmp_ge_u32 s{sW}, {4 if k < P['wx'] else 6}")
        g.raw(f"  s_cbranch_scc1 L_wx{k}")
        g.raw(f"  s_waitcnt vmcnt({g.vm_issued - 1 - items[nxt - D][0]})")
        g.label(f"L_wx{k}")
        issue_kv(nxt, POOL[nxt]); nxt += 1
    step = 0
    while nxt < L0:
        g.wait(items[step][0])
        while nxt < L0 and nxt - (step + 1) < win(step) + CT:
            gate_issue(step, nxt, POOL[nxt]); nxt += 1
        if P.get('st0') and step in (0, 5, 11): stamp({0: 11, 5: 12, 11: 13}[step])
        ctl_step(step)
        step += 1
    merge_step = step
    pool[:] = POOL[L0:]
    g(f"v_lshlrev_b32 v{T[3]}, 4, v{vJ}")
    g(f"s_mov_b32 s{sCNT}, 0")
    g.label("L_qr")
    g(f"ds_read_b128 {q4(vQ)}, v{T[3]} offset:{QS}")
    g.lgk(0)
    g(f"v_max3_u32 v{T[4]}, v{vQ}, v{vQ+1}, v{vQ+2}")
    g(f"v_max_u32 v{T[4]}, v{T[4]}, v{vQ+3}")
    g(f"v_cmp_eq_u32 s[76:77], -1, v{T[4]}")
    g("s_cmp_eq_u64 s[76:77], 0")
    g("s_cbranch_scc1 L_qr_ok")
    spin_tail("L_qr", 20 * LIM, 2)
    g.label("L_qr_ok")
    stamp(2)

    work = []
    def kgroup(gk):
        rs = [items[4 * gk + u] for u in range(4)]
        t = T[0:4]
        for k in range(4):
            for u in range(4):
                g(f"v_dot2_f32_bf16 v{t[u]}, v{rs[u][1]+k}, v{vQ+k}, {'0' if k == 0 else 'v%d' % t[u]}")
        for u in range(4):
            pool.append(rs[u][1])
        a, b2, c = T[4], T[5], T[6]
        g(f"v_add_f32_dpp v{a}, v{t[0]}, v{t[0]} row_ror:8 row_mask:0xf bank_mask:0x3")
        g(f"v_add_f32_dpp v{b2}, v{t[2]}, v{t[2]} row_ror:8 row_mask:0xf bank_mask:0x3")
        g(f"v_add_f32_dpp v{a}, v{t[1]}, v{t[1]} row_ror:8 row_mask:0xf bank_mask:0xc")
        g(f"v_add_f32_dpp v{b2}, v{t[3]}, v{t[3]} row_ror:8 row_mask:0xf bank_mask:0xc")
        g(f"v_add_f32_dpp v{c}, v{a}, v{a} row_half_mirror row_mask:0xf bank_mask:0x5")
        g(f"v_add_f32_dpp v{c}, v{b2}, v{b2} row_half_mirror row_mask:0xf bank_mask:0xa")
        g(f"v_add_f32_dpp v{c}, v{c}, v{c} quad_perm:[1,0,3,2] row_mask:0xf bank_mask:0xf")
        lam = gk & 3
        S = vS + (gk >> 2)
        if lam == 0:
            g(f"v_add_f32_dpp v{S}, v{c}, v{c} quad_perm:[2,3,0,1] row_mask:0xf bank_mask:0xf")
        else:
            g(f"v_add_f32_dpp v{c}, v{c}, v{c} quad_perm:[2,3,0,1] row_mask:0xf bank_mask:0xf")
            g(f"v_cndmask_b32 v{S}, v{S}, v{c}, {sMK[lam]}")
        if gk == 15: stamp(3)
    def soft1():
        for r in range(4): g(f"v_cvt_pk_bf16_f32 v{vS+r}, v{vS+r}, v{vS+r}")
        for r in range(4): g(f"v_and_b32 v{vS+r}, 0xffff0000, v{vS+r}")
        for r in range(4): g(f"v_mul_f32 v{vS+r}, 0x3db504f3, v{vS+r}")
        for r in range(4): g(f"v_cvt_pk_bf16_f32 v{vS+r}, v{vS+r}, v{vS+r}")
        for r in range(4): g(f"v_and_b32 v{vS+r}, 0xffff0000, v{vS+r}")
        g(f"v_max3_f32 v{vMW}, v{vS}, v{vS+1}, v{vS+2}")
        g(f"v_max_f32 v{vMW}, v{vMW}, v{vS+3}")
        allred("v_max_f32", [vMW], [T[0]])
    def soft2():
        for r in range(4): g(f"v_sub_f32 v{vS+r}, v{vS+r}, v{vMW}")
        for r in range(4): g(f"v_mul_f32 v{vS+r}, 0x3fb8aa3b, v{vS+r}")
        for r in range(4): g(f"v_exp_f32 v{vS+r}, v{vS+r}")
        g(f"v_mul_f32 v{vMW}, 0x3fb8aa3b, v{vMW}")
        g(f"v_add_f32 v{vMW+1}, v{vS}, v{vS+1}")
        g(f"v_add_f32 v{T[1]}, v{vS+2}, v{vS+3}")
        g(f"v_add_f32 v{vMW+1}, v{vMW+1}, v{T[1]}")
        for r in range(4): g(f"v_cvt_pk_bf16_f32 v{vS+r}, v{vS+r}, v{vS+r}")
        allred("v_add_f32", [vMW + 1], [T[0]])
        g(f"s_lshl_b32 s76, s{sW}, 3"); g(f"v_mov_b32 v{T[1]}, s76")
        g("s_mov_b64 exec, 1")
        g(f"ds_write_b64 v{T[1]}, {q2(vMW)} offset:{MLS}")
        g("s_mov_b64 exec, -1")
    beta = {0: 0, 1: 2, 2: 1, 3: 3}
    def vprep(n):
        A = vA0 if n & 1 == 0 else vA1
        j = 4 * beta[n & 3] + ((n >> 2) & 3)
        for r in range(4):
            g(f"v_and_b32_dpp v{A+r}, v{vS+(n>>4)}, v{vM+r} row_newbcast:{j} row_mask:0xf bank_mask:0xf")
    def vitem(n):
        A = vA0 if n & 1 == 0 else vA1
        r = items[64 + n][1]
        g(f"v_mfma_f32_16x16x32_bf16 {q4(vACC)}, {q4(A)}, {q4(r)}, {'0' if n == 0 else q4(vACC)}")
        pool.append(r)
        if n < 63: vprep(n + 1)
    vOBW, vOBR, vOST, vFA = T[4], T[5], T[6], T[7]
    sFV = "s[48:49]"
    def addrs():
        g(f"""
        v_lshlrev_b32 v{vOBW}, 5, v{vJ}
        v_lshl_add_u32 v{vOBW}, v{vG}, 4, v{vOBW}
        s_lshl_b32 s76, s{sW}, 9
        v_add_u32 v{vOBW}, s76, v{vOBW}
        v_and_b32 v{vOBR}, 31, v{vL}
        v_lshrrev_b32 v{T[0]}, 5, v{vL}
        v_lshlrev_b32 v{vOST}, 3, v{vOBR}
        v_lshl_add_u32 v{vOST}, v{T[0]}, 2, v{vOST}
        v_lshlrev_b32 v{vOBR}, 4, v{vOBR}
        v_lshl_add_u32 v{vOBR}, v{T[0]}, 11, v{vOBR}
        s_lshl_b32 s{sTo}, s{sC}, 8
        s_add_u32 s{sTo}, s{sTo}, {ORW}
        s_lshl_b32 s76, s{sW}, 2
        v_mov_b32 v{vFA}, s76
        """)
    def rdfac():
        g(f"ds_read_b32 v{vFAC}, v{vFA} offset:{FAC}")
        g.lgk(0)
        g(f"v_cmp_u_f32 {sFV}, v{vFAC}, v{vFAC}")
    for gk in range(16): work.append((4 * gk + 3, 30, (lambda k: lambda: kgroup(k))(gk)))
    work.append((63, 36, soft1)); work.append((63, 36, soft2)); work.append((63, 4, lambda: vprep(0)))
    for n in range(64): work.append((64 + n, 8, (lambda k: lambda: vitem(k))(n)))
    for n in range(merge_step, 128):
        g.wait(items[n][0])
        fl = []
        while nxt < 128 and nxt - (n + 1) < win(n) + xwin(n) and pool:
            gate_issue(n, nxt, pool.pop(0))
            if nxt == P['trig']: fl.append(1)
            if nxt == P['trigb'] and P['trigb'] != P['trig']: fl.append(256)
            nxt += 1
        assert nxt > n + 1 or n == 127
        used = 0
        while work and work[0][0] <= n and (used + work[0][1] <= P['bud'] or used == 0 or n >= 120):
            w = work.pop(0); used += w[1]; w[2]()
        for v in fl: lds_inc(ISS, v if P['trigb'] != P['trig'] else 257)
        if n == 104: addrs()
        if n == 64 + P['FX']: rdfac()
        if n == 126: g(f"v_mov_b32 v{vCNT}, 1")
        if n < 126: ctl_step(n)
    assert not work
    stamp(5)
    def sum8(regs):
        g.lgk(2)
        g(f"v_pk_add_f32 {q2(regs[0])}, {q2(regs[0])}, {q2(regs[1])}")
        g(f"v_pk_add_f32 {q2(regs[0]+2)}, {q2(regs[0]+2)}, {q2(regs[1]+2)}")
        g.lgk(0)
        g(f"v_pk_add_f32 {q2(regs[2])}, {q2(regs[2])}, {q2(regs[3])}")
        g(f"v_pk_add_f32 {q2(regs[2]+2)}, {q2(regs[2]+2)}, {q2(regs[3]+2)}")
        g(f"v_pk_add_f32 {q2(regs[0])}, {q2(regs[0])}, {q2(regs[2])}")
        g(f"v_pk_add_f32 {q2(regs[0]+2)}, {q2(regs[0]+2)}, {q2(regs[2]+2)}")
        g(f"v_permlane32_swap_b32 v{regs[0]}, v{regs[0]+2}")
        g(f"v_permlane32_swap_b32 v{regs[0]+1}, v{regs[0]+3}")
        g(f"v_pk_add_f32 {q2(regs[0])}, {q2(regs[0])}, {q2(regs[0]+2)}")
    SR = POOL[0:4] if items[127][1] not in POOL[0:4] else POOL[4:8]
    g(f"s_cmp_lg_u64 {sFV}, 0")
    g.raw("  s_cbranch_scc1 L_refac")
    g.label("L_fac_ok")
    g(f"v_pk_mul_f32 {q2(vACC)}, {q2(vACC)}, {q2(vFAC)} op_sel:[0,0] op_sel_hi:[1,0]")
    g(f"v_pk_mul_f32 {q2(vACC+2)}, {q2(vACC+2)}, {q2(vFAC)} op_sel:[0,0] op_sel_hi:[1,0]")
    g("s_mov_b32 exec_hi, 0")
    g(f"ds_write_b128 v{vOBW}, {q4(vACC)} offset:{OB}")
    g("s_mov_b32 exec_lo, 1")
    g(f"ds_add_rtn_u32 v{vCNT}, v{vZ}, v{vCNT} offset:{CNT}")
    g("s_mov_b64 exec, -1")
    for n in range(4):
        g(f"ds_read_b128 {q4(SR[n])}, v{vOBR} offset:{OB+512*n}")
    g.lgk(4)
    g(f"v_readfirstlane_b32 s76, v{vCNT}")
    stamp_flush()
    g("s_cmp_lg_u32 s76, 6"); g("s_cbranch_scc1 L_osum_done")
    sum8(SR)
    g(f"v_cvt_pk_bf16_f32 v{SR[0]}, v{SR[0]}, v{SR[0]+1}")
    untracked(f"buffer_store_dword v{SR[0]}, v{vOST}, {WS}, s{sTo} offen sc1")
    lds_inc(CNT)
    stamp(6); stamp_flush()
    g.label("L_osum_done")
    if P['exp'] & 8: g("s_branch L_fin")
    g(f"s_mov_b32 s{sCNT}, 0")
    g.label("L_ro")
    g(f"ds_read_b32 v{T[9]}, v{vZ} offset:{ROLE}")
    g.lgk(0)
    g(f"v_readfirstlane_b32 s{sRo}, v{T[9]}")
    g(f"s_movk_i32 s{sFF}, 0xff")
    g(f"s_lshr_b32 s{sTG}, s{sRo}, 16"); g(f"s_and_b32 s{sRo}, s{sRo}, 0xffff")
    g(f"s_cmp_lt_u32 s{sRo}, 144"); g("s_cbranch_scc1 L_ffn")
    g(f"s_cmp_lt_u32 s{sRo}, 216"); g("s_cbranch_scc1 L_stb")
    g(f"s_cmp_lt_u32 s{sRo}, 256"); g("s_cbranch_scc1 L_fin")
    spin_tail("L_ro", 20 * LIM, 2)
    g("s_branch L_fin")
    g.label("L_stb")
    g(f"s_sub_u32 s{sU}, s{sRo}, 144"); g(f"s_and_b32 s{sXb}, s{sU}, 7")

    g.lgk(0)
    g.hist = []; g.vm_issued = 0; g.vm_done = 0
    vTB = T[0:4]
    vYS, vOP, vYW = T[6], T[7], T[8]
    g(f"""
    v_lshrrev_b32 v{T[9]}, 2, v{vJ}
    v_lshl_add_u32 v{T[10]}, v{vG}, 3, v{T[9]}
    v_lshlrev_b32 v{T[10]}, 7, v{T[10]}
    v_and_b32 v{T[11]}, 3, v{vJ}
    v_lshl_add_u32 v{T[10]}, v{T[11]}, 3, v{T[10]}
    s_lshl_b32 s76, s{sW}, 13
    s_add_u32 s76, s76, {WL}
    v_add_u32 v{T[10]}, s76, v{T[10]}
    v_lshrrev_b32 v{T[9]}, 1, v{T[9]}
    v_and_b32 v{vOBW}, 1, v{vG}
    v_lshl_add_u32 v{T[9]}, v{vOBW}, 1, v{T[9]}
    """)
    for c in range(4):
        g(f"v_xor_b32 v{vTB[c]}, {c}, v{T[9]}")
    for c in range(4):
        g(f"v_lshl_add_u32 v{vTB[c]}, v{vTB[c]}, 5, v{T[10]}")
    g(f"""
    v_bfe_u32 v{vOP}, v{vJ}, 2, 1
    v_lshlrev_b32 v{vOP}, 15, v{vOP}
    v_lshl_add_u32 v{vOP}, v{T[11]}, 8, v{vOP}
    v_lshl_add_u32 v{vOP}, v{vG}, 4, v{vOP}
    s_lshl_b32 s70, s{sXb}, 2
    s_lshr_b32 s76, s{sW}, 1
    s_add_u32 s70, s70, s76
    s_lshl_b32 s70, s70, 10
    s_and_b32 s76, s{sW}, 1
    s_lshl_b32 s76, s76, 7
    s_add_u32 s70, s70, s76
    s_add_u32 s70, s70, {ORW}
    v_lshlrev_b32 v{vYW}, 8, v{vOBW}
    v_lshrrev_b32 v{T[9]}, 1, v{vG}
    v_lshl_add_u32 v{vYW}, v{T[9]}, 7, v{vYW}
    v_lshl_add_u32 v{vYW}, v{vJ}, 2, v{vYW}
    s_lshl_b32 s76, s{sW}, 9
    s_add_u32 s76, s76, {GUL}
    v_add_u32 v{vYW}, s76, v{vYW}
    v_lshlrev_b32 v{vYS}, {0 if YH else 1}, v{vOST}
    s_lshl_b32 s76, s{sU}, {8 if YH else 9}
    s_mul_i32 s72, s{sW}, {YR_}
    s_add_u32 s72, s72, s76
    s_add_u32 s72, s72, {YP}
    s_mov_b32 s{sCNT}, 0
    """)
    WO = {(t, c): POOL[4 * t + c] for t in range(2) for c in range(4)}
    AO = POOL[8:10]; DD = POOL[10:14]
    def rd_wo():
        for t in range(2):
            for c in range(4):
                for hf in range(2):
                    g(f"ds_read_b64_tr_b16 {q2(WO[t, c] + 2 * hf)}, v{vTB[c]} offset:{t*4096 + hf*512}")
    if not P['bp']:
        g("s_barrier")
        rd_wo()
    else:
        g.label("L_bs")
        g(f"ds_read_b32 v{T[9]}, v{vZ} offset:{WF}")
        g.lgk(0)
        g(f"v_readfirstlane_b32 s71, v{T[9]}")
        g("s_cmp_lg_u32 s71, -1"); g("s_cbranch_scc1 L_bs_ok")
        spin_tail("L_bs", 20 * LIM, 1)
        g.label("L_bs_ok")
        g("s_mov_b32 s71, -1"); g(f"s_mov_b32 s{sCNT}, 0")
    stamp(7)
    for _ in range(P['pd1'] - 1):
        for t in range(2):
            g(f"buffer_load_dwordx4 {q4(AO[t])}, v{vOP}, {WS}, s70 offen offset:{64*t} sc1")
        g(f"s_sleep {P['pg'] * 2 // P['pd1']}")
    g.label("L_bp")
    for t in range(2):
        g(f"buffer_load_dwordx4 {q4(AO[t])}, v{vOP}, {WS}, s70 offen offset:{64*t} sc1")
    g("s_mov_b64 exec, -1")
    if P['bp']:
        g("s_cmp_ge_i32 s71, 0"); g("s_cbranch_scc1 L_bp2")
        g(f"ds_read_b32 v{T[9]}, v{vZ} offset:{WF}")
        g.lgk(0)
        g(f"v_readfirstlane_b32 s71, v{T[9]}")
        g("s_cmp_lt_i32 s71, 0"); g("s_cbranch_scc1 L_bp2")
        rd_wo()
        g.label("L_bp2")
    g(f"s_waitcnt vmcnt({2 * (P['pd1'] - 1)})")
    g(f"v_max3_u32 v{T[9]}, v{AO[0]}, v{AO[0]+1}, v{AO[0]+2}")
    g(f"v_max3_u32 v{T[10]}, v{AO[1]}, v{AO[1]+1}, v{AO[1]+2}")
    g(f"v_max3_u32 v{T[9]}, v{T[9]}, v{AO[0]+3}, v{AO[1]+3}")
    g(f"v_max_u32 v{T[9]}, v{T[9]}, v{T[10]}")
    g(f"v_cmp_eq_u32 vcc, -1, v{T[9]}")
    g.lgk(0)
    g("s_cbranch_vccz L_bp_ok")
    g("s_mov_b64 exec, vcc")
    spin_tail("L_bp", 3 * LIM, P['ps1'])
    g("s_mov_b64 exec, -1")
    g.label("L_bp_ok")
    if P['bp']:
        stamp(9); stamp_flush()
        g("s_cmp_ge_i32 s71, 0"); g("s_cbranch_scc1 L_bw_ok")
        g(f"s_mov_b32 s{sCNT}, 0")
        g.label("L_bw")
        g(f"ds_read_b32 v{T[9]}, v{vZ} offset:{WF}")
        g.lgk(0)
        g(f"v_readfirstlane_b32 s71, v{T[9]}")
        g("s_cmp_ge_i32 s71, 0"); g("s_cbranch_scc1 L_bw1")
        spin_tail("L_bw", 20 * LIM, 1)
        g.label("L_bw1")
        rd_wo()
        g.lgk(0)
        g.label("L_bw_ok")
    stamp(8)
    for t in range(2):
        for c in range(4):
            g(f"v_mfma_f32_16x16x32_bf16 {q4(DD[c])}, {q4(AO[t])}, {q4(WO[t, c])}, {'0' if t == 0 else q4(DD[c])}")
    for c in range(4): g(f"v_pk_add_f32 {q2(DD[c])}, {q2(DD[c])}, {q2(DD[c]+2)}")
    for c in range(4):
        g(f"v_add_f32_dpp v{vACC+(c&1)}, v{DD[c]}, v{DD[c]+1} quad_perm:[0,1,2,3] row_mask:{0x3 if c < 2 else 0xc:#x} bank_mask:0xf")
    g(f"ds_write2_b32 v{vYW}, v{vACC}, v{vACC+1} offset0:0 offset1:16")
    g(f"s_cmp_ge_u32 s{sW}, {P['NREP']}")
    g(f"v_mov_b32 v{T[9]}, s{sTG}")
    g.lgk(0)
    stamp_flush()
    g("s_barrier")
    if P['NREP'] < 8: g("s_cbranch_scc1 L_fin")
    SR = [vA0, vA1, vQ, vS]
    for n in range(4):
        g(f"ds_read_b128 {q4(SR[n])}, v{vOBR} offset:{GUL+512*n}")
    sum8(SR)
    if YH:
        g(f"v_cvt_pk_f16_f32 v{vA0}, v{vA0}, v{vA0+1}")
        g(f"buffer_store_dword v{vA0}, v{vYS}, {WS}, s72 offen sc1")
    else:
        for r in range(2): g(f"v_bfi_b32 v{vA0+r}, s{sFF}, v{T[9]}, v{vA0+r}")
        g(f"buffer_store_dwordx2 {q2(vA0)}, v{vYS}, {WS}, s72 offen sc1")
    stamp(10); stamp_flush()
    g("s_branch L_fin" if P['stamps'] else "s_endpgm")

    new_path("L_ffn")
    vTG = T[0:2]
    vTD, vH, vE, vSTa, vDS, vAR, vXa = T[2:9]
    vRd, vRs, vAW = vM, vM + 1, vM + 2
    XH = T[10]
    sRep = f"s{sX}" if P['rsel'] else f"s{sI}"
    srd(56, 4, 5, 2304)
    g(f"""
    v_and_b32 v{T[9]}, 3, v{vJ}
    v_lshrrev_b32 v{T[11]}, 1, v{T[9]}
    v_lshlrev_b32 v{vXa}, 6, v{T[11]}
    v_lshl_add_u32 v{vXa}, v{vG}, 4, v{vXa}
    v_and_b32 v{T[11]}, 1, v{vJ}
    v_lshl_add_u32 v{vXa}, v{T[11]}, 3, v{vXa}
    v_lshlrev_b32 v{vH}, {0 if YH else 1}, v{vXa}
    v_lshrrev_b32 v{T[11]}, 2, v{vJ}
    v_lshl_add_u32 v{vH}, v{T[11]}, {7 if YH else 8}, v{vH}
    v_and_b32 v{vAR}, 1, v{T[11]}
    v_mul_u32_u24 v{vE}, 1152, v{vAR}
    v_add_u32 v{vXa}, v{vXa}, v{vE}
    s_lshl_b32 s76, s{sW}, 7
    """)
    txh = g.vm(f"buffer_load_dwordx2 {q2(XH)}, v{vXa}, {XS}, s76 offen")
    g(f"""
    v_lshlrev_b32 v{vAR}, 6, v{vAR}
    v_lshl_add_u32 v{vAR}, v{vG}, 4, v{vAR}
    v_lshrrev_b32 v{vE}, 2, v{vJ}
    v_lshl_add_u32 v{vTD}, v{vG}, 3, v{vE}
    v_mul_u32_u24 v{vTD}, 1152, v{vTD}
    v_lshl_add_u32 v{vTD}, v{T[9]}, 3, v{vTD}
    s_add_u32 s76, s76, {WD}
    v_add_u32 v{vTD}, s76, v{vTD}
    v_lshlrev_b32 v{vE}, 6, v{vE}
    v_lshl_add_u32 v{vE}, v{T[9]}, 3, v{vE}
    v_lshrrev_b32 v{T[9]}, 1, v{vG}
    v_lshl_add_u32 v{vE}, v{T[9]}, 11, v{vE}
    v_and_b32 v{T[9]}, 1, v{vG}
    v_mul_u32_u24 v{T[9]}, 544, v{T[9]}
    v_add_u32 v{vE}, v{vE}, v{T[9]}
    s_lshl_b32 s76, s{sW}, 13
    s_add_u32 s76, s76, {WL}
    v_add_u32 v{vTG[0]}, s76, v{vE}
    v_xor_b32 v{vTG[1]}, 32, v{vTG[0]}
    v_lshlrev_b32 v{vE}, 8, v{vG}
    v_lshl_add_u32 v{vE}, v{vJ}, 3, v{vE}
    s_lshl_b32 s76, s{sW}, 10
    s_add_u32 s76, s76, {GUL}
    v_add_u32 v{vE}, s76, v{vE}
    s_lshl_b32 s76, s{sW}, 3
    s_add_u32 s76, s76, {STB}
    v_mov_b32 v{vSTa}, {STB+256}
    v_writelane_b32 v{vSTa}, s76, 8
    s_add_u32 s77, s76, 4
    v_writelane_b32 v{vSTa}, s77, 0
    s_add_u32 s76, s76, 128
    v_writelane_b32 v{vSTa}, s76, 24
    s_add_u32 s77, s76, 4
    v_writelane_b32 v{vSTa}, s77, 20
    v_lshlrev_b32 v{vRd}, 3, v{vL}
    v_and_b32 v{vM+3}, 0xf8, v{vRd}
    v_lshrrev_b32 v{vRs}, 5, v{vL}
    v_lshlrev_b32 v{vRs}, 7, v{vRs}
    v_lshlrev_b32 v{vAW}, 1, v{vL}
    s_and_b32 s76, {sRep}, {P['NREP']-1}
    s_mul_i32 s70, s76, {YR_}
    s_lshl_b32 s76, s{sW}, {11 if YH else 12}
    s_add_u32 s70, s70, s76
    s_add_u32 s70, s70, {YP}
    s_mov_b32 s76, s{sRo}
    """)
    if P['dbl'] == 0:
        g(f"""
        v_lshlrev_b32 v{vDS}, 3, v{vL}
        s_mul_i32 s72, s76, 4608
        s_lshl_b32 s76, s{sW}, 9
        """)
    else:
        g(f"""
        v_lshrrev_b32 v{vDS}, 3, v{vL}
        v_mul_u32_u24 v{vDS}, 9216, v{vDS}
        v_and_b32 v{T[9]}, 7, v{vL}
        v_lshl_add_u32 v{vDS}, v{T[9]}, 3, v{vDS}
        s_lshl_b32 s72, s76, 6
        s_mul_i32 s76, s{sW}, 73728
        """)
    g(f"""
    s_add_u32 s72, s72, s76
    s_add_u32 s72, s72, {DB}
    s_mov_b32 s{sCNT}, 0
    """)
    if P['sp'] or P['spa'] or P['sd']:
        g(f"s_cmp_eq_u32 s{sW}, 8"); g("s_cbranch_scc1 L_sp_done")
        def pf_dn():
            if not P['sd']: return
            g(f"s_mul_i32 s98, s{sRo}, 36864"); g(f"s_mul_i32 s99, s{sW}, {P['sds']}"); g("s_add_u32 s98, s98, s99"); g(f"s_mov_b32 s99, {P['sd']}")
            g.label("L_sd")
            g.raw("  s_load_dword s97, s[20:21], s98")
            g(f"s_add_u32 s98, s98, {8 * P['sds']}"); g("s_sub_u32 s99, s99, 1"); g("s_cmp_lg_u32 s99, 0"); g("s_cbranch_scc1 L_sd")
        if P['sdo'] == 0: pf_dn()
        g(f"s_bfe_u32 s76, s{sRo}, 0x30001"); g("s_cmp_eq_u32 s76, 3"); g(f"s_cselect_b32 s99, {P['sp']}, {P['spa']}")
        g("s_cmp_eq_u32 s99, 0"); g("s_cbranch_scc1 L_sp_d2")
        g(f"s_sub_u32 s98, 575, s{sW}"); g("s_mul_i32 s98, s98, 9216"); g(f"s_lshl_b32 s76, s{sRo}, 6"); g("s_add_u32 s98, s98, s76")
        g.label("L_sp")
        g.raw("  s_load_dword s97, s[16:17], s98"); g.raw("  s_load_dword s97, s[18:19], s98")
        g(f"s_sub_u32 s98, s98, {8*9216}"); g("s_sub_u32 s99, s99, 1"); g("s_cmp_lg_u32 s99, 0"); g("s_cbranch_scc1 L_sp")
        g.label("L_sp_d2")
        if P['sdo'] == 1: pf_dn()
        g("s_waitcnt lgkmcnt(0)")
        stamp(11); stamp_flush()
        g.label("L_sp_done")
    GU = {(m, c, t): POOL[4 * m + 2 * c + t] for m in range(2) for c in range(2) for t in range(2)}
    WDr = POOL[8:12]; HL = POOL[26:30]; DD = POOL[16:21]
    AH = [vA0, vA1]
    for t in range(2):
        for r in range(4): g(f"v_mov_b32 v{AH[t]+r}, s{sONE}")
    sMh = [f"s[{a}:{a+1}]" for a in (80, 82, 84, 48)]
    for n in range(4): g(f"s_mov_b64 {sMh[n]}, -1")
    FO = P['fo']
    XF = vQ
    H0, H1 = vACC, vS
    ZL = POOL[21:25]; OR = POOL[25]
    vTC = POOL[30]
    def rd_gu():
        for m in range(2):
            for t in range(2):
                for c in range(2):
                    for hf in range(2):
                        g(f"ds_read_b64_tr_b16 {q2(GU[m, c, t] + 2 * hf)}, v{vTG[c]} offset:{t*4096 + m*1024 + hf*256}")
    def rd_dn():
        for c in range(4):
            for hf in range(2):
                if FO == 1: g(f"ds_read_b64_tr_b16 {q2(WDr[c] + 2 * hf)}, v{vTC+c} offset:{hf*512}")
                else: g(f"ds_read_b64_tr_b16 {q2(WDr[c] + 2 * hf)}, v{vTD} offset:{hf*4608 + 32*c}")
    def xcv():
        for r in range(2):
            g(f"v_lshlrev_b32 v{XF+2*r}, 16, v{XH+r}")
            g(f"v_and_b32 v{XF+2*r+1}, 0xffff0000, v{XH+r}")
    def hpoll(masked=True):
        for n in range(4):
            if masked: g(f"s_or_b64 exec, {sMh[n]}, 1")
            if YH: g(f"buffer_load_dwordx2 {q2(HL[n])}, v{vH}, {WS}, s70 offen offset:{512*n} sc1")
            else: g(f"buffer_load_dwordx4 {q4(HL[n])}, v{vH}, {WS}, s70 offen offset:{1024*n} sc1")
        if masked: g("s_mov_b64 exec, -1")
    def hcheck(extra, mid=None):
        if not YH: return hcheck32(extra, mid)
        for h, H in enumerate((H0, H1)):
            a, b = HL[2 * h], HL[2 * h + 1]
            g(f"s_waitcnt vmcnt({2 - 2*h + extra})")
            for r in range(4):
                e = r & 1
                g(f"v_fma_mix_f32 v{H+r}, v{a+(r>>1)}, 1.0, v{b+(r>>1)} op_sel:[{e},0,{e}] op_sel_hi:[1,0,1]")
            if h == 0:
                g(f"v_max_u32 v{OR}, v{a}, v{a+1}"); g(f"v_max_u32 v{OR+1}, v{b}, v{b+1}")
        g(f"v_pk_add_f32 {q2(H0)}, {q2(H0)}, {q2(H1)}")
        g(f"v_pk_add_f32 {q2(H0+2)}, {q2(H0+2)}, {q2(H1+2)}")
        g(f"v_max_u32 v{OR+2}, v{HL[2]}, v{HL[2]+1}"); g(f"v_max_u32 v{OR+3}, v{HL[3]}, v{HL[3]+1}")
        for r in range(2):
            g(f"v_add_f32_dpp v{H0+r}, v{H0+r}, v{H0+r} row_ror:8 row_mask:0xf bank_mask:0xf")
        g(f"v_max3_u32 v{T[9]}, v{OR}, v{OR+1}, v{OR+2}")
        for r in range(2, 4):
            g(f"v_add_f32_dpp v{H0+r}, v{H0+r}, v{H0+r} row_ror:8 row_mask:0xf bank_mask:0xf")
        g(f"v_max_u32 v{T[9]}, v{T[9]}, v{OR+3}")
        g(f"v_cvt_pk_bf16_f32 v{H1+2}, v{H0}, v{H0+1}")
        g(f"v_cmp_eq_u32 vcc, -1, v{T[9]}")
        g(f"v_cvt_pk_bf16_f32 v{H1+3}, v{H0+2}, v{H0+3}")
        g(f"v_lshlrev_b32 v{H0}, 16, v{H1+2}")
        g(f"v_and_b32 v{H0+1}, 0xffff0000, v{H1+2}")
        g(f"v_lshlrev_b32 v{H0+2}, 16, v{H1+3}")
        g(f"v_and_b32 v{H0+3}, 0xffff0000, v{H1+3}")
        if mid: mid()
        g.lgk(0)
        g("s_cbranch_vccz L_hp_ok")
        for n in range(4):
            g(f"v_cmp_eq_u32 {sMh[n]}, -1, v{OR+n}")
    def hcheck32(extra, mid=None):
        for n in range(4):
            g(f"s_waitcnt vmcnt({3-n + extra})")
            for r in range(4): g(f"v_xor_b32 v{ZL[n]+r}, s{sTG}, v{HL[n]+r}")
            g(f"v_or3_b32 v{OR+n}, v{ZL[n]}, v{ZL[n]+1}, v{ZL[n]+2}")
            if n == 1:
                g(f"v_pk_add_f32 {q2(H0)}, {q2(ZL[0])}, {q2(ZL[1])}")
                g(f"v_pk_add_f32 {q2(H0+2)}, {q2(ZL[0]+2)}, {q2(ZL[1]+2)}")
            if n == 3:
                g(f"v_pk_add_f32 {q2(H1)}, {q2(ZL[2])}, {q2(ZL[3])}")
                g(f"v_pk_add_f32 {q2(H1+2)}, {q2(ZL[2]+2)}, {q2(ZL[3]+2)}")
            g(f"v_or_b32 v{OR+n}, v{OR+n}, v{ZL[n]+3}")
            if n == 2: g(f"v_or3_b32 v{T[9]}, v{OR}, v{OR+1}, v{OR+2}")
        g(f"v_pk_add_f32 {q2(H0)}, {q2(H0)}, {q2(H1)}")
        g(f"v_pk_add_f32 {q2(H0+2)}, {q2(H0+2)}, {q2(H1+2)}")
        g(f"v_or_b32 v{T[9]}, v{T[9]}, v{OR+3}")
        for r in range(2):
            g(f"v_add_f32_dpp v{H0+r}, v{H0+r}, v{H0+r} row_ror:8 row_mask:0xf bank_mask:0xf")
        g(f"v_cmp_ne_u32_sdwa vcc, v{T[9]}, v{vZ} src0_sel:BYTE_0 src1_sel:DWORD")
        for r in range(2, 4):
            g(f"v_add_f32_dpp v{H0+r}, v{H0+r}, v{H0+r} row_ror:8 row_mask:0xf bank_mask:0xf")
        g(f"v_cvt_pk_bf16_f32 v{H1+2}, v{H0}, v{H0+1}")
        g(f"v_cvt_pk_bf16_f32 v{H1+3}, v{H0+2}, v{H0+3}")
        g(f"v_lshlrev_b32 v{H0}, 16, v{H1+2}")
        g(f"v_and_b32 v{H0+1}, 0xffff0000, v{H1+2}")
        g(f"v_lshlrev_b32 v{H0+2}, 16, v{H1+3}")
        g(f"v_and_b32 v{H0+3}, 0xffff0000, v{H1+3}")
        if mid: mid()
        g.lgk(0)
        g("s_cbranch_vccz L_hp_ok")
        for n in range(4):
            g(f"v_cmp_ne_u32_sdwa {sMh[n]}, v{OR+n}, v{vZ} src0_sel:BYTE_0 src1_sel:DWORD")
    if FO == 2:
        g("s_mov_b32 s71, 0")
        g("s_waitcnt vmcnt(37)")
        stamp(4); stamp_flush()
        g("s_barrier")
        rd_gu()
        if P.get('fS', 0): g(f"s_sleep {P['fS']}")
        hpoll(False)
        g("s_waitcnt vmcnt(4)")
        g(f"s_cmp_lg_u32 s{sW}, 8")
        xcv()
        g("s_cbranch_scc1 L_hp2")
        g(f"ds_write_b32 v{vZ}, v{vZ} offset:{WF}")
        rd_dn()
        g("s_mov_b32 s71, 1")
        stamp(7); stamp_flush()
        g("s_branch L_hp2")
        g.label("L_hp")
        hpoll()
        g("s_cmp_lg_u32 s71, 0"); g("s_cbranch_scc1 L_hp2")
        g(f"ds_read_b32 v{T[9]}, v{vZ} offset:{WF}")
        g.lgk(0)
        g(f"v_readfirstlane_b32 s76, v{T[9]}")
        g("s_cmp_lt_i32 s76, 0"); g("s_cbranch_scc1 L_hp2")
        rd_dn()
        g("s_mov_b32 s71, 1")
        g.label("L_hp2")
        hcheck(0)
    elif FO:
        vW0, vW1, t2, t3 = POOL[12], POOL[12] + 1, POOL[12] + 2, POOL[12] + 3
        srd(44, 20, 21, 4608 * 1152)
        g(f"""
        v_lshrrev_b32 v{t2}, 3, v{vL}
        v_mul_u32_u24 v{t2}, 1152, v{t2}
        v_and_b32 v{t3}, 1, v{vG}
        v_lshlrev_b32 v{vW1}, 1, v{t3}
        v_and_b32 v{vW0}, 7, v{vL}
        v_xor_b32 v{vW0}, v{vW0}, v{vW1}
        v_lshl_add_u32 v{vW0}, v{vW0}, 4, v{t2}
        v_lshrrev_b32 v{t2}, 3, v{vJ}
        v_add_u32 v{t3}, v{t2}, v{vW1}
        v_xor_b32 v{vW1}, 64, v{vW0}
        v_lshrrev_b32 v{t2}, 2, v{vJ}
        v_lshl_add_u32 v{t2}, v{vG}, 3, v{t2}
        v_lshlrev_b32 v{t2}, 7, v{t2}
        v_and_b32 v{vTD}, 3, v{vJ}
        v_lshl_add_u32 v{t2}, v{vTD}, 3, v{t2}
        s_lshl_b32 s76, s{sW}, 12
        s_add_u32 s76, s76, {WD}
        v_add_u32 v{t2}, s76, v{t2}
        s_mov_b32 m0, s76
        s_mul_i32 s73, s{sRo}, 36864
        s_lshl_b32 s76, s{sW}, 7
        s_add_u32 s73, s73, s76
        s_mov_b32 s71, 0
        """)
        for c in range(4): g(f"v_xor_b32 v{vTC+c}, {c}, v{t3}")
        for c in range(4): g(f"v_lshl_add_u32 v{vTC+c}, v{vTC+c}, 5, v{t2}")
        g(f"s_waitcnt vmcnt({P['fN'] + 1})")
        g("s_barrier")
        hpoll(False)
        if P.get('fS', 0): g(f"s_sleep {P['fS']}")
        fE = P['fE']
        def dn_issue(lo, hi):
            for e in range(lo, hi):
                g(f"buffer_load_dwordx4 v{vW1 if e & 1 else vW0}, {W3}, s73 offen {P['pol']} lds")
                if e < 3:
                    g("s_add_u32 m0, m0, 1024"); g("s_add_u32 s73, s73, 9216")
        g("s_waitcnt vmcnt(4)")
        stamp(4)
        xcv()
        stamp_flush()
        g("s_barrier")
        rd_gu()
        dn_issue(0, fE)
        hcheck(fE, lambda: dn_issue(fE, 4))
        hpoll()
        g("s_waitcnt vmcnt(4)")
        stamp(7); stamp_flush()
        rd_dn()
        g("s_mov_b32 s71, 1")
        g("s_branch L_hp2")
        g.label("L_hp")
        hpoll()
        g.label("L_hp2")
        hcheck(0)
    else:
        g("s_waitcnt vmcnt(37)")
        stamp(4)
        g("s_barrier")
        rd_gu()
        g("s_waitcnt vmcnt(1)")
        g("s_barrier")
        rd_dn()
        g.waitall()
        xcv()
        stamp(7)
        for _ in range(P['pd2'] - 1):
            hpoll(False)
            g(f"s_sleep {P['pg'] * 2 // P['pd2']}")
        g.label("L_hp")
        hpoll()
        hcheck(4 * (P['pd2'] - 1))
    spin_tail("L_hp", 3 * LIM, P['ps2'])
    g.label("L_hp_ok")
    stamp(8)
    g(f"v_pk_add_f32 {q2(H0)}, {q2(H0)}, {q2(XF)}")
    g(f"v_pk_add_f32 {q2(H0+2)}, {q2(H0+2)}, {q2(XF+2)}")
    g(f"v_cvt_pk_bf16_f32 v{H1}, v{H0}, v{H0+1}")
    g(f"v_cvt_pk_bf16_f32 v{H1+1}, v{H0+2}, v{H0+3}")
    def amov(t, r):
        q = 2 * t + (r >> 1)
        return f"v_mov_b32_dpp v{AH[t]+r}, v{H1+(r&1)} quad_perm:[{q},{q},{q},{q}] row_mask:0xf bank_mask:0x3"
    for r in (0, 2, 1, 3): g(amov(0, r))
    late = [amov(1, r) for r in (0, 2, 1, 3)]
    g(late.pop(0)); g(late.pop(0))
    order = [(0, 0), (1, 0), (0, 1), (1, 1)]
    for t in range(2):
        g(f"v_mfma_f32_16x16x32_bf16 {q4(DD[4])}, {q4(AH[t])}, {q4(AH[t])}, {'0' if t == 0 else q4(DD[4])}")
        if late: g(late.pop(0))
        for k, (m, c) in enumerate(order):
            g(f"v_mfma_f32_16x16x32_bf16 {q4(DD[k])}, {q4(AH[t])}, {q4(GU[m, c, t])}, {'0' if t == 0 else q4(DD[k])}")
            if late: g(late.pop(0))
    g("s_mov_b64 exec, 0x1100101")
    g(f"ds_write_b32 v{vSTa}, v{DD[4]}")
    g("s_mov_b64 exec, -1")
    g(f"ds_write2_b32 v{vE}, v{DD[0]}, v{DD[1]} offset0:0 offset1:1")
    g(f"ds_write2_b32 v{vE}, v{DD[2]}, v{DD[3]} offset0:32 offset1:33")
    g(f"s_cmp_lg_u32 s{sW}, {P.get('aw', 0)}")
    g.lgk(0)
    g("s_barrier")
    g("s_cbranch_scc1 L_act_done" if not FO else "s_cbranch_scc1 L_nact")
    RS = POOL[0:5]; RG = POOL[5:8] + POOL[12:14]; RC = POOL[14:19]
    for k in range(4): g(f"ds_read_b128 {q4(RS[k])}, v{vRs} offset:{STB+16*k}")
    g(f"ds_read_b64 {q2(RS[4])}, v{vRs} offset:{STB+64}")
    pr = lambda R, w: R[w >> 1] + 2 * (w & 1)
    for w in range(9): g(f"ds_read_b64 {q2(pr(RG, w))}, v{vRd} offset:{GUL+1024*w}")
    g.lgk(9)
    for w in range(6): g(f"ds_read_b64 {q2(pr(RC, w))}, v{vM+3} offset:{GUL+512+1024*w}")
    def tree(R):
        p = lambda a, b: f"v_pk_add_f32 {q2(pr(R, a))}, {q2(pr(R, a))}, {q2(pr(R, b))}"
        return [p(0, 1), p(2, 3), p(4, 5), p(6, 7), p(0, 2), p(4, 6), p(0, 8), p(0, 4)]
    for x in tree(RS): g(x)
    g.lgk(6)
    for w in range(6, 9): g(f"ds_read_b64 {q2(pr(RC, w))}, v{vM+3} offset:{GUL+512+1024*w}")
    SM, SQ = RS[0], RS[0] + 1
    lo = ln_ops(SM, SQ, RS[1]); tg = tree(RG); tc = tree(RC)
    k = 0
    while lo or tg or tc:
        if lo: g(lo.pop(0))
        if tg: g(tg.pop(0))
        elif tc:
            if len(tc) == 8: g.lgk(0)
            g(tc.pop(0))
    G4 = RG[0]; U4 = G4 + 1
    g(f"v_pk_fma_f32 {q2(G4)}, {q2(RC[0])}, {q2(SM)}, {q2(G4)} op_sel:[0,0,0] op_sel_hi:[1,0,1] neg_lo:[0,1,0] neg_hi:[0,1,0]")
    g(f"v_pk_mul_f32 {q2(G4)}, {q2(G4)}, {q2(SM)} op_sel:[0,1] op_sel_hi:[1,1]")
    k1 = -2 * math.sqrt(2 / math.pi) * math.log2(math.e)
    k3 = k1 * 0.044715
    t = RG[1]
    g(f"v_mov_b32 v{t+1}, {f2h(k1)}")
    g(f"v_cvt_pk_bf16_f32 v{U4}, v{G4}, v{U4}")
    g(f"v_lshlrev_b32 v{G4}, 16, v{U4}")
    g(f"v_mul_f32 v{t}, v{G4}, v{G4}")
    g(f"v_fmac_f32 v{t+1}, {f2h(k3)}, v{t}")
    g(f"v_mul_f32 v{t}, v{t+1}, v{G4}")
    g(f"v_exp_f32 v{t}, v{t}")
    g(f"v_and_b32 v{U4}, 0xffff0000, v{U4}")
    g(f"v_add_f32 v{t}, 1.0, v{t}")
    g(f"v_rcp_f32 v{t}, v{t}")
    g(f"v_mul_f32 v{t}, v{t}, v{G4}")
    bf16r(t, t)
    g(f"v_mul_f32 v{t}, v{t}, v{U4}")
    g(f"v_cvt_pk_bf16_f32 v{t}, v{t}, v{t}")
    g(f"ds_write_b16 v{vAW}, v{t} offset:{ACT}")
    g.lgk(0)
    g.label("L_act_done")
    if FO: g("s_cmp_eq_u32 s71, 0")
    g("s_barrier")
    stamp(9)
    g(f"ds_read_b128 {q4(vA0)}, v{vAR} offset:{ACT}")
    if FO: g("s_cbranch_scc1 L_ldn"); g.label("L_ldn_ok")
    g(f"v_mov_b32 v{T[9]}, s{sTG}")
    g.lgk(0)
    for c in (1, 2, 3, 0):
        g(f"v_mfma_f32_16x16x32_bf16 {q4(WDr[c])}, {q4(vA0)}, {q4(WDr[c])}, 0")
    X = WDr[1]
    g(f"v_mov_b32_dpp v{X}, v{WDr[2]} quad_perm:[0,1,2,3] row_mask:0xc bank_mask:0xf")
    g(f"v_mov_b32_dpp v{X+1}, v{WDr[3]} quad_perm:[0,1,2,3] row_mask:0xc bank_mask:0xf")
    g(f"v_mov_b32_dpp v{X}, v{WDr[0]} quad_perm:[0,1,2,3] row_mask:0x3 bank_mask:0xf")
    g(f"v_bfi_b32 v{X+1}, s{sFF}, v{T[9]}, v{X+1}")
    g(f"v_bfi_b32 v{X}, s{sFF}, v{T[9]}, v{X}")
    g(f"buffer_store_dwordx2 {q2(X)}, v{vDS}, {WS}, s72 offen sc1")
    stamp(10); stamp_flush()
    g("s_branch L_fin" if P['stamps'] else "s_endpgm")

    if FO:
        new_path("L_nact")
        g("s_cmp_lg_u32 s71, 0"); g("s_cbranch_scc1 L_act_done")
        g("s_waitcnt vmcnt(0)")
        rd_dn()
        if P['stamps'] and FO == 1:
            g.lgk(0); g("s_memrealtime s[96:97]"); g.lgk(0); g(f"v_writelane_b32 v{vST}, s96, 7")
        g("s_mov_b32 s71, 1")
        g("s_branch L_act_done")
        new_path("L_ldn")
        g("s_waitcnt vmcnt(0)")
        rd_dn()
        g("s_branch L_ldn_ok")
    new_path("L_refac")
    g(f"s_mov_b32 s{sCNT}, 0")
    g.label("L_refac1")
    rdfac()
    g(f"s_cmp_eq_u64 {sFV}, 0"); g("s_cbranch_scc1 L_fac_ok")
    spin_tail("L_refac1", 20 * LIM, 2)
    g("s_branch L_fac_ok")

    new_path("L_help")
    nst[0] = pro_nst
    if P['prio']: g("s_setprio 3")
    QG = P['qg']
    WSO = f"s_add_u32 s26, s26, {P['wso']<<20}\n s_addc_u32 s27, s27, 0" if P['wso'] else ''
    if QG:
        XA, XB_, XE = POOL[26], POOL[27], vQ
        XR = POOL[28]
        NEG = POOL[25]
        vX = vK
        NM = 144 // QG
        NQ = min(NM, P['NQ']); RQ = POOL[0:NQ]
        for r in range(4): g(f"v_mov_b32 v{NEG+r}, -1")
        g(f"""
        s_mov_b64 exec, 0xffffff
        ds_write_b128 v{T[1]}, {q4(NEG)}
        s_mov_b64 exec, -1
        v_lshrrev_b32 v{T[2]}, 5, v{vL}
        v_mul_u32_u24 v{T[2]}, 1152, v{T[2]}
        v_and_b32 v{T[3]}, 31, v{vL}
        v_lshl_add_u32 v{T[4]}, v{T[3]}, 4, v{T[2]}
        v_lshl_add_u32 v{T[3]}, v{T[3]}, 2, v{T[2]}
        s_and_b32 s76, s{sC}, 3
        s_lshl_b32 s{sR}, s76, 1
        s_add_u32 s{sR}, s{sR}, s{sB}
        s_mul_i32 s{sTo}, s{sR}, 144
        v_lshlrev_b32 v{T[2]}, 3, v{vJ}
        v_lshl_add_u32 v{T[2]}, v{vG}, 1, v{T[2]}
        s_lshl_b32 s76, s{sH}, 8
        s_sub_u32 s38, {576*8192}, s76
        s_mov_b32 s39, 0x20000
        s_mul_i32 s{sQo}, s{sR}, {72*8192}
        v_lshlrev_b32 v{vX}, 13, v{vG}
        v_lshl_add_u32 v{vX}, v{vJ}, 4, v{vX}
        s_mov_b32 s58, 2304
        s_mov_b32 s59, 0x20000
        s_waitcnt lgkmcnt(0)
        s_mov_b32 s56, s4
        s_mov_b32 s57, s5
        s_add_u32 s36, s10, s76
        s_addc_u32 s37, s11, 0
        {WSO}
        s_load_dword s{sE}, s[26:27], {EPW}
        """)
        g.vm(f"buffer_load_dwordx4 {q4(XA)}, v{T[4]}, {XS}, 0 offen")
        g.vm(f"buffer_load_dwordx4 {q4(XB_)}, v{T[4]}, {XS}, 0 offen offset:512")
        g.vm(f"buffer_load_dword v{XE}, v{T[3]}, {XS}, 0 offen offset:1024")
        if QG == 8:
            g(f"s_add_u32 s77, s{sTo}, 1152")
        else:
            g(f"s_mul_i32 s76, s{sB}, 1152"); g(f"s_xor_b32 s77, s{sR}, 1"); g(f"s_mul_i32 s89, s77, {72*8192}"); g("s_mul_i32 s77, s77, 144")
            g(f"s_add_u32 s{sTo}, s{sTo}, s76"); g("s_add_u32 s77, s77, s76")
        g.vm(f"buffer_load_ushort v{XR}, v{T[2]}, {XS}, s{sTo} offen")
        g.vm(f"buffer_load_ushort v{XR+1}, v{T[2]}, {XS}, s{sTo} offen offset:128")
        g.vm(f"buffer_load_ushort v{XR+2}, v{T[2]}, {XS}, s77 offen")
        tx = g.vm(f"buffer_load_ushort v{XR+3}, v{T[2]}, {XS}, s77 offen offset:128")
        tq = []
        def ldq(m):
            tq.append(g.vm(f"buffer_load_dwordx4 {q4(RQ[m % NQ])}, v{vX}, {W1}, s{sQo} offen {P['polq']}"))
            if m == 17: g(f"s_mov_b32 s{sQo}, s89")
            else: g(f"s_add_u32 s{sQo}, s{sQo}, 0x8000")
        for m in range(NQ): ldq(m)
        g("s_barrier")
        srd(52, 26, 27, WSN)
        masks()
        g.wait(tx)
        a, b_, t1, t2 = T[8], T[9], T[10], T[11]
        xs = [XA, XA + 1, XA + 2, XA + 3, XB_, XB_ + 1, XB_ + 2, XB_ + 3, XE]
        for k, r in enumerate(xs):
            g(f"v_dot2_f32_bf16 v{a}, v{r}, s{sONE}, {'0' if k == 0 else 'v%d' % a}")
            g(f"v_dot2_f32_bf16 v{b_}, v{r}, v{r}, {'0' if k == 0 else 'v%d' % b_}")
        allred("v_add_f32", [a, b_], [t1, t2], rows=2)
        for x in ln_ops(a, b_, t1): g(x)
        if QG == 8:
            g(f"v_readlane_b32 s76, v{a}, 0"); g(f"v_readlane_b32 s77, v{a}, 32")
            g(f"v_readlane_b32 s96, v{b_}, 0"); g(f"v_readlane_b32 s97, v{b_}, 32")
        else:
            g(f"s_lshl_b32 s88, s{sB}, 5")
            g(f"v_readlane_b32 s76, v{a}, s88"); g(f"v_readlane_b32 s77, v{a}, s88")
            g(f"v_readlane_b32 s96, v{b_}, s88"); g(f"v_readlane_b32 s97, v{b_}, s88")
        for k in range(4): g(f"v_lshlrev_b32 v{XR+k}, 16, v{XR+k}")
        for k in range(4): g(f"v_subrev_f32 v{XR+k}, s{76 + (k>>1)}, v{XR+k}")
        for k in range(4): bf16r(XR + k, XR + k)
        for k in range(4): g(f"v_mul_f32 v{XR+k}, s{96 + (k>>1)}, v{XR+k}")
        for k in range(4): g(f"v_cvt_pk_bf16_f32 v{XR+k}, v{XR+k}, v{XR+k}")
        for m in range(NM):
            A = vA0 if m & 1 == 0 else vA1
            t = T[8 + (m & 1)]
            if QG == 8:
                g(f"v_mov_b32_dpp v{t}, v{XR+(m>>4)} row_newbcast:{m&15} row_mask:0xf bank_mask:0x3")
                g(f"v_mov_b32_dpp v{t}, v{XR+2+(m>>4)} row_newbcast:{m&15} row_mask:0xf bank_mask:0xc")
                for r in range(4):
                    g(f"v_and_b32 v{A+r}, v{t}, v{vM+r}")
            else:
                mm = m % 18
                for r in range(4):
                    g(f"v_and_b32_dpp v{A+r}, v{XR+2*(m//18)+(mm>>4)}, v{vM+r} row_newbcast:{mm&15} row_mask:0xf bank_mask:0xf")
            g.wait(tq[m])
            g(f"v_mfma_f32_16x16x32_bf16 {q4(vACC)}, {q4(A)}, {q4(RQ[m % NQ])}, {'0' if m == 0 else q4(vACC)}")
            if m + NQ < NM: ldq(m + NQ)
        g(f"""
        s_waitcnt lgkmcnt(0)
        s_add_u32 s{sE}, s{sE}, 1
        s_and_b32 s88, s{sE}, 255
        s_movk_i32 s89, 0xff
        v_mov_b32 v{vA0+1}, s{sE}
        s_lshl_b32 s77, s{sH}, 1
        s_add_u32 s77, s77, s{sB}
        s_lshl_b32 s77, s77, 12
        s_add_u32 s77, s77, {QP}
        v_lshlrev_b32 v{T[2]}, 5, v{vJ}
        v_and_b32 v{T[3]}, 1, v{vG}
        v_lshl_add_u32 v{T[2]}, v{T[3]}, 4, v{T[2]}
        """)
        if QG == 8:
            g(f"""
            s_lshl_b32 s76, s{sH}, 4
            s_add_u32 s76, s76, s{sR}
            s_lshl_b32 s76, s76, 9
            s_add_u32 s76, s76, {QP}
            v_lshrrev_b32 v{T[3]}, 1, v{vG}
            v_lshl_add_u32 v{T[2]}, v{T[3]}, 12, v{T[2]}
            """)
        else:
            g(f"s_lshr_b32 s76, s{sR}, 1"); g("s_lshl_b32 s76, s76, 9"); g("s_add_u32 s76, s76, s77")
        for r in range(4): g(f"v_add_u32 v{vACC+r}, 0x80, v{vACC+r}")
        for r in range(4): g(f"v_bfi_b32 v{vACC+r}, s89, v{vA0+1}, v{vACC+r}")
        if QG == 4: g("s_mov_b32 exec_hi, 0")
        if not P['exp'] & 32: g.vm(f"buffer_store_dwordx4 {q4(vACC)}, v{T[2]}, {WS}, s76 offen sc1")
        if QG == 4: g("s_mov_b32 exec_hi, -1")
        stamp(1)
        QR = POOL[0:QG // 2]
        g(f"""
        s_mov_b32 s{sCNT}, 0
        v_and_b32 v{T[3]}, 31, v{vL}
        v_lshlrev_b32 v{T[3]}, 3, v{T[3]}
        v_lshrrev_b32 v{T[2]}, 5, v{vL}
        v_lshl_add_u32 v{T[3]}, v{T[2]}, 2, v{T[3]}
        """)
        if P['exp'] & (32 | 128): g("s_branch L_qp_ok")
        g.label("L_qp")
        if P['qsleep']: g(f"s_sleep {P['qsleep']}")
        for n in range(QG // 2):
            g(f"buffer_load_dwordx4 {q4(QR[n])}, v{T[1]}, {WS}, s77 offen offset:{n*1024} sc1")
        g.waitall()
        for n in range(QG // 2):
            for r in range(4): g(f"v_xor_b32 v{QR[n]+r}, s88, v{QR[n]+r}")
        g(f"v_or_b32 v{T[4]}, v{QR[0]}, v{QR[0]+1}")
        for k in range(2, 2 * QG, 2): g(f"v_or3_b32 v{T[4]}, v{T[4]}, v{QR[0]+k}, v{QR[0]+k+1}")
        g(f"v_cmp_ne_u32_sdwa vcc, v{T[4]}, v{vZ} src0_sel:BYTE_0 src1_sel:DWORD")
        g("s_cbranch_vccz L_qp_ok")
        spin_tail("L_qp", LIM)
        g.label("L_qp_ok")
        for st in ((1, 2) if QG == 8 else (1,)):
            for n in range(0, QG // 2, 2 * st):
                for hh in (0, 2): g(f"v_pk_add_f32 {q2(QR[n]+hh)}, {q2(QR[n]+hh)}, {q2(QR[n+st]+hh)}")
        g(f"v_permlane32_swap_b32 v{QR[0]}, v{QR[0]+2}")
        g(f"v_permlane32_swap_b32 v{QR[0]+1}, v{QR[0]+3}")
        g(f"v_pk_add_f32 {q2(QR[0])}, {q2(QR[0])}, {q2(QR[0]+2)}")
        g(f"v_cvt_pk_bf16_f32 v{QR[0]}, v{QR[0]}, v{QR[0]+1}")
        g(f"ds_write_b32 v{T[3]}, v{QR[0]} offset:{QS}")
    else:
        XA, XB_, XE = POOL[26], POOL[27], vQ
        XR = POOL[28]
        NQ = P['NQ']; RQ = POOL[0:NQ]
        NEG = POOL[25]
        vX = vK
        sBk = sTo
        for r in range(4): g(f"v_mov_b32 v{NEG+r}, -1")
        g(f"""
        s_mov_b64 exec, 0xffffff
        ds_write_b128 v{T[1]}, {q4(NEG)}
        s_mov_b64 exec, -1
        v_lshrrev_b32 v{T[2]}, 5, v{vL}
        v_mul_u32_u24 v{T[2]}, 1152, v{T[2]}
        v_and_b32 v{T[3]}, 31, v{vL}
        v_lshl_add_u32 v{T[4]}, v{T[3]}, 4, v{T[2]}
        v_lshl_add_u32 v{T[3]}, v{T[3]}, 2, v{T[2]}
        s_and_b32 s76, s{sC}, 3
        s_lshl_b32 s77, s{sB}, 2
        s_add_u32 s{sR}, s76, s77
        v_lshlrev_b32 v{T[2]}, 3, v{vJ}
        v_lshl_add_u32 v{T[2]}, v{vG}, 1, v{T[2]}
        s_mul_i32 s77, s{sB}, 1152
        v_add_u32 v{T[2]}, s77, v{T[2]}
        s_lshl_b32 s76, s{sH}, 8
        s_sub_u32 s38, {576*8192}, s76
        s_mov_b32 s39, 0x20000
        s_lshl_b32 s{sQo}, s{sR}, 19
        s_lshl_b32 s{sBk}, s{sR}, 7
        v_lshlrev_b32 v{vX}, 13, v{vG}
        v_lshl_add_u32 v{vX}, v{vJ}, 4, v{vX}
        s_mov_b32 s58, 2304
        s_mov_b32 s59, 0x20000
        s_waitcnt lgkmcnt(0)
        s_mov_b32 s56, s4
        s_mov_b32 s57, s5
        s_add_u32 s36, s10, s76
        s_addc_u32 s37, s11, 0
        {WSO}
        s_load_dword s{sE}, s[26:27], {EPW}
        """)
        g(f"buffer_load_dwordx4 {q4(XA)}, v{T[4]}, {XS}, 0 offen")
        g(f"buffer_load_dwordx4 {q4(XB_)}, v{T[4]}, {XS}, 0 offen offset:512")
        g(f"buffer_load_dword v{XE}, v{T[3]}, {XS}, 0 offen offset:1024")
        for k in range(9):
            g(f"buffer_load_ushort v{XR+k}, v{T[2]}, {XS}, s{sBk} offen")
            if k < 8:
                g(f"s_add_u32 s{sBk}, s{sBk}, 128"); g(f"s_cmp_eq_u32 s{sBk}, 1152"); g(f"s_cselect_b32 s{sBk}, 0, s{sBk}")
        PQ = '' if P['polq'] == 'def' else P['polq']
        QD = P['qd']
        if QD:
            NQ = QD
            g(f"s_mov_b32 m0, {WL}"); g(f"v_add_u32 v{T[0]}, {WL}, v{T[1]}")
        def ldq(m):
            if QD:
                g(f"buffer_load_dwordx4 v{vX}, {W1}, s{sQo} offen {PQ} lds")
                g("s_add_u32 m0, m0, 1024")
            else:
                g(f"buffer_load_dwordx4 {q4(RQ[m % NQ])}, v{vX}, {W1}, s{sQo} offen {PQ}")
            g(f"s_add_u32 s{sQo}, s{sQo}, 0x8000")
            if m % 16 == 15:
                g(f"s_cmp_eq_u32 s{sQo}, {576*8192}"); g(f"s_cselect_b32 s{sQo}, 0, s{sQo}")
        Q0 = P.get('Q0', NQ)
        for m in range(Q0): ldq(m)
        g("s_barrier")
        srd(52, 26, 27, WSN)
        masks()
        g(f"s_waitcnt vmcnt({Q0})")
        a, b_, t1, t2 = T[8], T[9], T[10], T[11]
        xs = [XA, XA + 1, XA + 2, XA + 3, XB_, XB_ + 1, XB_ + 2, XB_ + 3, XE]
        for k, r in enumerate(xs):
            g(f"v_dot2_f32_bf16 v{a}, v{r}, s{sONE}, {'0' if k == 0 else 'v%d' % a}")
            g(f"v_dot2_f32_bf16 v{b_}, v{r}, v{r}, {'0' if k == 0 else 'v%d' % b_}")
        allred("v_add_f32", [a, b_], [t1, t2], rows=2)
        for x in ln_ops(a, b_, t1): g(x)
        g(f"s_lshl_b32 s77, s{sB}, 5")
        g(f"v_readlane_b32 s76, v{a}, s77"); g(f"v_readlane_b32 s88, v{b_}, s77")
        for k in range(9): g(f"v_lshlrev_b32 v{XR+k}, 16, v{XR+k}")
        for k in range(9): g(f"v_subrev_f32 v{XR+k}, s76, v{XR+k}")
        for k in range(9): g(f"v_cvt_pk_bf16_f32 v{XR+k}, v{XR+k}, v{XR+k}")
        for k in range(9): g(f"v_and_b32 v{XR+k}, 0xffff0000, v{XR+k}")
        for k in range(9): g(f"v_mul_f32 v{XR+k}, s88, v{XR+k}")
        for k in range(9): g(f"v_cvt_pk_bf16_f32 v{XR+k}, v{XR+k}, v{XR+k}")
        for r in range(4): g(f"v_mov_b32 v{vACC+r}, 0")
        if Q0 < NQ:
            g(f"s_waitcnt vmcnt({Q0-1})")
            for m in range(Q0, NQ): ldq(m)
        Bd = 16 * NQ // math.gcd(16, NQ); NIT = 144 // Bd
        if QD:
            assert QD % 16 == 0
            Bd = 16; NIT = 9
        assert NIT * Bd == 144
        g(f"s_mov_b32 s{sCNT}, {NIT}")
        g.flush()
        g.label("L_q")
        if QD:
            g(f"s_cmp_le_u32 s{sCNT}, {QD//16}"); g(f"s_cselect_b32 s38, 0, s38")
            for h in range(4):
                g(f"s_waitcnt vmcnt({QD-4})")
                for m in range(4 * h, 4 * h + 4):
                    g(f"ds_read_b128 {q4(RQ[m])}, v{T[0]} offset:{1024*m}")
                for m in range(4 * h, 4 * h + 4): ldq(m)
                for m in range(4 * h - 4, 4 * h) if h else []:
                    A = vA0 if m & 1 == 0 else vA1
                    for r in range(4):
                        g(f"v_and_b32_dpp v{A+r}, v{XR}, v{vM+r} row_newbcast:{m&15} row_mask:0xf bank_mask:0xf")
                    if m % 4 == 0: g.lgk(4)
                    g(f"v_mfma_f32_16x16x32_bf16 {q4(vACC)}, {q4(A)}, {q4(RQ[m])}, {q4(vACC)}")
            for m in range(12, 16):
                A = vA0 if m & 1 == 0 else vA1
                for r in range(4):
                    g(f"v_and_b32_dpp v{A+r}, v{XR}, v{vM+r} row_newbcast:{m&15} row_mask:0xf bank_mask:0xf")
                if m % 4 == 0: g.lgk(0)
                g(f"v_mfma_f32_16x16x32_bf16 {q4(vACC)}, {q4(A)}, {q4(RQ[m])}, {q4(vACC)}")
            g(f"v_add_u32 v{T[0]}, 0x4000, v{T[0]}")
        for m in range(Bd if not QD else 0):
            A = vA0 if m & 1 == 0 else vA1
            for r in range(4):
                g(f"v_and_b32_dpp v{A+r}, v{XR+(m>>4)}, v{vM+r} row_newbcast:{m&15} row_mask:0xf bank_mask:0xf")
            if m == Bd - NQ:
                g(f"s_cmp_eq_u32 s{sCNT}, 1"); g(f"s_cselect_b32 s38, 0, s38")
            g(f"s_waitcnt vmcnt({NQ-1})")
            g(f"v_mfma_f32_16x16x32_bf16 {q4(vACC)}, {q4(A)}, {q4(RQ[m % NQ])}, {q4(vACC)}")
            ldq(m + NQ)
        for k in range(9 - Bd // 16): g(f"v_mov_b32 v{XR+k}, v{XR+k+Bd//16}")
        g(f"s_sub_u32 s{sCNT}, s{sCNT}, 1")
        g(f"s_cmp_lg_u32 s{sCNT}, 0"); g("s_cbranch_scc1 L_q")
        g(f"""
        v_lshlrev_b32 v{T[3]}, 4, v{vJ}
        v_lshl_add_u32 v{T[3]}, v{vG}, 3, v{T[3]}
        v_cvt_pk_bf16_f32 v{vACC}, v{vACC}, v{vACC+1}
        v_cvt_pk_bf16_f32 v{vACC+1}, v{vACC+2}, v{vACC+3}
        s_mov_b32 exec_hi, 0
        ds_write_b64 v{T[3]}, {q2(vACC)} offset:{QS}
        s_mov_b32 exec_hi, -1
        s_waitcnt lgkmcnt(0)
        s_add_u32 s{sE}, s{sE}, 1
        v_mov_b32 v{vA0+1}, s{sE}
        """)
    stamp(2)
    if P['prio']: g("s_setprio 0")
    def mallpf():
        if not P['mp']: return
        a_, b_ = POOL[22], POOL[22] + 1
        srd(36, 16, 17, 576 * 9216); srd(40, 18, 19, 576 * 9216)
        pm = P['polm'].replace('+', ' ').replace('def', '')
        if P['mp'] == 1:
            g(f"""
            v_lshrrev_b32 v{a_}, 1, v{vL}
            v_lshlrev_b32 v{a_}, 10, v{a_}
            v_and_b32 v{b_}, 1, v{vL}
            v_lshl_add_u32 v{a_}, v{b_}, 6, v{a_}
            s_mul_i32 s76, s2, {21*1024}
            v_add_u32 v{a_}, s76, v{a_}
            s_mov_b32 exec_hi, 0x3ff
            """)
        else:
            g(f"""
            v_lshlrev_b32 v{a_}, 10, v{vL}
            s_mul_i32 s76, s2, {21*1024}
            v_add_u32 v{a_}, s76, v{a_}
            s_mov_b64 exec, 0x1fffff
            """)
        g(f"""
        buffer_load_dword v{b_}, v{a_}, {W1}, 0 offen offset:{P['mpo']} {pm}
        buffer_load_dword v{b_}, v{a_}, {W2}, 0 offen offset:{P['mpo']} {pm}
        s_mov_b64 exec, -1
        s_waitcnt vmcnt(0)
        """)
    vD0, vD1 = T[6], T[7]
    for _ in range(P['sdel']): g("s_sleep 64")
    g(f"""
    s_lshl_b32 s76, s{sC}, 8
    s_add_u32 s76, s76, {ORW}
    s_mov_b64 exec, 0xffff
    {SENT}buffer_store_dwordx4 {q4(NEG)}, v{T[1]}, {WS}, s76 offen {P['pst']}
    """)
    if YH:
        g(f"s_cmp_ge_u32 s{sC}, {72*YH}"); g("s_cbranch_scc1 L_nys")
        g(f"s_add_u32 s76, s76, {YP-ORW}")
        g(f"buffer_store_dwordx4 {q4(NEG)}, v{T[1]}, {WS}, s76 offen sc1")
        g.label("L_nys")
    g("s_mov_b64 exec, -1")
    g("s_waitcnt vmcnt(0)")
    if P['mpp'] == 1: mallpf()
    def pair(w):
        if P['px']:
            g(f"""
            s_xor_b32 s96, s{sK}, s51
            s_cmp_lt_u32 s{sK}, 32
            s_cselect_b32 s96, s96, s{sK}
            s_mul_i32 s{sQo}, s96, s{sSt}
            s_add_u32 s{sQo}, s{sQo}, s50
            s_add_u32 s{sTo}, s{sQo}, s99
            s_lshl_b32 s96, s96, 11
            s_add_u32 m0, s96, {WL}
            """)
        g(f"""
        s_waitcnt vmcnt({w})
        buffer_load_dwordx4 v{vD0}, {W1}, s{sQo} offen {POLG} lds
        s_add_u32 m0, m0, 1024
        s_add_u32 s{sQo}, s{sQo}, s{sSt}
        s_waitcnt vmcnt({w})
        buffer_load_dwordx4 v{vD1}, {W2}, s{sTo} offen {POLG} lds
        s_add_u32 m0, m0, 1024
        s_add_u32 s{sTo}, s{sTo}, s{sSt}
        s_add_u32 s{sK}, s{sK}, 1
        """)
        if P['prot']:
            g(f"""
            s_cmp_eq_u32 m0, {WD}
            s_cselect_b32 m0, {WL}, m0
            s_cselect_b32 s{sQo}, s50, s{sQo}
            s_cselect_b32 s{sTo}, s50, s{sTo}
            """)
    m, l, t0, t1 = T[0], T[1], T[2], T[3]
    vL16 = POOL[21]
    g(f"v_mov_b32 v{vL16}, v{T[1]}")
    g(f"v_and_b32 v{T[4]}, 7, v{vL}"); g(f"v_lshlrev_b32 v{T[4]}, 3, v{T[4]}")
    def wait_pct(lab, thr, clk=False):
        g(f"s_mov_b32 s{sCNT}, 0")
        g.label(lab)
        g(f"ds_read_b32 v{t0}, v{vZ} offset:{PCT}")
        if clk: g("s_memrealtime s[98:99]")
        g.lgk(0)
        g(f"v_readfirstlane_b32 s76, v{t0}")
        g(f"s_cmp_ge_i32 s76, {thr}"); g(f"s_cbranch_scc1 {lab}_ok")
        spin_tail(lab, 20 * LIM, P['isl'])
        g.label(f"{lab}_ok")
    vRK = POOL[21] + 1
    def publish(lab, base):
        g(f"""
        s_lshr_b32 s76, s{sI}, 2
        s_lshl_b32 s50, s{sX}, 3
        s_add_u32 s50, s50, s76
        s_lshl_b32 s98, s98, 6
        s_add_u32 s98, s98, s50
        v_mov_b32 v{vA0}, s98
        s_mul_i32 s77, s{sX}, {RKS}
        s_lshl_b32 s76, s76, 3
        s_add_u32 s76, s76, s77
        s_add_u32 s76, s76, {base}
        s_and_b32 s51, s{sI}, 3
        s_cbranch_scc1 {lab}
        s_mov_b64 exec, 1
        buffer_store_dwordx2 {q2(vA0)}, v{vZ}, {WS}, s76 offen sc1
        s_mov_b64 exec, -1
        """)
        g.label(lab)
    def read_table(lab, base, lim):
        g(f"s_mov_b32 s{sCNT}, 0")
        g(f"s_mov_b32 s76, {base}")
        g.label(lab)
        g(f"buffer_load_dwordx2 {q2(t0)}, v{vRK}, {WS}, s76 offen sc1")
        g("s_waitcnt vmcnt(0)")
        g(f"v_cmp_ne_u32 vcc, s{sE}, v{t1}")
        g(f"s_cbranch_vccz {lab}_ok")
        spin_tail(lab, lim, P['asl'])
    g(f"""
    v_lshrrev_b32 v{vRK}, 3, v{vL}
    v_mul_u32_u24 v{vRK}, {RKS}, v{vRK}
    v_add_u32 v{vRK}, v{T[4]}, v{vRK}
    """)
    if C1:
        wait_pct("L_c1", 7, True)
        publish("L_np1", RK1)
        wait_pct("L_r1w", 0xff)
        stamp(5)
        read_table("L_t1", RK1, P.get('t1n', 3))
        g("s_branch L_t1_skip")
        g.label("L_t1_ok")
        g(f"""
        v_readlane_b32 s96, v{t0}, s50
        v_sub_u32 v{t0}, s96, v{t0}
        v_ashrrev_i32 v{t0}, 6, v{t0}
        """)
        allred("v_add_u32", [t0], [t1])
        g(f"""
        v_readfirstlane_b32 s96, v{t0}
        s_ashr_i32 s96, s96, 6
        s_mul_i32 s76, s96, {P['kw']}
        s_ashr_i32 s76, s76, 8
        s_add_i32 s76, s76, {R1}
        s_mul_i32 s77, s96, {P['kn']}
        s_ashr_i32 s77, s77, 8
        s_sub_i32 s77, s77, {R1}
        s_cmp_gt_i32 s96, 0
        s_cselect_b32 s76, s76, s77
        s_abs_i32 s96, s96
        s_cmp_gt_i32 s96, {P['dead']}
        s_cselect_b32 s76, s76, -1
        v_mov_b32 v{t0}, s76
        ds_write_b32 v{vZ}, v{t0} offset:{THR}
        """)
        g.label("L_t1_skip")
        stamp(6)
    g(f"s_mov_b32 s{sCNT}, 0")
    g.label("L_ml")
    g(f"ds_read_b64 {q2(m)}, v{T[4]} offset:{MLS}")
    g("s_memrealtime s[98:99]")
    g.lgk(0)
    g(f"v_cmp_u_f32 vcc, v{l}, v{l}")
    g("s_cbranch_vccz L_ml_ok")
    spin_tail("L_ml", 4 * LIM, P['csl1'])
    g.label("L_ml_ok")
    g(f"v_max_f32_dpp v{t0}, v{m}, v{m} row_ror:4 row_mask:0xf bank_mask:0xf")
    g(f"v_max_f32_dpp v{t0}, v{t0}, v{t0} row_ror:2 row_mask:0xf bank_mask:0xf")
    g(f"v_max_f32_dpp v{t0}, v{t0}, v{t0} row_ror:1 row_mask:0xf bank_mask:0xf")
    g(f"v_sub_f32 v{t1}, v{m}, v{t0}")
    g(f"v_exp_f32 v{t1}, v{t1}")
    g(f"v_mul_f32 v{l}, v{t1}, v{l}")
    for sh in (4, 2, 1):
        g(f"v_add_f32_dpp v{l}, v{l}, v{l} row_ror:{sh} row_mask:0xf bank_mask:0xf")
    g(f"v_log_f32 v{l}, v{l}")
    g(f"""
    s_lshr_b32 s50, s{sC}, 2
    s_lshl_b32 s50, s50, 7
    s_add_u32 s50, s50, {LSX}
    s_and_b32 s77, s{sC}, 3
    s_lshl_b32 s77, s77, 3
    s_add_u32 s77, s77, s50
    v_add_f32 v{vA0}, v{l}, v{t0}
    v_and_b32 v{T[5]}, 24, v{T[4]}
    s_mov_b64 exec, 1
    buffer_store_dwordx2 {q2(vA0)}, v{vZ}, {WS}, s77 offen sc1
    s_mov_b64 exec, -1
    s_mov_b32 s{sCNT}, 0
    """)
    if P['lk']:
        g(f"""
        s_lshl_b32 s49, s98, 8
        s_add_u32 s49, s49, s2
        v_mov_b32 v{vA1}, s49
        v_mov_b32 v{vA1+1}, s{sE}
        s_mul_i32 s76, s{sX}, {RKS}
        s_lshl_b32 s77, s{sI}, 3
        s_add_u32 s76, s76, s77
        s_add_u32 s76, s76, {RK1}
        s_mov_b64 exec, 1
        buffer_store_dwordx2 {q2(vA1)}, v{vZ}, {WS}, s76 offen sc1
        s_mov_b64 exec, -1
        """)
    def mkfac():
        g(f"v_max_f32_dpp v{t1}, v{t0}, v{t0} quad_perm:[1,0,3,2] row_mask:0xf bank_mask:0xf")
        g(f"v_max_f32_dpp v{t1}, v{t1}, v{t1} quad_perm:[2,3,0,1] row_mask:0xf bank_mask:0xf")
        g(f"v_sub_f32 v{t0}, v{t0}, v{t1}")
        g(f"v_exp_f32 v{t0}, v{t0}")
        g(f"v_sub_f32 v{m}, v{m}, v{t1}")
        g(f"v_exp_f32 v{m}, v{m}")
        g(f"v_add_f32_dpp v{t0}, v{t0}, v{t0} quad_perm:[1,0,3,2] row_mask:0xf bank_mask:0xf")
        g(f"v_add_f32_dpp v{t0}, v{t0}, v{t0} quad_perm:[2,3,0,1] row_mask:0xf bank_mask:0xf")
        g(f"v_rcp_f32 v{t0}, v{t0}")
        g(f"v_lshrrev_b32 v{T[4]}, 1, v{T[4]}")
        g(f"v_mul_f32 v{m}, v{m}, v{t0}")
        g("s_mov_b64 exec, 0xff")
        g(f"ds_write_b32 v{T[4]}, v{m} offset:{FAC}")
        g("s_mov_b64 exec, -1")
    if P['lx']:
        g("s_mov_b32 s89, s50")
    else:
        if P['exp'] & 64:
            g(f"v_mov_b32 v{t0}, v{vA0}"); g("s_branch L_lx_ok")
        g.label("L_lx")
        g(f"s_sleep {P['csl']}")
        g(f"buffer_load_dwordx2 {q2(t0)}, v{T[5]}, {WS}, s50 offen sc1")
        g("s_waitcnt vmcnt(0)")
        g(f"v_cmp_ne_u32 vcc, s{sE}, v{t1}")
        g("s_cbranch_vccz L_lx_ok")
        spin_tail("L_lx", LIM)
        g.label("L_lx_ok")
        mkfac()
    stamp(3)
    if P['mpp'] == 2: mallpf()
    vTK = T[10]
    if P['wk']:
        KT = [POOL[0], POOL[0] + 2, POOL[1], POOL[1] + 2, POOL[2]]
        vRO = POOL[21] + 2
        g(f"""
        v_and_b32 v{vRO}, 31, v{vL}
        v_lshlrev_b32 v{vRO}, 3, v{vRO}
        v_lshrrev_b32 v{vRK}, 5, v{vL}
        v_mul_u32_u24 v{vRK}, {RKS}, v{vRK}
        v_add_u32 v{vRK}, v{vRO}, v{vRK}
        s_mul_i32 s50, s{sX}, {RKS}
        s_add_u32 s50, s50, {RK}
        s_lshl_b32 s51, s{sI}, 3
        s_add_u32 s51, s51, s50
        """)
        wait_pct("L_pm", 0x100 * P['NW1'] - 1, True)
        g(f"""
        s_lshl_b32 s98, s98, 8
        s_add_u32 s98, s98, s2
        v_mov_b32 v{vA0}, s98
        s_mov_b64 exec, 1
        buffer_store_dwordx2 {q2(vA0)}, v{vZ}, {WS}, s51 offen sc1
        s_mov_b64 exec, -1
        """)
        stamp(5)
        if LW and P['lk']:
            for n in range(4): g(f"s_mov_b32 s{80+n}, {RK1 + 2*n*RKS}")
            for n in range(4): g(f"buffer_load_dwordx2 {q2(KT[n])}, v{vRK}, {WS}, s{80+n} offen sc1")
            g("s_waitcnt vmcnt(0)"); g("s_mov_b32 s77, 0")
            for n in range(4):
                g(f"v_cmp_eq_u32 s[96:97], s{sE}, v{KT[n]+1}")
                g(f"v_cmp_gt_u32 vcc, s49, v{KT[n]}"); g("s_and_b64 vcc, vcc, s[96:97]")
                g("s_bcnt1_i32_b64 s76, vcc"); g("s_add_u32 s77, s77, s76")
            if P['lw2']:
                g(f"s_sub_u32 s76, s77, {LW}"); g(f"s_mul_i32 s76, s76, {P['lw2']}"); g("s_ashr_i32 s76, s76, 4"); g(f"s_add_u32 s76, s76, {R1}")
                g(f"s_cmp_ge_u32 s77, {LW}"); g("s_cselect_b32 s76, s76, -1")
            else:
                g(f"s_cmp_ge_u32 s77, {LW}"); g("s_cselect_b32 s76, 200, -1")
            if P['LA']:
                g(f"s_sub_u32 s96, {P['LA']}, s77"); g(f"s_mul_i32 s96, s96, {P['lc']}"); g("s_ashr_i32 s96, s96, 4")
                g(f"s_min_i32 s96, s96, {P['lm']}"); g(f"s_sub_i32 s96, {-R1}, s96")
                g(f"s_cmp_lt_u32 s77, {P['LA']}"); g("s_cselect_b32 s76, s96, s76")
                g(f"s_cmp_lt_u32 s77, {P['LS']}"); g(f"s_cselect_b32 s76, {200 if P['lb'] else -1}, s76")
            g(f"v_mov_b32 v{t0}, s76")
            g(f"ds_write_b32 v{vZ}, v{t0} offset:{THR}")
        elif LW:
            for n in range(4): g(f"s_mov_b32 s{80+n}, {RK + 2*n*RKS + 4}")
            for n in range(4): g(f"buffer_load_dword v{KT[n]}, v{vRK}, {WS}, s{80+n} offen sc1")
            g("s_waitcnt vmcnt(0)"); g("s_mov_b32 s77, 0")
            for n in range(4):
                g(f"v_cmp_eq_u32 vcc, s{sE}, v{KT[n]}"); g("s_bcnt1_i32_b64 s76, vcc"); g("s_add_u32 s77, s77, s76")
            g(f"s_cmp_ge_u32 s77, {LW}"); g("s_cselect_b32 s76, 200, -1")
            g(f"v_mov_b32 v{t0}, s76")
            g(f"ds_write_b32 v{vZ}, v{t0} offset:{THR}")
        if P['mpp'] == 0: mallpf()
        wait_pct("L_pc", 0xffff)
        stamp(11)
        g(f"s_mov_b32 s{sCNT}, 0")
        for n in range(4): g(f"s_mov_b32 s{80+n}, {RK + 2*n*RKS}")
        g.label("L_al")
        for n in range(4): g(f"buffer_load_dwordx2 {q2(KT[n])}, v{vRK}, {WS}, s{80+n} offen sc1")
        g(f"buffer_load_dwordx2 {q2(KT[4])}, v{vRO}, {WS}, s50 offen sc1")
        if P['lx']: g(f"buffer_load_dwordx2 {q2(t0)}, v{T[5]}, {WS}, s89 offen sc1")
        g("s_waitcnt vmcnt(0)")
        for n in range(5): g(f"v_xor_b32 v{KT[n]+1}, s{sE}, v{KT[n]+1}")
        if P['lx']:
            g(f"v_xor_b32 v{t1}, s{sE}, v{t1}"); g(f"v_or_b32 v{KT[0]+1}, v{KT[0]+1}, v{t1}")
        g(f"v_or3_b32 v{t1}, v{KT[0]+1}, v{KT[1]+1}, v{KT[2]+1}")
        g(f"v_or3_b32 v{t1}, v{t1}, v{KT[3]+1}, v{KT[4]+1}")
        g(f"v_cmp_ne_u32 vcc, 0, v{t1}")
        g("s_cbranch_vccz L_al_ok")
        spin_tail("L_al", LIM, P['asl'])
    else:
        publish("L_np2", RK)
        if P['S1']:
            wait_pct("L_pm", 0xff)
            stamp(5)
        wait_pct("L_pc", 0xffff)
        stamp(11)
        if P['tk']:
            g(f"v_mov_b32 v{vTK}, 1")
            g("s_mov_b64 exec, 1")
            g(f"global_atomic_add v{vTK}, v{vZ}, v{vTK}, s[24:25] sc0 sc1")
            g("s_mov_b64 exec, -1")
        read_table("L_al", RK, LIM)
    g.label("L_al_ok")
    if P['lx']: mkfac()
    g("s_cmp_lg_u32 s2, 0"); g("s_cbranch_scc1 L_noep")
    g("s_mov_b64 exec, 1")
    g(f"buffer_store_dword v{vA0+1}, v{vZ}, {WS}, 0 offen offset:{EPW} sc1")
    g("s_mov_b64 exec, -1")
    g.label("L_noep")
    if P['wk']:
        g(f"""
        v_cmp_gt_u32 vcc, s98, v{KT[4]}
        s_bcnt1_i32_b32 s51, vcc_lo
        v_cmp_lt_u32 vcc, s98, v{KT[4]}
        v_cndmask_b32 v{t0}, -1, v{KT[4]}, vcc
        """)
        allred("v_min_u32", [t0], [t1], rows=2)
        g(f"""
        v_readfirstlane_b32 s76, v{t0}
        s_and_b32 s96, s51, 1
        s_cselect_b32 s76, s98, s76
        """)
        for n in range(4):
            g(f"v_cmp_gt_u32 s[{80+2*(n&1)}:{81+2*(n&1)}], s76, v{KT[n]}")
            if n & 1:
                for k in range(4):
                    g(f"s_bcnt1_i32_b32 s77, s{80+k}"); g("s_andn2_b32 s77, s77, 1"); g("s_add_u32 s96, s96, s77")
    if P['tk'] or P['wk']:
        if P['tk']: g(f"v_readfirstlane_b32 s96, v{vTK}")
        g(f"""
        s_and_b32 s96, s96, 255
        s_sub_u32 s76, s96, 18
        s_mul_i32 s77, s76, 147
        s_lshr_b32 s77, s77, 11
        s_mul_i32 s97, s77, 14
        s_sub_u32 s76, s76, s97
        s_cmp_ge_u32 s76, 6
        s_cselect_b32 s97, 2, 0
        s_add_u32 s76, s76, s97
        s_lshl_b32 s77, s77, 4
        s_add_u32 s76, s76, s77
        s_lshr_b32 s77, s96, 1
        s_lshl_b32 s77, s77, 4
        s_and_b32 s97, s96, 1
        s_add_u32 s77, s77, s97
        s_add_u32 s77, s77, 6
        s_cmp_lt_u32 s96, 18
        s_cselect_b32 s76, s77, s76
        s_cmp_lt_u32 s96, 144
        s_cselect_b32 s{sRo}, s76, s96
        """)
    elif P['dyn']:
        g(f"""
        v_readlane_b32 s96, v{t0}, s50
        v_cmp_gt_u32 vcc, s96, v{t0}
        s_bcnt1_i32_b64 s96, vcc
        """)
        if P['bfirst']:
            g(f"""
            s_add_u32 s97, s96, 36
            s_sub_u32 s76, s96, 18
            s_cmp_lt_u32 s96, 18
            s_cselect_b32 s97, s97, s76
            s_cmp_lt_u32 s96, 54
            s_cselect_b32 s96, s97, s96
            """)
        if P['slowf']:
            g(f"""
            s_sub_u32 s76, s96, 9
            s_mul_i32 s77, s76, 43
            s_lshr_b32 s77, s77, 7
            s_mul_i32 s97, s77, 3
            s_sub_u32 s76, s76, s97
            s_cmp_ge_u32 s76, 1
            s_addc_u32 s76, s76, 0
            s_lshl_b32 s77, s77, 2
            s_add_u32 s76, s76, s77
            s_lshl_b32 s77, s96, 2
            s_add_u32 s77, s77, 1
            s_cmp_lt_u32 s96, 9
            s_cselect_b32 s76, s77, s76
            s_cmp_lt_u32 s96, 36
            s_cselect_b32 s96, s76, s96
            """)
        g(f"s_lshl_b32 s{sRo}, s96, 2"); g(f"s_add_u32 s{sRo}, s{sRo}, s51")
        if P.get('bx', 1):
            g(f"""
            s_sub_u32 s76, s{sRo}, 144
            s_mul_i32 s77, s76, 57
            s_lshr_b32 s77, s77, 9
            s_mul_i32 s97, s77, 9
            s_sub_u32 s97, s76, s97
            s_lshl_b32 s97, s97, 3
            s_add_u32 s97, s97, s77
            s_add_u32 s97, s97, 144
            s_cmp_lt_u32 s76, 72
            s_cselect_b32 s{sRo}, s97, s{sRo}
            """)
    else:
        g(f"""
        s_mul_i32 s{sRo}, s{sX}, 18
        s_add_u32 s{sRo}, s{sRo}, s{sI}
        s_cmp_lt_u32 s{sI}, 18
        s_cselect_b32 s{sRo}, s{sRo}, s2
        """)
    if RB:
        g(f"s_sub_u32 s77, s96, {P['rb1']}"); g(f"s_cmp_lt_u32 s77, {max(P['rb2'] - P['rb1'], 0)}"); g(f"s_cselect_b32 s76, {P['rbf']}, -1")
        g("s_cmp_lt_u32 s96, 18"); g(f"s_cselect_b32 s76, {P['rbe']}, s76")
        g(f"v_mov_b32 v{t0}, s76")
        g(f"ds_write_b32 v{vZ}, v{t0} offset:{THR}")
    g(f"s_and_b32 s{sTG}, s{sE}, 255"); g(f"s_movk_i32 s{sFF}, 0xff")
    g(f"s_lshl_b32 s76, s{sTG}, 16"); g(f"s_or_b32 s76, s76, s{sRo}")
    g(f"v_mov_b32 v{t0}, s76")
    g(f"ds_write_b32 v{vZ}, v{t0} offset:{ROLE}")
    stamp(12); stamp_flush()
    g(f"s_cmp_lt_u32 s{sRo}, 216"); g("s_cbranch_scc0 L_fin")
    srd(44, 20, 21, 4608 * 1152)
    g(f"""
    s_mov_b32 m0, {WL}
    s_mov_b32 s{sK}, 0
    s_mov_b32 s{sCNT}, 0
    """)
    g(f"s_cmp_lt_u32 s{sRo}, 144"); g("s_cbranch_scc1 L_hf2")
    PXB = f"s_mov_b32 s50, s{sQo}\n s_mov_b32 s51, 0\n s_mov_b32 s99, {8*1152}" if P['px'] else ""
    vD2, vD3 = T[8], T[9]
    srd(36, 12, 13, 4096 * 1152); srd(40, 12, 13, 4096 * 1152 - (8192 if P['q4d'] else 0))
    if P['q4d']:
        g("s_add_u32 s40, s40, 8192"); g("s_addc_u32 s41, s41, 0")
    g(f"""
    s_sub_u32 s{sU}, s{sRo}, 144
    s_and_b32 s{sXb}, s{sU}, 7
    s_lshr_b32 s77, s{sU}, 3
    s_mul_i32 s{sQo}, s{sXb}, {512*1152}
    s_lshl_b32 s77, s77, 7
    s_add_u32 s{sQo}, s{sQo}, s77
    s_add_u32 s{sTo}, s{sQo}, {8*1152}
    {PXB}
    s_mov_b32 s{sSt}, {16*1152}
    s_mov_b32 s{sN}, 32
    s_mov_b32 s88, 0xff00
    s_mov_b32 s89, {P['tcnt']<<8}
    v_lshrrev_b32 v{T[2]}, 3, v{vL}
    v_mul_u32_u24 v{T[2]}, 1152, v{T[2]}
    v_and_b32 v{T[3]}, 1, v{vG}
    v_lshlrev_b32 v{T[3]}, 1, v{T[3]}
    v_and_b32 v{T[4]}, 7, v{vL}
    v_xor_b32 v{T[3]}, v{T[3]}, v{T[4]}
    v_lshl_add_u32 v{vD0}, v{T[3]}, 4, v{T[2]}
    v_xor_b32 v{T[3]}, 4, v{T[3]}
    v_lshl_add_u32 v{vD1}, v{T[3]}, 4, v{T[2]}
    s_branch {'L_seb' if P['seb'] else 'L_is'}
    """)
    g.label("L_hf2")
    srd(36, 16, 17, 576 * 9216); srd(40, 18, 19, 576 * 9216 + (1024 if P['q4d'] else 0))
    if P['q4d']:
        g("s_sub_u32 s40, s40, 1024"); g("s_subb_u32 s41, s41, 0")
    g(f"""
    s_lshl_b32 s{sQo}, s{sRo}, 6
    s_mov_b32 s50, s{sQo}
    s_and_b32 s76, s{sRo}, {P['prot']}
    s_mul_i32 s77, s76, {18*16*9216}
    s_add_u32 s{sQo}, s{sQo}, s77
    s_mul_i32 s77, s76, {18*2048}
    s_add_u32 m0, m0, s77
    s_mov_b32 s{sTo}, s{sQo}
    s_mov_b32 s{sSt}, {16*9216}
    s_mov_b32 s{sN}, 36
    s_mov_b32 s88, 255
    s_mov_b32 s89, {P['tcnt']}
    s_mul_i32 s{sKo}, s{sRo}, 36864
    v_lshrrev_b32 v{T[2]}, 2, v{vL}
    v_mul_u32_u24 v{T[2]}, 9216, v{T[2]}
    v_lshrrev_b32 v{T[3]}, 5, v{vL}
    v_lshlrev_b32 v{T[3]}, 1, v{T[3]}
    v_and_b32 v{T[4]}, 3, v{vL}
    v_xor_b32 v{T[3]}, v{T[3]}, v{T[4]}
    v_lshl_add_u32 v{vD0}, v{T[3]}, 4, v{T[2]}
    v_mov_b32 v{vD1}, v{vD0}
    """)
    if P['px']:
        g(f"s_mov_b32 s99, 0"); g(f"s_and_b32 s51, s{sRo}, 1"); g(f"s_mul_i32 s51, s51, {P['px']}")
        if P['pxs']:
            g(f"s_bfe_u32 s76, s{sRo}, 0x30001"); g("s_cmp_eq_u32 s76, 3"); g("s_cselect_b32 s51, s51, 0")
    vC0, vC1 = T[8], T[9]
    if P['coop']:
        g(f"""
        s_and_b32 s76, s{sRo}, 1
        v_bfe_u32 v{T[2]}, v{vL}, 2, 3
        v_mul_u32_u24 v{T[2]}, 9216, v{T[2]}
        v_lshrrev_b32 v{T[3]}, 5, v{vL}
        v_xor_b32 v{T[3]}, s76, v{T[3]}
        v_lshl_add_u32 v{T[2]}, v{T[3]}, 6, v{T[2]}
        v_lshl_add_u32 v{vC0}, v{T[4]}, 4, v{T[2]}
        v_xor_b32 v{vC1}, 32, v{vC0}
        v_add_u32 v{vC1}, {8*9216}, v{vC1}
        s_mul_i32 s77, s76, {288*9216}
        s_andn2_b32 s50, s{sQo}, 64
        s_add_u32 s50, s50, s77
        s_mul_i32 s77, s76, {18*2048}
        s_add_u32 m0, m0, s77
        s_xor_b32 s76, s76, 1
        s_mul_i32 s51, s76, {18*2048}
        s_add_u32 s51, s51, {WL}
        s_mul_i32 s77, s76, {288*9216}
        s_add_u32 s{sQo}, s{sQo}, s77
        s_mov_b32 s{sTo}, s{sQo}
        """)
    def early(lab, depth, cnt):
        g.label(lab)
        g(f"ds_read_b32 v{t0}, v{vZ} offset:{ISS}")
        pair(depth - 1)
        g.lgk(0)
        g(f"v_readfirstlane_b32 s76, v{t0}")
        g("s_add_u32 s76, s76, 1"); g("s_and_b32 s76, s76, s88"); g("s_cmp_ge_u32 s76, s89"); g("s_cbranch_scc1 L_is_ok")
        g(f"s_cmp_lt_u32 s{sK}, {cnt}"); g(f"s_cbranch_scc1 {lab}")
    if P['se']:
        g(f"s_bfe_u32 s76, s{sRo}, 0x30001"); g("s_cmp_lg_u32 s76, 3"); g("s_cbranch_scc1 " + ("L_sea" if P['sea'] else "L_is"))
        early("L_se", P['Dse'], P['se'])
        if P['sea']:
            g("s_branch L_is")
            early("L_sea", P['Dsf'], P['sea'])
        if P['seb']:
            g("s_branch L_is")
            early("L_seb", 2 * P['Dsf'], P['seb'])
    g.flush()
    if P['q4d']:
        g.label("L_is")
        g(f"s_sub_u32 s76, s{sSt}, 2048"); g(f"s_lshl_b32 s{sSt}, s{sSt}, 1")
        g(f"v_add_u32 v{vD2}, s76, v{vD0}"); g(f"v_add_u32 v{vD3}, s76, v{vD1}")
    g.label("L_is1" if P['q4d'] else "L_is")
    g(f"ds_read_b32 v{t0}, v{vZ} offset:{ISS}")
    g.lgk(0)
    g(f"v_readfirstlane_b32 s76, v{t0}")
    g("s_add_u32 s76, s76, 1")
    g("s_and_b32 s76, s76, s88")
    g("s_cmp_gt_u32 s76, s89") if False else g("s_cmp_ge_u32 s76, s89")
    g("s_cbranch_scc1 L_is_ok")
    spin_tail("L_is1" if P['q4d'] else "L_is", 20 * LIM, P['isl'] if P['isl2'] < 0 else P['isl2'])
    g.label("L_is_ok")
    if P['dprio']: g("s_setprio 3")
    def quad(w):
        for k, (v, sr) in enumerate(((vD0, W1), (vD1, W2), (vD2, W1), (vD3, W2))):
            if w is not None and (k & 1) == 0: g(f"s_waitcnt vmcnt({w-1})")
            g(f"buffer_load_dwordx4 v{v}, {sr}, s{sQo} offen offset:{k*1024} {POLG} lds")
        g("s_add_u32 m0, m0, 4096"); g(f"s_add_u32 s{sQo}, s{sQo}, s{sSt}")
    stamp(13); stamp_flush()
    if P['exp'] & 8: g("s_branch L_fin")
    if P['coop']:
        g(f"s_cmp_lt_u32 s{sRo}, 144"); g("s_cbranch_scc0 L_nc")
        g.label("L_co")
        for sr in (W1, W2):
            for v in (vC0, vC1):
                g(f"s_waitcnt vmcnt({P['Dc']})")
                g(f"buffer_load_dwordx4 v{v}, {sr}, s50 offen {P['polc'].replace('+', ' ').replace('def', '')} lds")
                g("s_add_u32 m0, m0, 512")
        g(f"s_add_u32 s50, s50, s{sSt}")
        g(f"s_add_u32 s{sK}, s{sK}, 1")
        g(f"s_cmp_lt_u32 s{sK}, 18"); g("s_cbranch_scc1 L_co")
        g("s_mov_b32 m0, s51")
        g.label("L_nc")
    if P['q4d']:
        if P['q4d'] == 1:
            for _ in range(P['B1'] // 2): quad(None)
            g(f"s_mov_b32 s{sK}, {P['B1'] // 2 * 2}")
        else:
            g.label("L_d0")
            quad(None)
            g(f"s_add_u32 s{sK}, s{sK}, 2")
            g(f"s_cmp_lt_u32 s{sK}, {P['B1']}"); g("s_cbranch_scc1 L_d0")
        g.label("L_d1")
        g(f"ds_read_b32 v{t0}, v{vZ} offset:{CNT}")
        quad(P['Dw1'] - 1)
        g(f"s_add_u32 s{sK}, s{sK}, 2")
        g(f"s_cmp_ge_u32 s{sK}, s{sN}"); g("s_cbranch_scc1 L_d3")
        g.lgk(0)
        g(f"v_readfirstlane_b32 s76, v{t0}")
        g("s_cmp_lt_i32 s76, 8"); g("s_cbranch_scc1 L_d1")
        g.label("L_d2")
        quad(P['Dw2'])
        g(f"s_add_u32 s{sK}, s{sK}, 2")
        g(f"s_cmp_lt_u32 s{sK}, s{sN}"); g("s_cbranch_scc1 L_d2")
    else:
        if P['B1']:
            g(f"s_cmp_ge_u32 s{sK}, {P['B1']}"); g("s_cbranch_scc1 L_d1")
            g.label("L_d0")
            pair(60)
            g(f"s_cmp_lt_u32 s{sK}, {P['B1']}"); g("s_cbranch_scc1 L_d0")
        g.label("L_d1")
        g(f"s_cmp_ge_u32 s{sK}, s{sN}"); g("s_cbranch_scc1 L_d3")
        g(f"ds_read_b32 v{t0}, v{vZ} offset:{CNT}")
        pair(P['Dw1'] - 1)
        g.lgk(0)
        g(f"v_readfirstlane_b32 s76, v{t0}")
        g("s_cmp_lt_i32 s76, 8"); g("s_cbranch_scc1 L_d1")
        g.label("L_d2")
        g(f"s_cmp_ge_u32 s{sK}, s{sN}"); g("s_cbranch_scc1 L_d3")
        pair(P['Dw2'])
        g("s_branch L_d2")
    g.label("L_d3")
    if P['q4d']: g("s_waitcnt lgkmcnt(0)")
    g(f"s_mov_b32 m0, {WD}")
    g(f"s_cmp_lt_u32 s{sRo}, 144"); g("s_cbranch_scc0 L_red")
    for e in range(36 if FO != 1 else 0):
        if e >= 2: g(f"s_waitcnt vmcnt({P['Dw2']})")
        g(f"buffer_load_dwordx4 v{vL16}, {W3}, s{sKo} offen offset:{(e&3)*1024} {P['pol']} lds")
        if e & 3 == 3 and e < 35:
            g(f"s_add_u32 m0, m0, 4096"); g(f"s_add_u32 s{sKo}, s{sKo}, 4096")
    g("s_branch L_ffn")

    new_path("L_red")
    if P['bp']:
        g(f"v_mov_b32 v{T[0]}, -2")
        g(f"s_waitcnt vmcnt({P['bN']})")
        g(f"ds_write_b32 v{vZ}, v{T[0]} offset:{WF}")
    g("s_waitcnt vmcnt(0)")
    if P['bp']: g(f"ds_write_b32 v{vZ}, v{vZ} offset:{WF}")
    stamp(7); stamp_flush()
    if not P['bp']: g("s_barrier")
    srd(60, 22, 23, 2304)
    g(f"""
    s_lshr_b32 s77, s{sU}, 3
    s_lshr_b32 s76, s{sXb}, 2
    s_lshl_b32 s76, s76, 5
    s_and_b32 s70, s{sXb}, 1
    s_lshl_b32 s70, s70, 3
    s_add_u32 s76, s76, s70
    v_and_b32 v{T[0]}, 3, v{vL}
    v_lshl_add_u32 v{T[1]}, v{T[0]}, 1, s76
    v_lshrrev_b32 v{T[2]}, 1, v{vG}
    v_add_u32 v{T[1]}, v{T[1]}, v{T[2]}
    v_and_b32 v{T[2]}, 1, v{vG}
    v_lshl_add_u32 v{T[1]}, v{T[2]}, 4, v{T[1]}
    v_lshlrev_b32 v{T[3]}, 1, v{T[1]}
    v_lshrrev_b32 v{T[4]}, 2, v{vJ}
    v_lshlrev_b32 v{T[4]}, {8 if YH else 9}, v{T[4]}
    v_lshl_add_u32 v{T[4]}, v{T[1]}, {1 if YH else 2}, v{T[4]}
    s_bfe_u32 s76, s{sXb}, 0x10001
    s_mul_i32 s71, s76, 1152
    s_lshl_b32 s72, s77, 7
    s_add_u32 s71, s71, s72
    s_lshl_b32 s76, s76, {7 if YH else 8}
    s_and_b32 s70, s{sX}, {P['NREP']-1}
    s_mul_i32 s70, s70, {YR_}
    s_add_u32 s70, s70, s76
    s_lshl_b32 s76, s77, {11 if YH else 12}
    s_add_u32 s70, s70, s76
    s_add_u32 s70, s70, {YP}
    s_mov_b32 s76, s{sU}
    """)
    g(f"buffer_load_ushort v{T[9]}, v{T[3]}, {XS}, s71 offen")
    if P['dbl'] == 0:
        g(f"""
        v_lshrrev_b32 v{T[5]}, 2, v{vL}
        v_mul_u32_u24 v{T[5]}, 4608, v{T[5]}
        v_lshl_add_u32 v{T[5]}, v{T[0]}, 4, v{T[5]}
        s_lshl_b32 s76, s76, 6
        s_add_u32 s76, s76, {DB}
        """)
        for n in range(9): g(f"s_add_u32 s{28+n}, s76, {n*16*4608}")
        dsrc = lambda n: f"v{T[5]}, {WS}, s{28+n} offen"
    else:
        g(f"s_mul_i32 s76, s76, 9216"); g(f"s_add_u32 s76, s76, {DB}")
        for n in range(3): g(f"s_add_u32 s{28+n}, s76, {n*4096}")
        dsrc = lambda n: f"v{vL16}, {WS}, s{28+(n>>2)} offen offset:{(n&3)*1024}"
    YR = POOL[0:9]
    sMs = [f"s[{a}:{a+1}]" for a in (38, 40, 42, 44, 46, 48, 50, 80, 82)]
    for n in range(9): g(f"s_mov_b64 {sMs[n]}, -1")
    g(f"s_mov_b32 s{sCNT}, 0")
    g("s_barrier")
    g.label("L_r1")
    g(f"s_sleep {P['r1sleep']}")
    if YH:
        g(f"buffer_load_ushort v{T[10]}, v{T[4]}, {WS}, s70 offen sc1")
        g(f"buffer_load_ushort v{T[11]}, v{T[4]}, {WS}, s70 offen offset:1024 sc1")
        g("s_waitcnt vmcnt(0)")
        g(f"v_max_u32 v{T[8]}, v{T[10]}, v{T[11]}")
        g(f"v_cvt_f32_f16 v{T[10]}, v{T[10]}"); g(f"v_cvt_f32_f16 v{T[11]}, v{T[11]}")
        g(f"v_cmp_eq_u32 vcc, 0xffff, v{T[8]}")
    else:
        g(f"buffer_load_dword v{T[10]}, v{T[4]}, {WS}, s70 offen sc1")
        g(f"buffer_load_dword v{T[11]}, v{T[4]}, {WS}, s70 offen offset:2048 sc1")
        g("s_waitcnt vmcnt(0)")
        g(f"v_xor_b32 v{T[10]}, s{sTG}, v{T[10]}"); g(f"v_xor_b32 v{T[11]}, s{sTG}, v{T[11]}")
        g(f"v_or_b32 v{T[8]}, v{T[10]}, v{T[11]}")
        g(f"v_cmp_ne_u32_sdwa vcc, v{T[8]}, v{vZ} src0_sel:BYTE_0 src1_sel:DWORD")
    g("s_cbranch_vccz L_r1_ok")
    spin_tail("L_r1", LIM)
    g.label("L_r1_ok")
    stamp(8)
    g(f"v_add_f32_dpp v{T[10]}, v{T[10]}, v{T[10]} row_ror:8 row_mask:0xf bank_mask:0xf")
    g(f"v_add_f32_dpp v{T[11]}, v{T[11]}, v{T[11]} row_ror:8 row_mask:0xf bank_mask:0xf")
    g(f"v_add_f32 v{T[10]}, v{T[10]}, v{T[11]}")
    g(f"v_add_f32_dpp v{T[10]}, v{T[10]}, v{T[10]} row_ror:4 row_mask:0xf bank_mask:0xf")
    bf16r(T[10], T[10])
    g(f"v_lshlrev_b32 v{T[9]}, 16, v{T[9]}")
    g(f"v_add_f32 v{T[10]}, v{T[10]}, v{T[9]}")
    bf16r(T[10], T[10])
    g(f"s_mov_b32 s{sCNT}, 0")
    if P['r2d']: g(f"s_sleep {P['r2d']}")
    for _ in range(P['pd3'] - 1):
        for n in range(9):
            g(f"buffer_load_dwordx4 {q4(YR[n])}, {dsrc(n)} sc1")
        g(f"s_sleep {P['pg'] * 2 // P['pd3']}")
    g.label("L_r2")
    for n in range(9):
        g(f"s_or_b64 exec, {sMs[n]}, 1")
        g(f"buffer_load_dwordx4 {q4(YR[n])}, {dsrc(n)} sc1")
    g("s_mov_b64 exec, -1")
    ZR = POOL[9:18]; OR = POOL[18]
    y = vA0
    for n in range(9):
        g(f"s_waitcnt vmcnt({8-n + 9 * (P['pd3'] - 1)})")
        for r in range(4): g(f"v_xor_b32 v{ZR[n]+r}, s{sTG}, v{YR[n]+r}")
        g(f"v_or3_b32 v{OR+n}, v{ZR[n]}, v{ZR[n]+1}, v{ZR[n]+2}")
        if n == 1:
            for hh in (0, 2): g(f"v_pk_add_f32 {q2(y+hh)}, {q2(ZR[0]+hh)}, {q2(ZR[1]+hh)}")
        if n >= 2:
            for hh in (0, 2): g(f"v_pk_add_f32 {q2(y+hh)}, {q2(y+hh)}, {q2(ZR[n]+hh)}")
        g(f"v_or_b32 v{OR+n}, v{OR+n}, v{ZR[n]+3}")
        if n == 1: g(f"v_or_b32 v{T[8]}, v{OR}, v{OR+1}")
        if n >= 2: g(f"v_or_b32 v{T[8]}, v{T[8]}, v{OR+n}")
    g(f"v_cmp_ne_u32_sdwa vcc, v{T[8]}, v{vZ} src0_sel:BYTE_0 src1_sel:DWORD")
    g(f"v_permlane16_swap_b32 v{y}, v{y+1}")
    g(f"v_permlane16_swap_b32 v{y+2}, v{y+3}")
    g(f"v_add_f32 v{y}, v{y}, v{y+1}")
    g(f"v_add_f32 v{y+2}, v{y+2}, v{y+3}")
    g(f"v_permlane32_swap_b32 v{y}, v{y+2}")
    g(f"v_add_f32 v{y}, v{y}, v{y+2}")
    g(f"v_add_f32_dpp v{y}, v{y}, v{y} row_ror:4 row_mask:0xf bank_mask:0xf")
    g(f"v_add_f32_dpp v{y}, v{y}, v{y} row_ror:8 row_mask:0xf bank_mask:0xf")
    g(f"v_cvt_pk_bf16_f32 v{y}, v{y}, v{y}")
    g(f"v_and_b32 v{y}, 0xffff0000, v{y}")
    g(f"v_add_f32 v{y}, v{y}, v{T[10]}")
    g(f"v_cvt_pk_bf16_f32 v{y}, v{y}, v{y}")
    g("s_cbranch_vccz L_r2_ok")
    for n in range(9):
        g(f"v_cmp_ne_u32_sdwa {sMs[n]}, v{OR+n}, v{vZ} src0_sel:BYTE_0 src1_sel:DWORD")
    spin_tail("L_r2", 3 * LIM, P['ps3'])
    g.label("L_r2_ok")
    stamp(9)
    g("s_mov_b32 exec_lo, 0x000f000f"); g("s_mov_b32 exec_hi, 0x000f000f")
    g(f"buffer_store_short v{y}, v{T[3]}, {OUT}, s71 offen {P.get('pout', '').replace('+', ' ')}")
    g("s_mov_b64 exec, -1")
    if P['stamps']:
        g("s_waitcnt vmcnt(0)")
        stamp(10)
        stamp_flush()
    if P['padto']:
        g.label("L_pad")
        g("s_memrealtime s[96:97]"); g("s_waitcnt lgkmcnt(0)"); g("s_sub_u32 s96, s96, s94")
        g(f"s_cmp_lt_u32 s96, {P['padto']}"); g("s_cbranch_scc1 L_pad")
    g.flush()
    g.label("L_fin")
    g.hist = []
    nst[0] = 0
    stamp_end()
    g("s_endpgm")
    g.label("L_end")
    g("s_endpgm")

    tail = ['.section .rodata,"a"', ".p2align 6", f".amdhsa_kernel {KN}",
            "  .amdhsa_next_free_vgpr 168", "  .amdhsa_next_free_sgpr 102", "  .amdhsa_accum_offset 168",
            "  .amdhsa_group_segment_fixed_size 0", "  .amdhsa_kernarg_size 96", "  .amdhsa_user_sgpr_count 2",
            "  .amdhsa_user_sgpr_kernarg_segment_ptr 1", "  .amdhsa_system_sgpr_workgroup_id_x 1", ".end_amdhsa_kernel"]
    if P['stamps']:
        hdr.insert(1, "; ORDER S6")
    return "\n".join(hdr) + "\n" + g.text() + "\n".join(tail) + "\n"


if __name__ == "__main__":
    out = sys.argv[1]
    kw = {}
    for a in sys.argv[2:]:
        k, v = a.split('=')
        try:
            v = int(v)
        except ValueError:
            try:
                v = float(v)
            except ValueError:
                pass
        kw[k] = v
    open(out, 'w').write(gen(**kw))
```
